```python
import torch

def _softmax(x, axis=-1):
    return torch.softmax(x, dim=axis)
def _gelu(x):
    return torch.nn.functional.gelu(x, approximate="tanh")
def _silu(x):
    return torch.nn.functional.silu(x)
def _sigmoid(x):
    return torch.sigmoid(x)
def _layernorm(x, axis=-1, eps=1e-5):
    m = x.mean(dim=axis, keepdim=True)
    v = x.var(dim=axis, keepdim=True, unbiased=False)
    return (x - m) / torch.sqrt(v + eps)
def _scatter_add(tgt, idx, src, axis=0):
    return tgt.clone().index_add_(axis, idx, src)
def _segment_sum(src, seg, n):
    out = torch.zeros((n,) + src.shape[1:], dtype=src.dtype)
    return out.index_add_(0, seg, src)
def _pad(x, pw):
    flat = tuple(v for pair in reversed(pw) for v in pair)
    return torch.nn.functional.pad(x, flat)

kernel_name = 'standalone__edge_featured_mpnn_gatedgcn__graph'

def setup_inputs():

    _w = (lambda a: (lambda t: t.to(torch.bfloat16) if t.is_floating_point() else t)(torch.as_tensor(a)))
    N, deg, D, De = 25000, 16, 128, max(0, 1)
    E = N * deg
    return {
        "x": _w((lambda *s: torch.randn(*s, dtype=torch.bfloat16) * 0.4)(N, D)),
        "e_attr": _w((lambda *s: torch.randn(*s, dtype=torch.bfloat16) * 0.8)(E, De)),
        "src": _w((lambda lo, hi, *s: torch.randint(lo, hi, s))(0, N, E).to(torch.int64)),
        "dst": _w((lambda lo, hi, *s: torch.randint(lo, hi, s))(0, N, E).to(torch.int64)),
        "w_a": _w((lambda *s: torch.randn(*s, dtype=torch.bfloat16) * 0.4)(D, D)),
        "w_b": _w((lambda *s: torch.randn(*s, dtype=torch.bfloat16) * 0.4)(D, D)),
        "w_c": _w((lambda *s: torch.randn(*s, dtype=torch.bfloat16) * 0.8)(De, D)),
        "w_u": _w((lambda *s: torch.randn(*s, dtype=torch.bfloat16) * 0.05)(D, D)),
        "w_v": _w((lambda *s: torch.randn(*s, dtype=torch.bfloat16) * 0.05)(D, D)),
    }

def reference(x, e_attr, src, dst, w_a, w_b, w_c, w_u, w_v):
    N, D = x.shape
    hv = x @ w_v
    g = x[dst] @ w_a + x[src] @ w_b + e_attr @ w_c
    eta = _sigmoid(g)
    denom = _segment_sum(eta, dst, N) + 1e-6
    eta_n = eta / denom[dst]
    agg = _segment_sum(eta_n * hv[src], dst, N)
    z = x @ w_u + agg
    relu_z = torch.where(z > 0, z, 0 * z)
    return x + relu_z
```

```python
import struct

class Asm:
    def __init__(self):
        self.lines = []
        self._uid = 0
    def __call__(self, s):
        for l in s.strip("\n").split("\n"):
            l = l.strip()
            if not l:
                continue
            if l.endswith(":") and " " not in l:
                self.lines.append(l)
            else:
                self.lines.append("    " + l)
    def c(self, s):
        self.lines.append("    ; " + s)
    def raw(self, s):
        self.lines.append(s)
    def uid(self, p):
        self._uid += 1
        return "%s_%d" % (p, self._uid)
    def text(self):
        return "\n".join(self.lines) + "\n"

def v(i, n=1):
    return "v%d" % i if n == 1 else "v[%d:%d]" % (i, i + n - 1)
def s(i, n=1):
    return "s%d" % i if n == 1 else "s[%d:%d]" % (i, i + n - 1)
def fbits(x):
    return struct.unpack("<I", struct.pack("<f", x))[0]
def hx(x):
    return "0x%x" % (x & 0xffffffff)

class Regs:
    def __init__(self, start, limit):
        self.n = start
        self.limit = limit
        self.hi = start
    def alloc(self, n=1, align=1):
        if n >= 2 and align < 2:
            align = 2
        self.n = (self.n + align - 1) // align * align
        r = self.n
        self.n += n
        assert self.n <= self.limit, "out of registers: %d > %d" % (self.n, self.limit)
        self.hi = max(self.hi, self.n)
        return r
    def mark(self):
        return self.n
    def release(self, m):
        self.n = m
```

```python
import sys, math
from asmlib import *

N, E, D = 25000, 400000, 128
NWG = 256
CH = 1568
CHB = CH * 8
TS = 25024 * 128
WS_T, WS_REC, WS_DESC, WS_STAMP = 0, 0x00D00000, 0x01100000, 0x01200000
LOG2E = 1.4426950408889634
STRIDE = 45
NLOC = 400
NGRP = NLOC // 16
AUS = 144

STAMPS = "--stamps" in sys.argv

sWG, sWAVE, sSL, sBK = 2, 3, 4, 5
pX, pE, pSRC, pDST, pWA, pWB, pWC, pWU, pWV, pOUT, pDBG, pWS = 16, 18, 20, 22, 24, 26, 28, 30, 32, 34, 36, 38
rX, rW, rT, rREC, rDESC, rA, rB, rC = 40, 44, 48, 52, 56, 60, 64, 68
sMHI, sM7F0, sM7FF, sTINY, sPERM, sNL2E = 72, 73, 74, 75, 76, 77
sMSK = 80
sT0, sT1, sT2, sT3 = 6, 7, 8, 9
sVAL = 10
sOVF = 12
sK, sMAX, sMIN, sBASE = 14, 15, 78, 79
sST = 96
rST = 98

def srd(a, r, p, nbytes, add=None):
    if add is None:
        a(f"s_mov_b32 {s(r)}, {s(p)}")
        a(f"s_and_b32 {s(r+1)}, {s(p+1)}, 0xffff")
    else:
        a(f"s_add_u32 {s(r)}, {s(p)}, {add}")
        a(f"s_addc_u32 {s(r+1)}, {s(p+1)}, 0")
        a(f"s_and_b32 {s(r+1)}, {s(r+1)}, 0xffff")
    a(f"s_mov_b32 {s(r+2)}, {hx(nbytes)}")
    a(f"s_mov_b32 {s(r+3)}, 0x20000")

def stamp(a, idx, vt):
    if not STAMPS:
        return
    l = a.uid("ST")
    a(f"s_cmp_lg_u32 {s(sWAVE)}, 0")
    a(f"s_cbranch_scc1 {l}")
    a(f"s_memrealtime {s(sST,2)}")
    a(f"s_waitcnt lgkmcnt(0)")
    a(f"v_mov_b32 {v(vt)}, {s(sST)}")
    a(f"v_mov_b32 {v(vt+1)}, {s(sST+1)}")
    a(f"s_lshl_b32 {s(sST)}, {s(sWG)}, 8")
    a(f"s_add_u32 {s(sST)}, {s(sST)}, {WS_STAMP + idx*8}")
    a(f"v_mov_b32 {v(vt+2)}, {s(sST)}")
    a(f"s_mov_b64 {s(rST,2)}, exec")
    a(f"s_mov_b64 exec, 1")
    a(f"global_store_dwordx2 {v(vt+2)}, {v(vt,2)}, {s(pWS,2)}")
    a(f"s_mov_b64 exec, {s(rST,2)}")
    a(f"{l}:")

def prologue(a, name, endl):
    a.raw(f".globl {name}")
    a.raw(".p2align 8")
    a.raw(f".type {name},@function")
    a.raw(f"{name}:")
    a(f"s_cmp_ge_u32 s2, {NWG}")
    a(f"s_cbranch_scc1 {endl}")
    a("s_load_dwordx16 s[16:31], s[0:1], 0")
    a("s_load_dwordx8 s[32:39], s[0:1], 64")
    a(f"v_lshrrev_b32 v1, 6, v0")
    a(f"s_and_b32 {s(sSL)}, s2, 3")
    a(f"v_readfirstlane_b32 {s(sWAVE)}, v1")
    a(f"s_lshr_b32 {s(sBK)}, s2, 2")
    a(f"s_mov_b32 {s(sMHI)}, 0xffff0000")
    a(f"s_mov_b32 {s(sM7F0)}, 0x7fff0000")
    a(f"s_mov_b32 {s(sM7FF)}, 0x7fffffff")
    a(f"s_mov_b32 {s(sTINY)}, 0x00800000")
    a(f"s_mov_b32 {s(sPERM)}, 0x07060302")
    a(f"s_mov_b32 {s(sNL2E)}, {hx(fbits(-LOG2E))}")

def scan64(a, r):
    for sh in (1, 2, 4, 8):
        a("s_nop 1")
        a(f"v_add_u32_dpp {v(r)}, {v(r)}, {v(r)} row_shr:{sh} row_mask:0xf bank_mask:0xf")
    a("s_nop 1")
    a(f"v_add_u32_dpp {v(r)}, {v(r)}, {v(r)} row_bcast:15 row_mask:0xa bank_mask:0xf")
    a("s_nop 1")
    a(f"v_add_u32_dpp {v(r)}, {v(r)}, {v(r)} row_bcast:31 row_mask:0xc bank_mask:0xf")

def issue_weights(a, vLane_tid, vt, vW, pM0, pM1):
    a(f"s_cmp_ge_u32 {s(sWAVE)}, 8")
    a(f"s_cselect_b32 {s(rW)}, {s(pM1)}, {s(pM0)}")
    a(f"s_cselect_b32 {s(rW+1)}, {s(pM1+1)}, {s(pM0+1)}")
    a(f"s_and_b32 {s(rW+1)}, {s(rW+1)}, 0xffff")
    a(f"s_mov_b32 {s(rW+2)}, {128*256}")
    a(f"s_mov_b32 {s(rW+3)}, 0x20000")
    a(f"v_bfe_u32 {v(vt)}, {v(vLane_tid)}, 2, 7")
    a(f"v_lshlrev_b32 {v(vt)}, 8, {v(vt)}")
    a(f"v_and_b32 {v(vt+1)}, 3, {v(vLane_tid)}")
    a(f"v_lshl_add_u32 {v(vt)}, {v(vt+1)}, 4, {v(vt)}")
    a(f"s_lshl_b32 {s(sT0)}, {s(sSL)}, 6")
    a(f"buffer_load_dwordx4 {v(vW,4)}, {v(vt)}, {s(rW,4)}, {s(sT0)} offen")

def issue_x(a, vLane, vNode, vt, vX):
    a(f"v_and_b32 {v(vNode)}, 31, {v(vLane)}")
    a(f"s_lshl_b32 {s(sT0)}, {s(sWAVE)}, 5")
    a(f"v_add_u32 {v(vNode)}, {s(sT0)}, {v(vNode)}")
    a(f"v_lshlrev_b32 {v(vt)}, 6, {v(vNode)}")
    a(f"v_add_u32 {v(vt)}, {s(sBK)}, {v(vt)}")
    a(f"v_lshrrev_b32 {v(vt+1)}, 5, {v(vLane)}")
    a(f"v_lshlrev_b32 {v(vt+1)}, 4, {v(vt+1)}")
    a(f"v_lshl_add_u32 {v(vt+1)}, {v(vt)}, 8, {v(vt+1)}")
    for t in range(8):
        a(f"buffer_load_dwordx4 {v(vX+4*t,4)}, {v(vt+1)}, {s(rX,4)}, 0 offen offset:{32*t}")

def tr_base(a, vLane, vTR, vt, WL):
    a(f"v_lshrrev_b32 {v(vTR)}, 5, {v(vLane)}")
    a(f"v_lshlrev_b32 {v(vTR)}, 3, {v(vTR)}")
    a(f"v_bfe_u32 {v(vt)}, {v(vLane)}, 2, 2")
    a(f"v_add_u32 {v(vTR)}, {v(vTR)}, {v(vt)}")
    a(f"v_lshlrev_b32 {v(vTR)}, 6, {v(vTR)}")
    a(f"v_bfe_u32 {v(vt)}, {v(vLane)}, 4, 1")
    a(f"v_lshl_add_u32 {v(vTR)}, {v(vt)}, 5, {v(vTR)}")
    a(f"v_and_b32 {v(vt)}, 1, {v(vLane)}")
    a(f"v_lshl_add_u32 {v(vTR)}, {v(vt)}, 4, {v(vTR)}")
    a(f"v_and_b32 {v(vt)}, 2, {v(vLane)}")
    a(f"v_lshl_add_u32 {v(vTR)}, {v(vt)}, 2, {v(vTR)}")
    if WL:
        a(f"v_add_u32 {v(vTR)}, {WL}, {v(vTR)}")

def gemm_mat(a, mat, vTR, vWF, vX, vACC):
    for t in range(8):
        for q in range(2):
            a(f"ds_read_b64_tr_b16 {v(vWF+4*t+2*q,2)}, {v(vTR)} offset:{mat*8192 + t*1024 + q*256}")
    for t in range(8):
        a(f"s_waitcnt lgkmcnt({min(15, 14-2*t)})")
        c = "0" if t == 0 else v(vACC, 16)
        a(f"v_mfma_f32_32x32x16_bf16 {v(vACC,16)}, {v(vWF+4*t,4)}, {v(vX+4*t,4)}, {c}")

def pack_chain(a, vIN, vOUT, vTMP, vBIG):
    G = range(4)
    m = lambda g: vTMP + g
    t = lambda g: vTMP + 4 + g
    sd = "dst_sel:DWORD dst_unused:UNUSED_PAD src0_sel:DWORD"
    for g in G: a(f"v_cvt_pk_bf16_f32 {v(vOUT+2*g)}, {v(vIN+4*g)}, {v(vIN+4*g+1)}")
    for g in G: a(f"v_med3_f32 {v(m(g))}, |{v(vIN+4*g+1)}|, {s(sTINY)}, {v(vBIG)}")
    for g in G: a(f"v_add_u32 {v(m(g))}, 0x8000, {v(m(g))}")
    for g in G: a(f"v_sub_u32_sdwa {v(m(g))}, {v(m(g))}, {v(vOUT+2*g)} {sd} src1_sel:WORD_0")
    for g in G: a(f"v_bfi_b32 {v(vOUT+2*g)}, {s(sM7F0)}, {v(m(g))}, {v(vOUT+2*g)}")
    for g in G: a(f"v_med3_f32 {v(t(g))}, |{v(vIN+4*g+2)}|, {s(sTINY)}, {v(vBIG)}")
    for g in G: a(f"v_add_u32 {v(t(g))}, 0x8000, {v(t(g))}")
    for g in G: a(f"v_sub_u32_sdwa {v(t(g))}, {v(t(g))}, {v(vOUT+2*g)} {sd} src1_sel:WORD_1")
    for g in G: a(f"v_bfi_b32 {v(t(g))}, {s(sM7FF)}, {v(t(g))}, {v(vIN+4*g+2)}")
    for g in G: a(f"v_med3_f32 {v(m(g))}, |{v(vIN+4*g+3)}|, {s(sTINY)}, {v(vBIG)}")
    for g in G: a(f"v_add_u32 {v(m(g))}, 0x8000, {v(m(g))}")
    for g in G: a(f"v_sub_u32_sdwa {v(m(g))}, {v(m(g))}, {v(t(g))} {sd} src1_sel:WORD_1")
    for g in G: a(f"v_perm_b32 {v(t(g))}, {v(vIN+4*g+3)}, {v(t(g))}, {s(sPERM)}")
    for g in G: a(f"v_bfi_b32 {v(vOUT+2*g+1)}, {s(sM7F0)}, {v(m(g))}, {v(t(g))}")

def descriptor(a, name, nv, ns=100):
    a.raw(f".amdhsa_kernel {name}")
    a.raw(f"  .amdhsa_next_free_vgpr {nv}")
    a.raw(f"  .amdhsa_next_free_sgpr {ns}")
    a.raw(f"  .amdhsa_accum_offset {(nv+3)//4*4}")
    a.raw(f"  .amdhsa_group_segment_fixed_size 0")
    a.raw(f"  .amdhsa_kernarg_size 96")
    a.raw(f"  .amdhsa_user_sgpr_count 2")
    a.raw(f"  .amdhsa_user_sgpr_kernarg_segment_ptr 1")
    a.raw(f"  .amdhsa_system_sgpr_workgroup_id_x 1")
    a.raw(f".end_amdhsa_kernel")

K1_WL, K1_STAGE, K1_CNT = 0, 16384, 16384 + CHB
K1_LDS = K1_CNT + 256

def gen_k1(a):
    R = Regs(1, 128)
    vt = R.alloc(4)
    vLane = R.alloc(); vNode = R.alloc(); vTR = R.alloc(); vBIG = R.alloc()
    vDST = R.alloc(2); vSRC = R.alloc(2); vEP = R.alloc(); vRK = R.alloc(2)
    vR0 = R.alloc(2); vR1 = R.alloc(2); vBK = R.alloc(2); vCN = R.alloc(); vEX = R.alloc()
    vW = R.alloc(4, 4); vX = R.alloc(32, 4); vWF = R.alloc(32, 4); vACC = R.alloc(16, 4)
    vO = R.alloc(8, 4); vTM = R.alloc(8)
    prologue(a, "k1_kernel", "K1_END")
    a(f"v_and_b32 {v(vLane)}, 63, v0")
    a(f"v_lshlrev_b32 {v(vt)}, 2, {v(vLane)}")
    a(f"v_mov_b32 {v(vt+1)}, 0")
    a(f"ds_write_b32 {v(vt)}, {v(vt+1)} offset:{K1_CNT}")
    a(f"v_mov_b32 {v(vBIG)}, 0x7f7f7fff")
    a(f"s_mul_i32 {s(sT0)}, s2, {CH}")
    a(f"v_lshl_add_u32 {v(vt)}, v0, 1, {s(sT0)}")
    a(f"s_mov_b32 {s(sT1)}, {E}")
    a(f"v_cmp_gt_u32 vcc, {CH//2}, v0")
    a(f"v_cmp_gt_u32 {s(sVAL,2)}, {s(sT1)}, {v(vt)}")
    a("s_waitcnt lgkmcnt(0)")
    stamp(a, 0, vTM)
    a(f"s_and_b64 {s(sVAL,2)}, {s(sVAL,2)}, vcc")
    srd(a, rA, pDST, E*4); srd(a, rB, pSRC, E*4); srd(a, rC, pE, E*2)
    srd(a, rX, pX, N*256)
    a(f"s_mul_i32 {s(sT0)}, {s(sSL)}, {TS}")
    srd(a, rT, pWS, N*128, s(sT0))
    a(f"s_mul_i32 {s(sT0)}, s2, {CHB}")
    a(f"s_add_u32 {s(sT0)}, {s(sT0)}, {WS_REC}")
    srd(a, rREC, pWS, CHB, s(sT0))
    srd(a, rDESC, pWS, 65536, WS_DESC)
    a(f"v_lshlrev_b32 {v(vt+1)}, 2, {v(vt)}")
    a(f"v_lshlrev_b32 {v(vt+2)}, 1, {v(vt)}")
    a(f"s_mov_b64 exec, {s(sVAL,2)}")
    a("s_cbranch_execz K1_NOEDGE")
    a(f"buffer_load_dwordx2 {v(vDST,2)}, {v(vt+1)}, {s(rA,4)}, 0 offen")
    a(f"buffer_load_dwordx2 {v(vSRC,2)}, {v(vt+1)}, {s(rB,4)}, 0 offen")
    a(f"buffer_load_dword {v(vEP)}, {v(vt+2)}, {s(rC,4)}, 0 offen")
    a("K1_NOEDGE:")
    a("s_mov_b64 exec, -1")
    issue_weights(a, 0, vt, vW, pWB, pWV)
    issue_x(a, vLane, vNode, vt, vX)
    a(f"v_lshlrev_b32 {v(vNode)}, 7, {v(vt)}")
    a(f"v_lshrrev_b32 {v(vt+2)}, 5, {v(vLane)}")
    a(f"v_lshl_add_u32 {v(vNode)}, {v(vt+2)}, 4, {v(vNode)}")
    tr_base(a, vLane, vTR, vt, K1_WL)
    a("s_barrier")
    a(f"s_mov_b64 exec, {s(sVAL,2)}")
    a("s_cbranch_execz K1_NORANK")
    a("s_waitcnt vmcnt(9)")
    a(f"v_mov_b32 {v(vt)}, 1")
    for i in range(2):
        a(f"v_and_b32 {v(vBK+i)}, 63, {v(vDST+i)}")
        a(f"v_lshlrev_b32 {v(vBK+i)}, 2, {v(vBK+i)}")
        a(f"ds_add_rtn_u32 {v(vRK+i)}, {v(vBK+i)}, {v(vt)} offset:{K1_CNT}")
    a(f"v_lshl_or_b32 {v(vR0)}, {v(vEP)}, 16, {v(vSRC)}")
    a(f"v_lshrrev_b32 {v(vR0+1)}, 6, {v(vDST)}")
    a(f"v_and_or_b32 {v(vR1)}, {v(vEP)}, {s(sMHI)}, {v(vSRC+1)}")
    a(f"v_lshrrev_b32 {v(vR1+1)}, 6, {v(vDST+1)}")
    a("K1_NORANK:")
    a("s_mov_b64 exec, -1")
    a("s_waitcnt vmcnt(8)")
    a(f"v_lshlrev_b32 {v(vt)}, 4, v0")
    a(f"ds_write_b128 {v(vt)}, {v(vW,4)} offset:{K1_WL}")
    a("s_waitcnt lgkmcnt(0)")
    a("s_barrier")
    a(f"v_lshlrev_b32 {v(vt)}, 2, {v(vLane)}")
    a(f"ds_read_b32 {v(vCN)}, {v(vt)} offset:{K1_CNT}")
    a("s_waitcnt lgkmcnt(0)")
    a(f"v_mov_b32 {v(vEX)}, {v(vCN)}")
    scan64(a, vEX)
    a(f"v_sub_u32 {v(vEX)}, {v(vEX)}, {v(vCN)}")
    a(f"ds_bpermute_b32 {v(vt+2)}, {v(vBK)}, {v(vEX)}")
    a(f"ds_bpermute_b32 {v(vt+3)}, {v(vBK+1)}, {v(vEX)}")
    a(f"s_cmp_lg_u32 {s(sWAVE)}, 0")
    a("s_cbranch_scc1 K1_NODESC")
    a(f"v_lshl_or_b32 {v(vCN)}, {v(vCN)}, 16, {v(vEX)}")
    a(f"s_lshl_b32 {s(sT0)}, s2, 8")
    a(f"buffer_store_dword {v(vCN)}, {v(vt)}, {s(rDESC,4)}, {s(sT0)} offen")
    a("K1_NODESC:")
    a(f"s_mov_b64 exec, {s(sVAL,2)}")
    a("s_waitcnt lgkmcnt(0)")
    for i in range(2):
        a(f"v_add_lshl_u32 {v(vt+2+i)}, {v(vt+2+i)}, {v(vRK+i)}, 3")
    a(f"ds_write_b64 {v(vt+2)}, {v(vR0,2)} offset:{K1_STAGE}")
    a(f"ds_write_b64 {v(vt+3)}, {v(vR1,2)} offset:{K1_STAGE}")
    a("s_mov_b64 exec, -1")
    a("s_waitcnt lgkmcnt(0)")
    a("s_barrier")
    a(f"v_cmp_gt_u32 vcc, {CH//2}, v0")
    a(f"v_lshlrev_b32 {v(vt)}, 4, v0")
    a("s_mov_b64 exec, vcc")
    a("s_cbranch_execz K1_NOREC")
    a(f"ds_read_b128 {v(vW,4)}, {v(vt)} offset:{K1_STAGE}")
    a("s_waitcnt lgkmcnt(0)")
    a(f"buffer_store_dwordx4 {v(vW,4)}, {v(vt)}, {s(rREC,4)}, 0 offen")
    a("K1_NOREC:")
    a("s_mov_b64 exec, -1")
    stamp(a, 1, vTM)
    a(f"s_cmp_ge_u32 {s(sWAVE)}, 13")
    a("s_cbranch_scc1 K1_END")
    a("s_waitcnt vmcnt(2)" if not STAMPS else "s_waitcnt vmcnt(0)")
    stamp(a, 2, vTM)
    for mat in range(2):
        gemm_mat(a, mat, vTR, vWF, vX, vACC)
        a("s_nop 15")
        if mat == 0:
            for r in range(16):
                a(f"v_mul_f32 {v(vACC+r)}, {s(sNL2E)}, {v(vACC+r)}")
        pack_chain(a, vACC, vO, vTM, vBIG)
        a(f"buffer_store_dwordx4 {v(vO,4)}, {v(vNode)}, {s(rT,4)}, 0 offen offset:{mat*64}")
        a(f"buffer_store_dwordx4 {v(vO+4,4)}, {v(vNode)}, {s(rT,4)}, 0 offen offset:{mat*64+32}")
    stamp(a, 3, vTM)
    a("K1_END:")
    a("s_endpgm")
    return R.hi

K2_LIST = 0
K2_AU = (NLOC * STRIDE * 4 + 15) // 16 * 16
K2_WL = K2_AU + 416 * AUS
K2_CNT = K2_WL + 16384
K2_BINS = K2_CNT + 416 * 4
K2_PERM = K2_BINS + 256
K2_Q = K2_PERM + NLOC * 4
K2_LDS = K2_Q + 16

def pk(op, d, a0, b0, c0=None, sel=None):
    ops = f"{v(d,2)}, {a0}, {b0}" + (f", {c0}" if c0 else "")
    return f"v_pk_{op}_f32 {ops}" + (f" {sel}" if sel else "")

def gen_k2(a):
    R = Regs(1, 128)
    vt = R.alloc(4)
    vLane = R.alloc(); vOne = R.alloc(); vJ16 = R.alloc()
    vWC = R.alloc(8)
    m0 = R.mark()
    vNode = R.alloc(); vTR = R.alloc(); vI = R.alloc(); vRB = R.alloc(); vML = R.alloc()
    vDS = R.alloc(8); vRC = R.alloc(16)
    vX = R.alloc(32, 4); vWF = R.alloc(32, 4); vACC = R.alloc(16, 4)
    vW = vWF
    prologue(a, "k2_kernel", "K2_END")
    a(f"v_and_b32 {v(vLane)}, 63, v0")
    a(f"v_mov_b32 {v(vOne)}, 1")
    nz = (K2_LDS - K2_CNT) // 4
    assert nz <= 1024
    a(f"v_lshlrev_b32 {v(vt)}, 2, v0")
    a(f"v_mov_b32 {v(vt+1)}, 0")
    a(f"v_cmp_gt_u32 vcc, {nz}, v0")
    a("s_mov_b64 exec, vcc")
    a(f"ds_write_b32 {v(vt)}, {v(vt+1)} offset:{K2_CNT}" if K2_CNT < 65536 else
      f"v_add_u32 {v(vt)}, {K2_CNT}, {v(vt)}\nds_write_b32 {v(vt)}, {v(vt+1)}")
    a("s_mov_b64 exec, -1")
    a("s_waitcnt lgkmcnt(0)")
    stamp(a, 4, vACC)
    srd(a, rX, pX, N*256)
    a(f"s_mul_i32 {s(sT0)}, {s(sSL)}, {TS}")
    srd(a, rT, pWS, N*128, s(sT0))
    srd(a, rREC, pWS, NWG*CHB, WS_REC)
    srd(a, rDESC, pWS, 65536, WS_DESC)
    srd(a, rA, pOUT, N*256)
    srd(a, rB, pWC, 256)
    a(f"v_lshrrev_b32 {v(vt)}, 5, {v(vLane)}")
    a(f"s_lshl_b32 {s(sT0)}, {s(sWAVE)}, 4")
    a(f"v_add_u32 {v(vt)}, {s(sT0)}, {v(vt)}")
    a(f"v_lshlrev_b32 {v(vt+1)}, 8, {v(vt)}")
    a(f"s_lshl_b32 {s(sT0)}, {s(sBK)}, 2")
    for it in range(8):
        a(f"buffer_load_dword {v(vDS+it)}, {v(vt+1)}, {s(rDESC,4)}, {s(sT0)} offen offset:{it*512}")
    a(f"v_and_b32 {v(vI)}, 31, {v(vLane)}")
    a(f"s_mov_b32 {s(sT0)}, {CHB}")
    a(f"v_mul_lo_u32 {v(vRB)}, {v(vt)}, {s(sT0)}")
    a(f"v_lshl_add_u32 {v(vRB)}, {v(vI)}, 3, {v(vRB)}")
    issue_weights(a, 0, vt, vW, pWA, pWU)
    a(f"v_and_b32 {v(vJ16)}, 3, {v(vLane)}")
    a(f"v_lshlrev_b32 {v(vJ16)}, 4, {v(vJ16)}")
    a(f"s_lshl_b32 {s(sT0)}, {s(sSL)}, 6")
    a(f"buffer_load_dwordx4 {v(vWC,4)}, {v(vJ16)}, {s(rB,4)}, {s(sT0)} offen")
    issue_x(a, vLane, vNode, vt, vX)
    a(f"v_mul_u32_u24 {v(vNode)}, {AUS}, {v(vNode)}")
    a(f"v_lshrrev_b32 {v(vt+2)}, 5, {v(vLane)}")
    a(f"v_lshl_add_u32 {v(vNode)}, {v(vt+2)}, 4, {v(vNode)}")
    a(f"v_add_u32 {v(vNode)}, {K2_AU}, {v(vNode)}")
    tr_base(a, vLane, vTR, vt, K2_WL)
    a(f"s_mov_b32 {s(sBASE)}, 0")
    a(f"s_mov_b64 {s(sOVF,2)}, 0")
    a("s_waitcnt vmcnt(10)")
    a(f"v_mov_b32 {v(vML)}, 0")
    for it in range(8):
        a(f"v_lshrrev_b32 {v(vt)}, 16, {v(vDS+it)}")
        a(f"v_max_u32 {v(vML)}, {v(vML)}, {v(vt)}")
    a("K2_SWEEP:")
    a(f"v_mov_b32 {v(vt+1)}, 8")
    for it in range(8):
        a(f"v_mad_u32_u16 {v(vt)}, {v(vDS+it)}, {v(vt+1)}, {v(vRB)}")
        a(f"s_mov_b32 {s(sT0)}, {it*2*CHB}")
        a(f"buffer_load_dwordx2 {v(vRC+2*it,2)}, {v(vt)}, {s(rREC,4)}, {s(sT0)} offen")
        a(f"v_cmp_lt_u32_sdwa {s(sMSK+2*it,2)}, {v(vI)}, {v(vDS+it)} src0_sel:DWORD src1_sel:WORD_1")
    a(f"s_cmp_lg_u32 {s(sBASE)}, 0")
    a("s_cbranch_scc1 K2_PROC")
    a("s_waitcnt vmcnt(17)")
    a(f"v_lshlrev_b32 {v(vt)}, 4, v0")
    a(f"v_add_u32 {v(vt)}, {K2_WL}, {v(vt)}")
    a(f"ds_write_b128 {v(vt)}, {v(vW,4)}")
    a("s_waitcnt vmcnt(16)")
    for d in range(4):
        a(f"v_and_b32 {v(vWC+4+d)}, {s(sMHI)}, {v(vWC+d)}")
    for d in range(4):
        a(f"v_lshlrev_b32 {v(vWC+d)}, 16, {v(vWC+d)}")
    for d in range(8):
        a(f"v_mul_f32 {v(vWC+d)}, {s(sNL2E)}, {v(vWC+d)}")
    a("s_waitcnt lgkmcnt(0)")
    a("s_barrier")
    stamp(a, 5, vACC)
    a(f"s_cmp_ge_u32 {s(sWAVE)}, 13")
    a("s_cbranch_scc1 K2_PROC")
    a("s_waitcnt vmcnt(8)" if not STAMPS else "s_waitcnt vmcnt(0)")
    for mat in range(2):
        gemm_mat(a, mat, vTR, vWF, vX, vACC)
        a("s_nop 15")
        if mat == 0:
            for r in range(16):
                a(f"v_mul_f32 {v(vACC+r)}, {s(sNL2E)}, {v(vACC+r)}")
        for d in range(8):
            a(f"v_cvt_pk_bf16_f32 {v(vWF+d)}, {v(vACC+2*d)}, {v(vACC+2*d+1)}")
        a(f"ds_write_b128 {v(vNode)}, {v(vWF,4)} offset:{mat*64}")
        a(f"ds_write_b128 {v(vNode)}, {v(vWF+4,4)} offset:{mat*64+32}")
        a("s_waitcnt lgkmcnt(0)")
    stamp(a, 6, vACC)
    a("K2_PROC:")
    vRK = vX
    vAD = vX + 8
    a("s_waitcnt vmcnt(0)")
    for it in range(8):
        a(f"v_lshlrev_b32 {v(vAD+it)}, 2, {v(vRC+2*it+1)}")
        if K2_CNT >= 65536:
            a(f"v_add_u32 {v(vAD+it)}, {K2_CNT}, {v(vAD+it)}")
    for it in range(8):
        a(f"s_mov_b64 exec, {s(sMSK+2*it,2)}")
        a(f"ds_add_rtn_u32 {v(vRK+it)}, {v(vAD+it)}, {v(vOne)}" + (f" offset:{K2_CNT}" if K2_CNT < 65536 else ""))
    a("s_mov_b64 exec, -1")
    a(f"v_mov_b32 {v(vt)}, {STRIDE}")
    for it in range(8):
        a(f"s_waitcnt lgkmcnt({7-it})")
        a(f"v_mad_u32_u24 {v(vAD+it)}, {v(vRC+2*it+1)}, {v(vt)}, {v(vRK+it)}")
        a(f"v_cmp_gt_u32 vcc, {STRIDE}, {v(vRK+it)}")
        a(f"v_lshlrev_b32 {v(vAD+it)}, 2, {v(vAD+it)}")
        a(f"s_andn2_b64 {s(sT0,2)}, {s(sMSK+2*it,2)}, vcc")
        a(f"s_and_b64 {s(sMSK+2*it,2)}, {s(sMSK+2*it,2)}, vcc")
        a(f"s_or_b64 {s(sOVF,2)}, {s(sOVF,2)}, {s(sT0,2)}")
    for it in range(8):
        a(f"s_mov_b64 exec, {s(sMSK+2*it,2)}")
        a(f"ds_write_b32 {v(vAD+it)}, {v(vRC+2*it)} offset:{K2_LIST}")
    a("s_mov_b64 exec, -1")
    a(f"s_add_u32 {s(sBASE)}, {s(sBASE)}, 32")
    a(f"v_add_u32 {v(vI)}, 32, {v(vI)}")
    a(f"v_add_u32 {v(vRB)}, 256, {v(vRB)}")
    a(f"v_cmp_lt_u32 vcc, {s(sBASE)}, {v(vML)}")
    a("s_cbranch_vccnz K2_SWEEP")
    a("s_waitcnt lgkmcnt(0)")
    a("s_barrier")
    stamp(a, 7, vACC)
    vDG = vX; vBN = vX + 1; vR2 = vX + 2; vBC = vX + 3; vBE = vX + 4
    a(f"s_movk_i32 {s(sT0)}, {NLOC}")
    a(f"v_cmp_gt_u32 {s(sVAL,2)}, {s(sT0)}, v0")
    a(f"v_lshlrev_b32 {v(vt)}, 2, v0")
    a(f"v_add_u32 {v(vt)}, {K2_CNT}, {v(vt)}")
    a(f"s_mov_b64 exec, {s(sVAL,2)}")
    a(f"ds_read_b32 {v(vDG)}, {v(vt)}")
    a("s_waitcnt lgkmcnt(0)")
    a(f"v_min_u32 {v(vDG)}, {STRIDE}, {v(vDG)}")
    a(f"v_sub_u32 {v(vBN)}, 63, {v(vDG)}")
    a(f"v_lshlrev_b32 {v(vBN)}, 2, {v(vBN)}")
    a(f"v_add_u32 {v(vt)}, {K2_BINS}, {v(vBN)}")
    a(f"ds_add_rtn_u32 {v(vR2)}, {v(vt)}, {v(vOne)}")
    a("s_mov_b64 exec, -1")
    a("s_waitcnt lgkmcnt(0)")
    a("s_barrier")
    a(f"s_cmp_ge_u32 {s(sWAVE)}, {(NLOC+63)//64}")
    a("s_cbranch_scc1 K2_NOPERM")
    a(f"v_lshlrev_b32 {v(vt)}, 2, {v(vLane)}")
    a(f"v_add_u32 {v(vt)}, {K2_BINS}, {v(vt)}")
    a(f"ds_read_b32 {v(vBC)}, {v(vt)}")
    a("s_waitcnt lgkmcnt(0)")
    a(f"v_mov_b32 {v(vBE)}, {v(vBC)}")
    scan64(a, vBE)
    a(f"v_sub_u32 {v(vBE)}, {v(vBE)}, {v(vBC)}")
    a(f"ds_bpermute_b32 {v(vt)}, {v(vBN)}, {v(vBE)}")
    a(f"v_lshl_or_b32 {v(vDG)}, {v(vDG)}, 16, v0")
    a("s_waitcnt lgkmcnt(0)")
    a(f"v_add_lshl_u32 {v(vt)}, {v(vt)}, {v(vR2)}, 2")
    a(f"v_add_u32 {v(vt)}, {K2_PERM}, {v(vt)}")
    a(f"s_mov_b64 exec, {s(sVAL,2)}")
    a(f"ds_write_b32 {v(vt)}, {v(vDG)}")
    a("s_mov_b64 exec, -1")
    a("s_waitcnt lgkmcnt(0)")
    a("K2_NOPERM:")
    a("s_barrier")
    stamp(a, 8, vACC)
    R.release(m0)
    vDEN = R.alloc(8); vNUM = R.alloc(8); vEA = R.alloc(8)
    vBUF = [R.alloc(16, 4), R.alloc(16, 4)]
    vLa = R.alloc(4); vLb = R.alloc(4); vUa = R.alloc(4); vUb = R.alloc(4); vP = R.alloc(8)
    vE = [R.alloc(2), R.alloc(2)]
    vREC = R.alloc(2); vADR = R.alloc(2)
    vU = R.alloc(4, 4); vXS = R.alloc(4, 4)
    vINFO = R.alloc(); vDEG = R.alloc(); vLA = R.alloc(); vOFF = R.alloc(); v128 = R.alloc()
    vPB = R.alloc(); vQA = R.alloc()
    a(f"v_mov_b32 {v(v128)}, 128")
    a(f"v_lshrrev_b32 {v(vPB)}, 2, {v(vLane)}")
    a(f"v_lshlrev_b32 {v(vPB)}, 2, {v(vPB)}")
    a(f"v_add_u32 {v(vPB)}, {K2_PERM}, {v(vPB)}")
    a(f"v_mov_b32 {v(vQA)}, {K2_Q}")

    def G(nb):
        B = vBUF[nb]
        a(f"v_mad_u32_u16 {v(vADR)}, {v(vREC)}, {v(v128)}, {v(vJ16)}")
        a(f"v_mad_u32_u16 {v(vADR+1)}, {v(vREC+1)}, {v(v128)}, {v(vJ16)}")
        a(f"v_and_b32 {v(vE[nb])}, {s(sMHI)}, {v(vREC)}")
        a(f"v_and_b32 {v(vE[nb]+1)}, {s(sMHI)}, {v(vREC+1)}")
        a(f"buffer_load_dwordx4 {v(B,4)}, {v(vADR)}, {s(rT,4)}, 0 offen")
        a(f"buffer_load_dwordx4 {v(B+4,4)}, {v(vADR)}, {s(rT,4)}, 0 offen offset:64")
        a(f"buffer_load_dwordx4 {v(B+8,4)}, {v(vADR+1)}, {s(rT,4)}, 0 offen")
        a(f"buffer_load_dwordx4 {v(B+12,4)}, {v(vADR+1)}, {s(rT,4)}, 0 offen offset:64")
        a(f"v_add_u32 {v(vLA)}, 8, {v(vLA)}")
        a(f"ds_read2_b32 {v(vREC,2)}, {v(vLA)} offset0:0 offset1:1")

    def front(B, L, e, hi):
        sel = "op_sel:[1,0,0] op_sel_hi:[1,1,1]" if hi else "op_sel_hi:[0,1,1]"
        prs = [L, L+2, B, B+2]
        a(f"v_lshlrev_b64 {v(L,2)}, 16, {v(B,2)}")
        a(f"v_lshlrev_b64 {v(L+2,2)}, 16, {v(B+2,2)}")
        for i in (2, 3, 0, 1):
            a(pk("fma", prs[i], v(e,2), v(vWC+2*i,2), v(prs[i],2), sel))
        for i in (2, 3, 0, 1):
            a(f"v_exp_f32 {v(prs[i])}, {v(prs[i])}")
            a(f"v_exp_f32 {v(prs[i]+1)}, {v(prs[i]+1)}")
        return prs
    def front2(prs):
        for i in (2, 3, 0, 1):
            a(pk("fma", prs[i], v(vEA+2*i,2), v(prs[i],2), "1.0", "op_sel_hi:[1,1,0]"))

    def Cpair(nb):
        B = vBUF[nb]
        Ba, Va, Bb, Vb = B, B+4, B+8, B+12
        pa = front(Ba, vLa, vE[nb], False)
        pb = front(Bb, vLb, vE[nb], True)
        front2(pa)
        front2(pb)
        for i in range(4):
            a(pk("mul", vP+2*i, v(pa[i],2), v(pb[i],2)))
        a(f"v_lshlrev_b64 {v(vUa,2)}, 16, {v(Va,2)}")
        a(f"v_lshlrev_b64 {v(vUa+2,2)}, 16, {v(Va+2,2)}")
        a(f"v_lshlrev_b64 {v(vUb,2)}, 16, {v(Vb,2)}")
        a(f"v_lshlrev_b64 {v(vUb+2,2)}, 16, {v(Vb+2,2)}")
        for i in range(8):
            a(f"v_rcp_f32 {v(vP+i)}, {v(vP+i)}")
        qa = [vUa, vUa+2, Va, Va+2]; qb = [vUb, vUb+2, Vb, Vb+2]
        for i in range(4):
            a(pk("mul", qa[i], v(qa[i],2), v(pb[i],2)))
        for i in range(4):
            a(pk("fma", qa[i], v(qb[i],2), v(pa[i],2), v(qa[i],2)))
        for i in range(4):
            a(pk("add", pa[i], v(pa[i],2), v(pb[i],2)))
        for i in range(4):
            a(pk("fma", vNUM+2*i, v(qa[i],2), v(vP+2*i,2), v(vNUM+2*i,2)))
        for i in range(4):
            a(pk("fma", vDEN+2*i, v(pa[i],2), v(vP+2*i,2), v(vDEN+2*i,2)))

    def Csingle(nb, hi):
        B = vBUF[nb] + (8 if hi else 0)
        V = B + 4
        p = front(B, vLa, vE[nb], hi)
        a(f"v_lshlrev_b64 {v(vUa,2)}, 16, {v(V,2)}")
        front2(p)
        a(f"v_lshlrev_b64 {v(vUa+2,2)}, 16, {v(V+2,2)}")
        for i in (2, 3, 0, 1):
            a(f"v_rcp_f32 {v(p[i])}, {v(p[i])}")
            a(f"v_rcp_f32 {v(p[i]+1)}, {v(p[i]+1)}")
        q = [vUa, vUa+2, V, V+2]
        for i in (2, 3, 0, 1):
            a(pk("add", vDEN+2*i, v(vDEN+2*i,2), v(p[i],2)))
        for i in (2, 3, 0, 1):
            a(pk("fma", vNUM+2*i, v(q[i],2), v(p[i],2), v(vNUM+2*i,2)))

    a("K2_GROUP:")
    a("s_mov_b64 exec, 1")
    a(f"ds_add_rtn_u32 {v(vINFO)}, {v(vQA)}, {v(vOne)}")
    a("s_mov_b64 exec, -1")
    a("s_waitcnt lgkmcnt(0)")
    a(f"v_readfirstlane_b32 {s(sT0)}, {v(vINFO)}")
    a(f"s_cmp_ge_u32 {s(sT0)}, {NGRP}")
    a("s_cbranch_scc1 K2_DONE")
    a(f"s_lshl_b32 {s(sT0)}, {s(sT0)}, 6")
    a(f"v_add_u32 {v(vt)}, {s(sT0)}, {v(vPB)}")
    a(f"ds_read_b32 {v(vINFO)}, {v(vt)}")
    a("s_waitcnt lgkmcnt(0)")
    a(f"v_lshrrev_b32 {v(vDEG)}, 16, {v(vINFO)}")
    a(f"v_and_b32 {v(vINFO)}, 0xffff, {v(vINFO)}")
    a(f"v_mul_u32_u24 {v(vLA)}, {STRIDE*4}, {v(vINFO)}")
    if K2_LIST: a(f"v_add_u32 {v(vLA)}, {K2_LIST}, {v(vLA)}")
    a(f"ds_read2_b32 {v(vREC,2)}, {v(vLA)} offset0:0 offset1:1")
    a(f"v_mul_u32_u24 {v(vt)}, {AUS}, {v(vINFO)}")
    a(f"s_mov_b32 {s(sT1)}, {K2_AU}")
    a(f"v_add3_u32 {v(vt)}, {v(vt)}, {v(vJ16)}, {s(sT1)}")
    a(f"ds_read_b128 {v(vEA,4)}, {v(vt)}")
    a(f"ds_read_b128 {v(vU,4)}, {v(vt)} offset:64")
    a(f"v_readlane_b32 {s(sMAX)}, {v(vDEG)}, 0")
    a(f"v_readlane_b32 {s(sMIN)}, {v(vDEG)}, 63")
    a(f"v_lshlrev_b32 {v(vOFF)}, 6, {v(vINFO)}")
    a(f"v_add_u32 {v(vOFF)}, {s(sBK)}, {v(vOFF)}")
    a(f"v_lshl_add_u32 {v(vOFF)}, {v(vOFF)}, 8, {v(vJ16)}")
    a(f"s_lshl_b32 {s(sT2)}, {s(sSL)}, 6")
    a(f"buffer_load_dwordx4 {v(vXS,4)}, {v(vOFF)}, {s(rX,4)}, {s(sT2)} offen")
    a("s_waitcnt lgkmcnt(2)")
    G(0)
    a("s_waitcnt lgkmcnt(2)")
    for d in range(4):
        a(f"v_and_b32 {v(vEA+4+d)}, {s(sMHI)}, {v(vEA+d)}")
    for d in range(4):
        a(f"v_lshlrev_b32 {v(vEA+d)}, 16, {v(vEA+d)}")
    for d in (4, 5, 6, 7, 0, 1, 2, 3):
        a(f"v_exp_f32 {v(vEA+d)}, {v(vEA+d)}")
    for d in range(8):
        a(f"v_mov_b32 {v(vDEN+d)}, {hx(fbits(1e-6))}")
        a(f"v_mov_b32 {v(vNUM+d)}, 0")
    a(f"s_mov_b32 {s(sK)}, 0")
    a(f"s_cmp_eq_u32 {s(sMAX)}, 0")
    a("s_cbranch_scc1 K2_EPI")
    a("K2_LOOP:")
    for cur in range(2):
        a("s_waitcnt lgkmcnt(0)")
        G(1 - cur)
        a(f"s_add_u32 {s(sT0)}, {s(sK)}, 2")
        a(f"s_cmp_le_u32 {s(sT0)}, {s(sMIN)}")
        a("s_waitcnt vmcnt(4)")
        a(f"s_cbranch_scc0 K2_TAIL{cur}")
        Cpair(cur)
        a(f"K2_NEXT{cur}:")
        a(f"s_add_u32 {s(sK)}, {s(sK)}, 2")
        a(f"s_cmp_ge_u32 {s(sK)}, {s(sMAX)}")
        if cur == 0:
            a("s_cbranch_scc1 K2_EPI")
        else:
            a("s_cbranch_scc0 K2_LOOP")
    a("K2_EPI:")
    a("s_mov_b64 exec, -1")
    a("s_waitcnt vmcnt(0) lgkmcnt(0)")
    for d in range(8):
        a(f"v_rcp_f32 {v(vDEN+d)}, {v(vDEN+d)}")
    Uu = vP
    Xu = vBUF[0]
    for d in range(4):
        a(f"v_lshlrev_b32 {v(Uu+d)}, 16, {v(vU+d)}")
        a(f"v_and_b32 {v(Uu+4+d)}, {s(sMHI)}, {v(vU+d)}")
        a(f"v_lshlrev_b32 {v(Xu+d)}, 16, {v(vXS+d)}")
        a(f"v_and_b32 {v(Xu+4+d)}, {s(sMHI)}, {v(vXS+d)}")
    for i in range(4):
        a(pk("fma", Uu+2*i, v(vNUM+2*i,2), v(vDEN+2*i,2), v(Uu+2*i,2)))
    for d in range(8):
        a(f"v_max_f32 {v(Uu+d)}, 0, {v(Uu+d)}")
    for i in range(4):
        a(pk("add", Uu+2*i, v(Uu+2*i,2), v(Xu+2*i,2)))
    for d in range(4):
        a(f"v_cvt_pk_bf16_f32 {v(vXS+d)}, {v(Uu+d)}, {v(Uu+4+d)}")
    a(f"buffer_store_dwordx4 {v(vXS,4)}, {v(vOFF)}, {s(rA,4)}, {s(sT2)} offen")
    a("s_branch K2_GROUP")
    for cur in range(2):
        a(f"K2_TAIL{cur}:")
        a(f"v_cmpx_lt_u32 vcc, {s(sK)}, {v(vDEG)}")
        Csingle(cur, False)
        a(f"s_add_u32 {s(sT0)}, {s(sK)}, 1")
        a(f"s_cmp_ge_u32 {s(sT0)}, {s(sMAX)}")
        a("s_cbranch_scc1 K2_EPI")
        a(f"v_cmpx_lt_u32 vcc, {s(sT0)}, {v(vDEG)}")
        Csingle(cur, True)
        a(f"s_branch K2_NEXT{cur}")
    a("K2_DONE:")
    stamp(a, 9, vP)
    a("K2_END:")
    a("s_endpgm")
    return R.hi

def main():
    a = Asm()
    hdr = open("standalone__edge_featured_mpnn_gatedgcn__graph.s.ref").read().split("\n")
    for l in hdr:
        if l.startswith("; Override") : break
        a.raw(l)
    a.raw(f"; @launch kernel=k1_kernel grid=({NWG},1,1) block=(1024,1,1) lds={K1_LDS}")
    a.raw(f"; @launch kernel=k2_kernel grid=({NWG},1,1) block=(1024,1,1) lds={K2_LDS}")
    a.raw('.amdgcn_target "amdgcn-amd-amdhsa--gfx950"')
    a.raw(".text")
    n1 = gen_k1(a)
    n2 = gen_k2(a)
    a.raw('.section .rodata,"a"')
    a.raw(".p2align 6")
    descriptor(a, "k1_kernel", n1)
    a.raw(".p2align 6")
    descriptor(a, "k2_kernel", n2)
    out = [x for x in sys.argv[1:] if not x.startswith("--")]
    open(out[0] if out else "out.s", "w").write(a.text())
    print("vgprs", n1, n2, "lds", K1_LDS, K2_LDS, file=sys.stderr)

main()
```

```python
import sys, math
from asmlib import *

N, E, D = 25000, 400000, 128
NWG = 256
CH = 1568
CHB = CH * 8
TS = 25024 * 128
WS_T, WS_REC, WS_DESC, WS_STAMP = 0, 0x00D00000, 0x01100000, 0x01200000
LOG2E = 1.4426950408889634
STRIDE = 45
NLOC = 400
NGRP = NLOC // 16
AUS = 144

STAMPS = "--stamps" in sys.argv or "--dstamps" in sys.argv
DSTAMPS = "--dstamps" in sys.argv
DWG = 100

sWG, sWAVE, sSL, sBK = 2, 3, 4, 5
pX, pE, pSRC, pDST, pWA, pWB, pWC, pWU, pWV, pOUT, pDBG, pWS = 16, 18, 20, 22, 24, 26, 28, 30, 32, 34, 36, 38
rX, rW, rT, rREC, rDESC, rA, rB, rC = 40, 44, 48, 52, 56, 60, 64, 68
sMHI, sM7F0, sM7FF, sTINY, sPERM, sNL2E = 72, 73, 74, 75, 76, 77
sMSK = 80
sT0, sT1, sT2, sT3 = 6, 7, 8, 9
sVAL = 10
sOVF = 12
sK, sMAX, sMIN, sBASE = 14, 15, 78, 79
sST = 96
rST = 98

def srd(a, r, p, nbytes, add=None):
    if add is None:
        a(f"s_mov_b32 {s(r)}, {s(p)}")
        a(f"s_and_b32 {s(r+1)}, {s(p+1)}, 0xffff")
    else:
        a(f"s_add_u32 {s(r)}, {s(p)}, {add}")
        a(f"s_addc_u32 {s(r+1)}, {s(p+1)}, 0")
        a(f"s_and_b32 {s(r+1)}, {s(r+1)}, 0xffff")
    a(f"s_mov_b32 {s(r+2)}, {hx(nbytes)}")
    a(f"s_mov_b32 {s(r+3)}, 0x20000")

def stamp(a, idx, vt):
    if not STAMPS:
        return
    l = a.uid("ST")
    if DSTAMPS:
        a(f"s_cmp_lg_u32 {s(sWAVE)}, 0")
        a(f"s_cbranch_scc1 {l}")
        a(f"s_cmp_lg_u32 {s(sWG)}, {DWG}")
        a(f"s_cbranch_scc1 {l}")
        a(f"s_memrealtime {s(sST,2)}")
        a(f"s_waitcnt lgkmcnt(0)")
        a(f"v_mov_b32 {v(vt)}, {s(sST)}")
        a(f"v_mov_b32 {v(vt+2)}, 0")
        a(f"s_mov_b64 {s(rST,2)}, exec")
        a(f"s_mov_b64 exec, 1")
        a(f"global_store_dword {v(vt+2)}, {v(vt)}, {s(pDBG,2)} offset:{idx*4 + (512 if idx<4 else 0)}")
        if idx in (8, 9):
            a(f"s_memtime {s(sST,2)}")
            a(f"s_waitcnt lgkmcnt(0)")
            a(f"v_mov_b32 {v(vt)}, {s(sST)}")
            a(f"global_store_dword {v(vt+2)}, {v(vt)}, {s(pDBG,2)} offset:{(idx+4)*4}")
        a(f"s_mov_b64 exec, {s(rST,2)}")
        a(f"{l}:")
        return
    a(f"s_cmp_lg_u32 {s(sWAVE)}, 0")
    a(f"s_cbranch_scc1 {l}")
    a(f"s_memrealtime {s(sST,2)}")
    a(f"s_waitcnt lgkmcnt(0)")
    a(f"v_mov_b32 {v(vt)}, {s(sST)}")
    a(f"v_mov_b32 {v(vt+1)}, {s(sST+1)}")
    a(f"s_lshl_b32 {s(sST)}, {s(sWG)}, 8")
    a(f"s_add_u32 {s(sST)}, {s(sST)}, {WS_STAMP + idx*8}")
    a(f"v_mov_b32 {v(vt+2)}, {s(sST)}")
    a(f"s_mov_b64 {s(rST,2)}, exec")
    a(f"s_mov_b64 exec, 1")
    a(f"global_store_dwordx2 {v(vt+2)}, {v(vt,2)}, {s(pWS,2)}")
    a(f"s_mov_b64 exec, {s(rST,2)}")
    a(f"{l}:")

def prologue(a, name, endl):
    a.raw(f".globl {name}")
    a.raw(".p2align 8")
    a.raw(f".type {name},@function")
    a.raw(f"{name}:")
    a(f"s_cmp_ge_u32 s2, {NWG}")
    a(f"s_cbranch_scc1 {endl}")
    a("s_load_dwordx16 s[16:31], s[0:1], 0")
    a("s_load_dwordx8 s[32:39], s[0:1], 64")
    a(f"v_lshrrev_b32 v1, 6, v0")
    a(f"s_and_b32 {s(sSL)}, s2, 3")
    a(f"v_readfirstlane_b32 {s(sWAVE)}, v1")
    a(f"s_lshr_b32 {s(sBK)}, s2, 2")
    a(f"s_mov_b32 {s(sMHI)}, 0xffff0000")
    a(f"s_mov_b32 {s(sM7F0)}, 0x7fff0000")
    a(f"s_mov_b32 {s(sM7FF)}, 0x7fffffff")
    a(f"s_mov_b32 {s(sTINY)}, 0x00800000")
    a(f"s_mov_b32 {s(sPERM)}, 0x07060302")
    a(f"s_mov_b32 {s(sNL2E)}, {hx(fbits(-LOG2E))}")

def scan64(a, r):
    for sh in (1, 2, 4, 8):
        a("s_nop 1")
        a(f"v_add_u32_dpp {v(r)}, {v(r)}, {v(r)} row_shr:{sh} row_mask:0xf bank_mask:0xf")
    a("s_nop 1")
    a(f"v_add_u32_dpp {v(r)}, {v(r)}, {v(r)} row_bcast:15 row_mask:0xa bank_mask:0xf")
    a("s_nop 1")
    a(f"v_add_u32_dpp {v(r)}, {v(r)}, {v(r)} row_bcast:31 row_mask:0xc bank_mask:0xf")

def issue_weights(a, vLane_tid, vt, vW, pM0, pM1):
    a(f"s_cmp_ge_u32 {s(sWAVE)}, 8")
    a(f"s_cselect_b32 {s(rW)}, {s(pM1)}, {s(pM0)}")
    a(f"s_cselect_b32 {s(rW+1)}, {s(pM1+1)}, {s(pM0+1)}")
    a(f"s_and_b32 {s(rW+1)}, {s(rW+1)}, 0xffff")
    a(f"s_mov_b32 {s(rW+2)}, {128*256}")
    a(f"s_mov_b32 {s(rW+3)}, 0x20000")
    a(f"v_bfe_u32 {v(vt)}, {v(vLane_tid)}, 2, 7")
    a(f"v_lshlrev_b32 {v(vt)}, 8, {v(vt)}")
    a(f"v_and_b32 {v(vt+1)}, 3, {v(vLane_tid)}")
    a(f"v_lshl_add_u32 {v(vt)}, {v(vt+1)}, 4, {v(vt)}")
    a(f"s_lshl_b32 {s(sT0)}, {s(sSL)}, 6")
    a(f"buffer_load_dwordx4 {v(vW,4)}, {v(vt)}, {s(rW,4)}, {s(sT0)} offen")

def issue_x(a, vLane, vNode, vt, vX):
    a(f"v_and_b32 {v(vNode)}, 31, {v(vLane)}")
    a(f"s_lshl_b32 {s(sT0)}, {s(sWAVE)}, 5")
    a(f"v_add_u32 {v(vNode)}, {s(sT0)}, {v(vNode)}")
    a(f"v_lshlrev_b32 {v(vt)}, 6, {v(vNode)}")
    a(f"v_add_u32 {v(vt)}, {s(sBK)}, {v(vt)}")
    a(f"v_lshrrev_b32 {v(vt+1)}, 5, {v(vLane)}")
    a(f"v_lshlrev_b32 {v(vt+1)}, 4, {v(vt+1)}")
    a(f"v_lshl_add_u32 {v(vt+1)}, {v(vt)}, 8, {v(vt+1)}")
    for t in range(8):
        a(f"buffer_load_dwordx4 {v(vX+4*t,4)}, {v(vt+1)}, {s(rX,4)}, 0 offen offset:{32*t}")

def tr_base(a, vLane, vTR, vt, WL):
    a(f"v_lshrrev_b32 {v(vTR)}, 5, {v(vLane)}")
    a(f"v_lshlrev_b32 {v(vTR)}, 3, {v(vTR)}")
    a(f"v_bfe_u32 {v(vt)}, {v(vLane)}, 2, 2")
    a(f"v_add_u32 {v(vTR)}, {v(vTR)}, {v(vt)}")
    a(f"v_lshlrev_b32 {v(vTR)}, 6, {v(vTR)}")
    a(f"v_bfe_u32 {v(vt)}, {v(vLane)}, 4, 1")
    a(f"v_lshl_add_u32 {v(vTR)}, {v(vt)}, 5, {v(vTR)}")
    a(f"v_and_b32 {v(vt)}, 1, {v(vLane)}")
    a(f"v_lshl_add_u32 {v(vTR)}, {v(vt)}, 4, {v(vTR)}")
    a(f"v_and_b32 {v(vt)}, 2, {v(vLane)}")
    a(f"v_lshl_add_u32 {v(vTR)}, {v(vt)}, 2, {v(vTR)}")
    if WL:
        a(f"v_add_u32 {v(vTR)}, {WL}, {v(vTR)}")

def gemm_mat(a, mat, vTR, vWF, vX, vACC):
    for t in range(8):
        for q in range(2):
            a(f"ds_read_b64_tr_b16 {v(vWF+4*t+2*q,2)}, {v(vTR)} offset:{mat*8192 + t*1024 + q*256}")
    for t in range(8):
        a(f"s_waitcnt lgkmcnt({min(15, 14-2*t)})")
        c = "0" if t == 0 else v(vACC, 16)
        a(f"v_mfma_f32_32x32x16_bf16 {v(vACC,16)}, {v(vWF+4*t,4)}, {v(vX+4*t,4)}, {c}")

def pack_chain(a, vIN, vOUT, vTMP, vBIG):
    G = range(4)
    m = lambda g: vTMP + g
    t = lambda g: vTMP + 4 + g
    sd = "dst_sel:DWORD dst_unused:UNUSED_PAD src0_sel:DWORD"
    for g in G: a(f"v_cvt_pk_bf16_f32 {v(vOUT+2*g)}, {v(vIN+4*g)}, {v(vIN+4*g+1)}")
    for g in G: a(f"v_med3_f32 {v(m(g))}, |{v(vIN+4*g+1)}|, {s(sTINY)}, {v(vBIG)}")
    for g in G: a(f"v_add_u32 {v(m(g))}, 0x8000, {v(m(g))}")
    for g in G: a(f"v_sub_u32_sdwa {v(m(g))}, {v(m(g))}, {v(vOUT+2*g)} {sd} src1_sel:WORD_0")
    for g in G: a(f"v_bfi_b32 {v(vOUT+2*g)}, {s(sM7F0)}, {v(m(g))}, {v(vOUT+2*g)}")
    for g in G: a(f"v_med3_f32 {v(t(g))}, |{v(vIN+4*g+2)}|, {s(sTINY)}, {v(vBIG)}")
    for g in G: a(f"v_add_u32 {v(t(g))}, 0x8000, {v(t(g))}")
    for g in G: a(f"v_sub_u32_sdwa {v(t(g))}, {v(t(g))}, {v(vOUT+2*g)} {sd} src1_sel:WORD_1")
    for g in G: a(f"v_bfi_b32 {v(t(g))}, {s(sM7FF)}, {v(t(g))}, {v(vIN+4*g+2)}")
    for g in G: a(f"v_med3_f32 {v(m(g))}, |{v(vIN+4*g+3)}|, {s(sTINY)}, {v(vBIG)}")
    for g in G: a(f"v_add_u32 {v(m(g))}, 0x8000, {v(m(g))}")
    for g in G: a(f"v_sub_u32_sdwa {v(m(g))}, {v(m(g))}, {v(t(g))} {sd} src1_sel:WORD_1")
    for g in G: a(f"v_perm_b32 {v(t(g))}, {v(vIN+4*g+3)}, {v(t(g))}, {s(sPERM)}")
    for g in G: a(f"v_bfi_b32 {v(vOUT+2*g+1)}, {s(sM7F0)}, {v(m(g))}, {v(t(g))}")

def descriptor(a, name, nv, ns=100):
    a.raw(f".amdhsa_kernel {name}")
    a.raw(f"  .amdhsa_next_free_vgpr {nv}")
    a.raw(f"  .amdhsa_next_free_sgpr {ns}")
    a.raw(f"  .amdhsa_accum_offset {(nv+3)//4*4}")
    a.raw(f"  .amdhsa_group_segment_fixed_size 0")
    a.raw(f"  .amdhsa_kernarg_size 96")
    a.raw(f"  .amdhsa_user_sgpr_count 2")
    a.raw(f"  .amdhsa_user_sgpr_kernarg_segment_ptr 1")
    a.raw(f"  .amdhsa_system_sgpr_workgroup_id_x 1")
    a.raw(f".end_amdhsa_kernel")

K1_WL, K1_STAGE, K1_CNT = 0, 16384, 16384 + CHB
K1_LDS = K1_CNT + 256

def gen_k1(a):
    R = Regs(1, 128)
    vt = R.alloc(4)
    vLane = R.alloc(); vNode = R.alloc(); vTR = R.alloc(); vBIG = R.alloc()
    vDST = R.alloc(2); vSRC = R.alloc(2); vEP = R.alloc(); vRK = R.alloc(2)
    vR0 = R.alloc(2); vR1 = R.alloc(2); vBK = R.alloc(2); vCN = R.alloc(); vEX = R.alloc()
    vW = R.alloc(4, 4); vX = R.alloc(32, 4); vWF = R.alloc(32, 4); vACC = R.alloc(16, 4)
    vO = R.alloc(8, 4); vTM = R.alloc(8)
    prologue(a, "k1_kernel", "K1_END")
    a(f"v_and_b32 {v(vLane)}, 63, v0")
    a(f"v_lshlrev_b32 {v(vt)}, 2, {v(vLane)}")
    a(f"v_mov_b32 {v(vt+1)}, 0")
    a(f"ds_write_b32 {v(vt)}, {v(vt+1)} offset:{K1_CNT}")
    a(f"v_mov_b32 {v(vBIG)}, 0x7f7f7fff")
    a(f"s_mul_i32 {s(sT0)}, s2, {CH}")
    a(f"v_lshl_add_u32 {v(vt)}, v0, 1, {s(sT0)}")
    a(f"s_mov_b32 {s(sT1)}, {E}")
    a(f"v_cmp_gt_u32 vcc, {CH//2}, v0")
    a(f"v_cmp_gt_u32 {s(sVAL,2)}, {s(sT1)}, {v(vt)}")
    a("s_waitcnt lgkmcnt(0)")
    stamp(a, 0, vTM)
    a(f"s_and_b64 {s(sVAL,2)}, {s(sVAL,2)}, vcc")
    srd(a, rA, pDST, E*4); srd(a, rB, pSRC, E*4); srd(a, rC, pE, E*2)
    srd(a, rX, pX, N*256)
    a(f"s_mul_i32 {s(sT0)}, {s(sSL)}, {TS}")
    srd(a, rT, pWS, N*128, s(sT0))
    a(f"s_mul_i32 {s(sT0)}, s2, {CHB}")
    a(f"s_add_u32 {s(sT0)}, {s(sT0)}, {WS_REC}")
    srd(a, rREC, pWS, CHB, s(sT0))
    srd(a, rDESC, pWS, 65536, WS_DESC)
    a(f"v_lshlrev_b32 {v(vt+1)}, 2, {v(vt)}")
    a(f"v_lshlrev_b32 {v(vt+2)}, 1, {v(vt)}")
    a(f"s_mov_b64 exec, {s(sVAL,2)}")
    a("s_cbranch_execz K1_NOEDGE")
    a(f"buffer_load_dwordx2 {v(vDST,2)}, {v(vt+1)}, {s(rA,4)}, 0 offen")
    a(f"buffer_load_dwordx2 {v(vSRC,2)}, {v(vt+1)}, {s(rB,4)}, 0 offen")
    a(f"buffer_load_dword {v(vEP)}, {v(vt+2)}, {s(rC,4)}, 0 offen")
    a("K1_NOEDGE:")
    a("s_mov_b64 exec, -1")
    issue_weights(a, 0, vt, vW, pWB, pWV)
    issue_x(a, vLane, vNode, vt, vX)
    a(f"v_lshlrev_b32 {v(vNode)}, 7, {v(vt)}")
    a(f"v_lshrrev_b32 {v(vt+2)}, 5, {v(vLane)}")
    a(f"v_lshl_add_u32 {v(vNode)}, {v(vt+2)}, 4, {v(vNode)}")
    tr_base(a, vLane, vTR, vt, K1_WL)
    a("s_barrier")
    a(f"s_mov_b64 exec, {s(sVAL,2)}")
    a("s_cbranch_execz K1_NORANK")
    a("s_waitcnt vmcnt(9)")
    a(f"v_mov_b32 {v(vt)}, 1")
    for i in range(2):
        a(f"v_and_b32 {v(vBK+i)}, 63, {v(vDST+i)}")
        a(f"v_lshlrev_b32 {v(vBK+i)}, 2, {v(vBK+i)}")
        a(f"ds_add_rtn_u32 {v(vRK+i)}, {v(vBK+i)}, {v(vt)} offset:{K1_CNT}")
    a(f"v_lshl_or_b32 {v(vR0)}, {v(vEP)}, 16, {v(vSRC)}")
    a(f"v_lshrrev_b32 {v(vR0+1)}, 6, {v(vDST)}")
    a(f"v_and_or_b32 {v(vR1)}, {v(vEP)}, {s(sMHI)}, {v(vSRC+1)}")
    a(f"v_lshrrev_b32 {v(vR1+1)}, 6, {v(vDST+1)}")
    a("K1_NORANK:")
    a("s_mov_b64 exec, -1")
    a("s_waitcnt vmcnt(8)")
    a(f"v_lshlrev_b32 {v(vt)}, 4, v0")
    a(f"ds_write_b128 {v(vt)}, {v(vW,4)} offset:{K1_WL}")
    a("s_waitcnt lgkmcnt(0)")
    a("s_barrier")
    a(f"v_lshlrev_b32 {v(vt)}, 2, {v(vLane)}")
    a(f"ds_read_b32 {v(vCN)}, {v(vt)} offset:{K1_CNT}")
    a("s_waitcnt lgkmcnt(0)")
    a(f"v_mov_b32 {v(vEX)}, {v(vCN)}")
    scan64(a, vEX)
    a(f"v_sub_u32 {v(vEX)}, {v(vEX)}, {v(vCN)}")
    a(f"ds_bpermute_b32 {v(vt+2)}, {v(vBK)}, {v(vEX)}")
    a(f"ds_bpermute_b32 {v(vt+3)}, {v(vBK+1)}, {v(vEX)}")
    a(f"s_cmp_lg_u32 {s(sWAVE)}, 0")
    a("s_cbranch_scc1 K1_NODESC")
    a(f"v_lshl_or_b32 {v(vCN)}, {v(vCN)}, 16, {v(vEX)}")
    a(f"s_lshl_b32 {s(sT0)}, s2, 8")
    a(f"buffer_store_dword {v(vCN)}, {v(vt)}, {s(rDESC,4)}, {s(sT0)} offen")
    a("K1_NODESC:")
    a(f"s_mov_b64 exec, {s(sVAL,2)}")
    a("s_waitcnt lgkmcnt(0)")
    for i in range(2):
        a(f"v_add_lshl_u32 {v(vt+2+i)}, {v(vt+2+i)}, {v(vRK+i)}, 3")
    a(f"ds_write_b64 {v(vt+2)}, {v(vR0,2)} offset:{K1_STAGE}")
    a(f"ds_write_b64 {v(vt+3)}, {v(vR1,2)} offset:{K1_STAGE}")
    a("s_mov_b64 exec, -1")
    a("s_waitcnt lgkmcnt(0)")
    a("s_barrier")
    a(f"v_cmp_gt_u32 vcc, {CH//2}, v0")
    a(f"v_lshlrev_b32 {v(vt)}, 4, v0")
    a("s_mov_b64 exec, vcc")
    a("s_cbranch_execz K1_NOREC")
    a(f"ds_read_b128 {v(vW,4)}, {v(vt)} offset:{K1_STAGE}")
    a("s_waitcnt lgkmcnt(0)")
    a(f"buffer_store_dwordx4 {v(vW,4)}, {v(vt)}, {s(rREC,4)}, 0 offen")
    a("K1_NOREC:")
    a("s_mov_b64 exec, -1")
    stamp(a, 1, vTM)
    a(f"s_cmp_ge_u32 {s(sWAVE)}, 13")
    a("s_cbranch_scc1 K1_END")
    a("s_waitcnt vmcnt(2)" if not STAMPS else "s_waitcnt vmcnt(0)")
    stamp(a, 2, vTM)
    for mat in range(2):
        gemm_mat(a, mat, vTR, vWF, vX, vACC)
        a("s_nop 15")
        if mat == 0:
            for r in range(16):
                a(f"v_mul_f32 {v(vACC+r)}, {s(sNL2E)}, {v(vACC+r)}")
        pack_chain(a, vACC, vO, vTM, vBIG)
        a(f"buffer_store_dwordx4 {v(vO,4)}, {v(vNode)}, {s(rT,4)}, 0 offen offset:{mat*64}")
        a(f"buffer_store_dwordx4 {v(vO+4,4)}, {v(vNode)}, {s(rT,4)}, 0 offen offset:{mat*64+32}")
    stamp(a, 3, vTM)
    a("K1_END:")
    a("s_endpgm")
    return R.hi

K2_LIST = 0
K2_AU = (NLOC * STRIDE * 4 + 15) // 16 * 16
K2_WL = K2_AU + 416 * AUS
K2_CNT = K2_WL + 16384
K2_BINS = K2_CNT + 416 * 4
K2_PERM = K2_BINS + 256
K2_Q = K2_PERM + NLOC * 4
K2_LDS = K2_Q + 16

def pk(op, d, a0, b0, c0=None, sel=None):
    ops = f"{v(d,2)}, {a0}, {b0}" + (f", {c0}" if c0 else "")
    return f"v_pk_{op}_f32 {ops}" + (f" {sel}" if sel else "")

def gen_k2(a):
    R = Regs(1, 128)
    vt = R.alloc(4)
    vLane = R.alloc(); vOne = R.alloc(); vJ16 = R.alloc()
    vWC = R.alloc(8)
    m0 = R.mark()
    vNode = R.alloc(); vTR = R.alloc(); vI = R.alloc(); vRB = R.alloc(); vML = R.alloc()
    vDS = R.alloc(8); vRC = R.alloc(16)
    vX = R.alloc(32, 4); vWF = R.alloc(32, 4); vACC = R.alloc(16, 4)
    vW = vWF
    prologue(a, "k2_kernel", "K2_END")
    a(f"v_and_b32 {v(vLane)}, 63, v0")
    a(f"v_mov_b32 {v(vOne)}, 1")
    nz = (K2_LDS - K2_CNT) // 4
    assert nz <= 1024
    a(f"v_lshlrev_b32 {v(vt)}, 2, v0")
    a(f"v_mov_b32 {v(vt+1)}, 0")
    a(f"v_cmp_gt_u32 vcc, {nz}, v0")
    a("s_mov_b64 exec, vcc")
    a(f"ds_write_b32 {v(vt)}, {v(vt+1)} offset:{K2_CNT}" if K2_CNT < 65536 else
      f"v_add_u32 {v(vt)}, {K2_CNT}, {v(vt)}\nds_write_b32 {v(vt)}, {v(vt+1)}")
    a("s_mov_b64 exec, -1")
    a("s_waitcnt lgkmcnt(0)")
    stamp(a, 4, vACC)
    srd(a, rX, pX, N*256)
    a(f"s_mul_i32 {s(sT0)}, {s(sSL)}, {TS}")
    srd(a, rT, pWS, N*128, s(sT0))
    srd(a, rREC, pWS, NWG*CHB, WS_REC)
    srd(a, rDESC, pWS, 65536, WS_DESC)
    srd(a, rA, pOUT, N*256)
    srd(a, rB, pWC, 256)
    a(f"v_lshrrev_b32 {v(vt)}, 5, {v(vLane)}")
    a(f"s_lshl_b32 {s(sT0)}, {s(sWAVE)}, 4")
    a(f"v_add_u32 {v(vt)}, {s(sT0)}, {v(vt)}")
    a(f"v_lshlrev_b32 {v(vt+1)}, 8, {v(vt)}")
    a(f"s_lshl_b32 {s(sT0)}, {s(sBK)}, 2")
    for it in range(8):
        a(f"buffer_load_dword {v(vDS+it)}, {v(vt+1)}, {s(rDESC,4)}, {s(sT0)} offen offset:{it*512}")
    a(f"v_and_b32 {v(vI)}, 31, {v(vLane)}")
    a(f"s_mov_b32 {s(sT0)}, {CHB}")
    a(f"v_mul_lo_u32 {v(vRB)}, {v(vt)}, {s(sT0)}")
    a(f"v_lshl_add_u32 {v(vRB)}, {v(vI)}, 3, {v(vRB)}")
    issue_weights(a, 0, vt, vW, pWA, pWU)
    a(f"v_and_b32 {v(vJ16)}, 3, {v(vLane)}")
    a(f"v_lshlrev_b32 {v(vJ16)}, 4, {v(vJ16)}")
    a(f"s_lshl_b32 {s(sT0)}, {s(sSL)}, 6")
    a(f"buffer_load_dwordx4 {v(vWC,4)}, {v(vJ16)}, {s(rB,4)}, {s(sT0)} offen")
    issue_x(a, vLane, vNode, vt, vX)
    a(f"v_mul_u32_u24 {v(vNode)}, {AUS}, {v(vNode)}")
    a(f"v_lshrrev_b32 {v(vt+2)}, 5, {v(vLane)}")
    a(f"v_lshl_add_u32 {v(vNode)}, {v(vt+2)}, 4, {v(vNode)}")
    a(f"v_add_u32 {v(vNode)}, {K2_AU}, {v(vNode)}")
    tr_base(a, vLane, vTR, vt, K2_WL)
    a(f"s_mov_b32 {s(sBASE)}, 0")
    a(f"s_mov_b64 {s(sOVF,2)}, 0")
    a("s_waitcnt vmcnt(10)")
    a(f"v_mov_b32 {v(vML)}, 0")
    for it in range(8):
        a(f"v_lshrrev_b32 {v(vt)}, 16, {v(vDS+it)}")
        a(f"v_max_u32 {v(vML)}, {v(vML)}, {v(vt)}")
    a("K2_SWEEP:")
    a(f"v_mov_b32 {v(vt+1)}, 8")
    for it in range(8):
        a(f"v_mad_u32_u16 {v(vt)}, {v(vDS+it)}, {v(vt+1)}, {v(vRB)}")
        a(f"s_mov_b32 {s(sT0)}, {it*2*CHB}")
        a(f"buffer_load_dwordx2 {v(vRC+2*it,2)}, {v(vt)}, {s(rREC,4)}, {s(sT0)} offen")
        a(f"v_cmp_lt_u32_sdwa {s(sMSK+2*it,2)}, {v(vI)}, {v(vDS+it)} src0_sel:DWORD src1_sel:WORD_1")
    a(f"s_cmp_lg_u32 {s(sBASE)}, 0")
    a("s_cbranch_scc1 K2_PROC")
    a("s_waitcnt vmcnt(17)")
    a(f"v_lshlrev_b32 {v(vt)}, 4, v0")
    a(f"v_add_u32 {v(vt)}, {K2_WL}, {v(vt)}")
    a(f"ds_write_b128 {v(vt)}, {v(vW,4)}")
    a("s_waitcnt vmcnt(16)")
    for d in range(4):
        a(f"v_and_b32 {v(vWC+4+d)}, {s(sMHI)}, {v(vWC+d)}")
    for d in range(4):
        a(f"v_lshlrev_b32 {v(vWC+d)}, 16, {v(vWC+d)}")
    for d in range(8):
        a(f"v_mul_f32 {v(vWC+d)}, {s(sNL2E)}, {v(vWC+d)}")
    a("s_waitcnt lgkmcnt(0)")
    a("s_barrier")
    stamp(a, 5, vACC)
    a(f"s_cmp_ge_u32 {s(sWAVE)}, 13")
    a("s_cbranch_scc1 K2_PROC")
    a("s_waitcnt vmcnt(8)" if not STAMPS else "s_waitcnt vmcnt(0)")
    for mat in range(2):
        gemm_mat(a, mat, vTR, vWF, vX, vACC)
        a("s_nop 15")
        if mat == 0:
            for r in range(16):
                a(f"v_mul_f32 {v(vACC+r)}, {s(sNL2E)}, {v(vACC+r)}")
        for d in range(8):
            a(f"v_cvt_pk_bf16_f32 {v(vWF+d)}, {v(vACC+2*d)}, {v(vACC+2*d+1)}")
        a(f"ds_write_b128 {v(vNode)}, {v(vWF,4)} offset:{mat*64}")
        a(f"ds_write_b128 {v(vNode)}, {v(vWF+4,4)} offset:{mat*64+32}")
        a("s_waitcnt lgkmcnt(0)")
    stamp(a, 6, vACC)
    a("K2_PROC:")
    vRK = vX
    vAD = vX + 8
    a("s_waitcnt vmcnt(0)")
    for it in range(8):
        a(f"v_lshlrev_b32 {v(vAD+it)}, 2, {v(vRC+2*it+1)}")
        if K2_CNT >= 65536:
            a(f"v_add_u32 {v(vAD+it)}, {K2_CNT}, {v(vAD+it)}")
    for it in range(8):
        a(f"s_mov_b64 exec, {s(sMSK+2*it,2)}")
        a(f"ds_add_rtn_u32 {v(vRK+it)}, {v(vAD+it)}, {v(vOne)}" + (f" offset:{K2_CNT}" if K2_CNT < 65536 else ""))
    a("s_mov_b64 exec, -1")
    a(f"v_mov_b32 {v(vt)}, {STRIDE}")
    for it in range(8):
        a(f"s_waitcnt lgkmcnt({7-it})")
        a(f"v_mad_u32_u24 {v(vAD+it)}, {v(vRC+2*it+1)}, {v(vt)}, {v(vRK+it)}")
        a(f"v_cmp_gt_u32 vcc, {STRIDE}, {v(vRK+it)}")
        a(f"v_lshlrev_b32 {v(vAD+it)}, 2, {v(vAD+it)}")
        a(f"s_andn2_b64 {s(sT0,2)}, {s(sMSK+2*it,2)}, vcc")
        a(f"s_and_b64 {s(sMSK+2*it,2)}, {s(sMSK+2*it,2)}, vcc")
        a(f"s_or_b64 {s(sOVF,2)}, {s(sOVF,2)}, {s(sT0,2)}")
    for it in range(8):
        a(f"s_mov_b64 exec, {s(sMSK+2*it,2)}")
        a(f"ds_write_b32 {v(vAD+it)}, {v(vRC+2*it)} offset:{K2_LIST}")
    a("s_mov_b64 exec, -1")
    a(f"s_add_u32 {s(sBASE)}, {s(sBASE)}, 32")
    a(f"v_add_u32 {v(vI)}, 32, {v(vI)}")
    a(f"v_add_u32 {v(vRB)}, 256, {v(vRB)}")
    a(f"v_cmp_lt_u32 vcc, {s(sBASE)}, {v(vML)}")
    a("s_cbranch_vccnz K2_SWEEP")
    a("s_waitcnt lgkmcnt(0)")
    a("s_barrier")
    stamp(a, 7, vACC)
    vDG = vX; vBN = vX + 1; vR2 = vX + 2; vBC = vX + 3; vBE = vX + 4
    a(f"s_movk_i32 {s(sT0)}, {NLOC}")
    a(f"v_cmp_gt_u32 {s(sVAL,2)}, {s(sT0)}, v0")
    a(f"v_lshlrev_b32 {v(vt)}, 2, v0")
    a(f"v_add_u32 {v(vt)}, {K2_CNT}, {v(vt)}")
    a(f"s_mov_b64 exec, {s(sVAL,2)}")
    a(f"ds_read_b32 {v(vDG)}, {v(vt)}")
    a("s_waitcnt lgkmcnt(0)")
    a(f"v_min_u32 {v(vDG)}, {STRIDE}, {v(vDG)}")
    a(f"v_sub_u32 {v(vBN)}, 63, {v(vDG)}")
    a(f"v_lshlrev_b32 {v(vBN)}, 2, {v(vBN)}")
    a(f"v_add_u32 {v(vt)}, {K2_BINS}, {v(vBN)}")
    a(f"ds_add_rtn_u32 {v(vR2)}, {v(vt)}, {v(vOne)}")
    a("s_mov_b64 exec, -1")
    a("s_waitcnt lgkmcnt(0)")
    a("s_barrier")
    a(f"s_cmp_ge_u32 {s(sWAVE)}, {(NLOC+63)//64}")
    a("s_cbranch_scc1 K2_NOPERM")
    a(f"v_lshlrev_b32 {v(vt)}, 2, {v(vLane)}")
    a(f"v_add_u32 {v(vt)}, {K2_BINS}, {v(vt)}")
    a(f"ds_read_b32 {v(vBC)}, {v(vt)}")
    a("s_waitcnt lgkmcnt(0)")
    a(f"v_mov_b32 {v(vBE)}, {v(vBC)}")
    scan64(a, vBE)
    a(f"v_sub_u32 {v(vBE)}, {v(vBE)}, {v(vBC)}")
    a(f"ds_bpermute_b32 {v(vt)}, {v(vBN)}, {v(vBE)}")
    a(f"v_lshl_or_b32 {v(vDG)}, {v(vDG)}, 16, v0")
    a("s_waitcnt lgkmcnt(0)")
    a(f"v_add_lshl_u32 {v(vt)}, {v(vt)}, {v(vR2)}, 2")
    a(f"v_add_u32 {v(vt)}, {K2_PERM}, {v(vt)}")
    a(f"s_mov_b64 exec, {s(sVAL,2)}")
    a(f"ds_write_b32 {v(vt)}, {v(vDG)}")
    a("s_mov_b64 exec, -1")
    a("s_waitcnt lgkmcnt(0)")
    a("K2_NOPERM:")
    a("s_barrier")
    stamp(a, 8, vACC)
    R.release(m0)
    vDEN = R.alloc(8); vNUM = R.alloc(8); vEA = R.alloc(8)
    vBUF = [R.alloc(16, 4), R.alloc(16, 4)]
    vLa = R.alloc(4); vLb = R.alloc(4); vUa = R.alloc(4); vUb = R.alloc(4); vP = R.alloc(8)
    vE = [R.alloc(2), R.alloc(2)]
    vREC = R.alloc(2); vADR = R.alloc(2)
    vU = R.alloc(4, 4); vXS = R.alloc(4, 4)
    vINFO = R.alloc(); vDEG = R.alloc(); vLA = R.alloc(); vOFF = R.alloc(); v128 = R.alloc()
    vPB = R.alloc(); vQA = R.alloc()
    a(f"v_mov_b32 {v(v128)}, 128")
    a(f"v_lshrrev_b32 {v(vPB)}, 2, {v(vLane)}")
    a(f"v_lshlrev_b32 {v(vPB)}, 2, {v(vPB)}")
    a(f"v_add_u32 {v(vPB)}, {K2_PERM}, {v(vPB)}")
    a(f"v_mov_b32 {v(vQA)}, {K2_Q}")

    def G(nb):
        B = vBUF[nb]
        a(f"v_mad_u32_u16 {v(vADR)}, {v(vREC)}, {v(v128)}, {v(vJ16)}")
        a(f"v_mad_u32_u16 {v(vADR+1)}, {v(vREC+1)}, {v(v128)}, {v(vJ16)}")
        a(f"v_and_b32 {v(vE[nb])}, {s(sMHI)}, {v(vREC)}")
        a(f"v_and_b32 {v(vE[nb]+1)}, {s(sMHI)}, {v(vREC+1)}")
        a(f"buffer_load_dwordx4 {v(B,4)}, {v(vADR)}, {s(rT,4)}, 0 offen")
        a(f"buffer_load_dwordx4 {v(B+4,4)}, {v(vADR)}, {s(rT,4)}, 0 offen offset:64")
        a(f"buffer_load_dwordx4 {v(B+8,4)}, {v(vADR+1)}, {s(rT,4)}, 0 offen")
        a(f"buffer_load_dwordx4 {v(B+12,4)}, {v(vADR+1)}, {s(rT,4)}, 0 offen offset:64")
        a(f"v_add_u32 {v(vLA)}, 8, {v(vLA)}")
        a(f"ds_read2_b32 {v(vREC,2)}, {v(vLA)} offset0:0 offset1:1")

    def front(B, L, e, hi):
        sel = "op_sel:[1,0,0] op_sel_hi:[1,1,1]" if hi else "op_sel_hi:[0,1,1]"
        prs = [L, L+2, B, B+2]
        a(f"v_lshlrev_b64 {v(L,2)}, 16, {v(B,2)}")
        a(f"v_lshlrev_b64 {v(L+2,2)}, 16, {v(B+2,2)}")
        for i in (2, 3, 0, 1):
            a(pk("fma", prs[i], v(e,2), v(vWC+2*i,2), v(prs[i],2), sel))
        for i in (2, 3, 0, 1):
            a(f"v_exp_f32 {v(prs[i])}, {v(prs[i])}")
            a(f"v_exp_f32 {v(prs[i]+1)}, {v(prs[i]+1)}")
        return prs
    def front2(prs):
        for i in (2, 3, 0, 1):
            a(pk("fma", prs[i], v(vEA+2*i,2), v(prs[i],2), "1.0", "op_sel_hi:[1,1,0]"))

    def Cpair(nb):
        B = vBUF[nb]
        Ba, Va, Bb, Vb = B, B+4, B+8, B+12
        pa = front(Ba, vLa, vE[nb], False)
        pb = front(Bb, vLb, vE[nb], True)
        front2(pa)
        front2(pb)
        for i in range(4):
            a(pk("mul", vP+2*i, v(pa[i],2), v(pb[i],2)))
        a(f"v_lshlrev_b64 {v(vUa,2)}, 16, {v(Va,2)}")
        a(f"v_lshlrev_b64 {v(vUa+2,2)}, 16, {v(Va+2,2)}")
        a(f"v_lshlrev_b64 {v(vUb,2)}, 16, {v(Vb,2)}")
        a(f"v_lshlrev_b64 {v(vUb+2,2)}, 16, {v(Vb+2,2)}")
        for i in range(8):
            a(f"v_rcp_f32 {v(vP+i)}, {v(vP+i)}")
        qa = [vUa, vUa+2, Va, Va+2]; qb = [vUb, vUb+2, Vb, Vb+2]
        for i in range(4):
            a(pk("mul", qa[i], v(qa[i],2), v(pb[i],2)))
        for i in range(4):
            a(pk("fma", qa[i], v(qb[i],2), v(pa[i],2), v(qa[i],2)))
        for i in range(4):
            a(pk("add", pa[i], v(pa[i],2), v(pb[i],2)))
        for i in range(4):
            a(pk("fma", vNUM+2*i, v(qa[i],2), v(vP+2*i,2), v(vNUM+2*i,2)))
        for i in range(4):
            a(pk("fma", vDEN+2*i, v(pa[i],2), v(vP+2*i,2), v(vDEN+2*i,2)))

    def Csingle(nb, hi):
        B = vBUF[nb] + (8 if hi else 0)
        V = B + 4
        p = front(B, vLa, vE[nb], hi)
        a(f"v_lshlrev_b64 {v(vUa,2)}, 16, {v(V,2)}")
        front2(p)
        a(f"v_lshlrev_b64 {v(vUa+2,2)}, 16, {v(V+2,2)}")
        for i in (2, 3, 0, 1):
            a(f"v_rcp_f32 {v(p[i])}, {v(p[i])}")
            a(f"v_rcp_f32 {v(p[i]+1)}, {v(p[i]+1)}")
        q = [vUa, vUa+2, V, V+2]
        for i in (2, 3, 0, 1):
            a(pk("add", vDEN+2*i, v(vDEN+2*i,2), v(p[i],2)))
        for i in (2, 3, 0, 1):
            a(pk("fma", vNUM+2*i, v(q[i],2), v(p[i],2), v(vNUM+2*i,2)))

    a("K2_GROUP:")
    a("s_mov_b64 exec, 1")
    a(f"ds_add_rtn_u32 {v(vINFO)}, {v(vQA)}, {v(vOne)}")
    a("s_mov_b64 exec, -1")
    a("s_waitcnt lgkmcnt(0)")
    a(f"v_readfirstlane_b32 {s(sT0)}, {v(vINFO)}")
    a(f"s_cmp_ge_u32 {s(sT0)}, {NGRP}")
    a("s_cbranch_scc1 K2_DONE")
    a(f"s_lshl_b32 {s(sT0)}, {s(sT0)}, 6")
    a(f"v_add_u32 {v(vt)}, {s(sT0)}, {v(vPB)}")
    a(f"ds_read_b32 {v(vINFO)}, {v(vt)}")
    a("s_waitcnt lgkmcnt(0)")
    a(f"v_lshrrev_b32 {v(vDEG)}, 16, {v(vINFO)}")
    a(f"v_and_b32 {v(vINFO)}, 0xffff, {v(vINFO)}")
    a(f"v_mul_u32_u24 {v(vLA)}, {STRIDE*4}, {v(vINFO)}")
    if K2_LIST: a(f"v_add_u32 {v(vLA)}, {K2_LIST}, {v(vLA)}")
    a(f"ds_read2_b32 {v(vREC,2)}, {v(vLA)} offset0:0 offset1:1")
    a(f"v_mul_u32_u24 {v(vt)}, {AUS}, {v(vINFO)}")
    a(f"s_mov_b32 {s(sT1)}, {K2_AU}")
    a(f"v_add3_u32 {v(vt)}, {v(vt)}, {v(vJ16)}, {s(sT1)}")
    a(f"ds_read_b128 {v(vEA,4)}, {v(vt)}")
    a(f"ds_read_b128 {v(vU,4)}, {v(vt)} offset:64")
    a(f"v_readlane_b32 {s(sMAX)}, {v(vDEG)}, 0")
    a(f"v_readlane_b32 {s(sMIN)}, {v(vDEG)}, 63")
    a(f"v_lshlrev_b32 {v(vOFF)}, 6, {v(vINFO)}")
    a(f"v_add_u32 {v(vOFF)}, {s(sBK)}, {v(vOFF)}")
    a(f"v_lshl_add_u32 {v(vOFF)}, {v(vOFF)}, 8, {v(vJ16)}")
    a(f"s_lshl_b32 {s(sT2)}, {s(sSL)}, 6")
    a(f"buffer_load_dwordx4 {v(vXS,4)}, {v(vOFF)}, {s(rX,4)}, {s(sT2)} offen")
    a("s_waitcnt lgkmcnt(2)")
    G(0)
    a("s_waitcnt lgkmcnt(2)")
    for d in range(4):
        a(f"v_and_b32 {v(vEA+4+d)}, {s(sMHI)}, {v(vEA+d)}")
    for d in range(4):
        a(f"v_lshlrev_b32 {v(vEA+d)}, 16, {v(vEA+d)}")
    for d in (4, 5, 6, 7, 0, 1, 2, 3):
        a(f"v_exp_f32 {v(vEA+d)}, {v(vEA+d)}")
    for d in range(8):
        a(f"v_mov_b32 {v(vDEN+d)}, {hx(fbits(1e-6))}")
        a(f"v_mov_b32 {v(vNUM+d)}, 0")
    a(f"s_mov_b32 {s(sK)}, 0")
    a(f"s_cmp_eq_u32 {s(sMAX)}, 0")
    a("s_cbranch_scc1 K2_EPI")
    a("K2_LOOP:")
    for cur in range(2):
        a("s_waitcnt lgkmcnt(0)")
        G(1 - cur)
        a(f"s_add_u32 {s(sT0)}, {s(sK)}, 2")
        a(f"s_cmp_le_u32 {s(sT0)}, {s(sMIN)}")
        a("s_waitcnt vmcnt(4)")
        a(f"s_cbranch_scc0 K2_TAIL{cur}")
        Cpair(cur)
        a(f"K2_NEXT{cur}:")
        a(f"s_add_u32 {s(sK)}, {s(sK)}, 2")
        a(f"s_cmp_ge_u32 {s(sK)}, {s(sMAX)}")
        if cur == 0:
            a("s_cbranch_scc1 K2_EPI")
        else:
            a("s_cbranch_scc0 K2_LOOP")
    a("K2_EPI:")
    a("s_mov_b64 exec, -1")
    a("s_waitcnt vmcnt(0) lgkmcnt(0)")
    for d in range(8):
        a(f"v_rcp_f32 {v(vDEN+d)}, {v(vDEN+d)}")
    Uu = vP
    Xu = vBUF[0]
    for d in range(4):
        a(f"v_lshlrev_b32 {v(Uu+d)}, 16, {v(vU+d)}")
        a(f"v_and_b32 {v(Uu+4+d)}, {s(sMHI)}, {v(vU+d)}")
        a(f"v_lshlrev_b32 {v(Xu+d)}, 16, {v(vXS+d)}")
        a(f"v_and_b32 {v(Xu+4+d)}, {s(sMHI)}, {v(vXS+d)}")
    for i in range(4):
        a(pk("fma", Uu+2*i, v(vNUM+2*i,2), v(vDEN+2*i,2), v(Uu+2*i,2)))
    for d in range(8):
        a(f"v_max_f32 {v(Uu+d)}, 0, {v(Uu+d)}")
    for i in range(4):
        a(pk("add", Uu+2*i, v(Uu+2*i,2), v(Xu+2*i,2)))
    for d in range(4):
        a(f"v_cvt_pk_bf16_f32 {v(vXS+d)}, {v(Uu+d)}, {v(Uu+4+d)}")
    a(f"buffer_store_dwordx4 {v(vXS,4)}, {v(vOFF)}, {s(rA,4)}, {s(sT2)} offen")
    a("s_branch K2_GROUP")
    for cur in range(2):
        a(f"K2_TAIL{cur}:")
        a(f"v_cmpx_lt_u32 vcc, {s(sK)}, {v(vDEG)}")
        Csingle(cur, False)
        a(f"s_add_u32 {s(sT0)}, {s(sK)}, 1")
        a(f"s_cmp_ge_u32 {s(sT0)}, {s(sMAX)}")
        a("s_cbranch_scc1 K2_EPI")
        a(f"v_cmpx_lt_u32 vcc, {s(sT0)}, {v(vDEG)}")
        Csingle(cur, True)
        a(f"s_branch K2_NEXT{cur}")
    a("K2_DONE:")
    stamp(a, 9, vP)
    a("K2_END:")
    a("s_endpgm")
    return R.hi

def main():
    a = Asm()
    hdr = open("standalone__edge_featured_mpnn_gatedgcn__graph.s.ref").read().split("\n")
    for l in hdr:
        if l.startswith("; Override") : break
        a.raw(l)
    a.raw(f"; @launch kernel=k1_kernel grid=({NWG},1,1) block=(1024,1,1) lds={K1_LDS}")
    a.raw(f"; @launch kernel=k2_kernel grid=({NWG},1,1) block=(1024,1,1) lds={K2_LDS}")
    a.raw('.amdgcn_target "amdgcn-amd-amdhsa--gfx950"')
    a.raw(".text")
    n1 = gen_k1(a)
    n2 = gen_k2(a)
    a.raw('.section .rodata,"a"')
    a.raw(".p2align 6")
    descriptor(a, "k1_kernel", n1)
    a.raw(".p2align 6")
    descriptor(a, "k2_kernel", n2)
    out = [x for x in sys.argv[1:] if not x.startswith("--")]
    open(out[0] if out else "out.s", "w").write(a.text())
    print("vgprs", n1, n2, "lds", K1_LDS, K2_LDS, file=sys.stderr)

main()
```

```python
import sys, math
from asmlib import *

def opt(name, default=None):
    for x in sys.argv[1:]:
        if x == "--" + name: return True
        if x.startswith("--" + name + "="): return x.split("=", 1)[1]
    return default

KNAME = "standalone__edge_featured_mpnn_gatedgcn__graph_kernel"
N, E, D = 25000, 400000, 128
NWG = 256
CH = 1568
CHB = CH * 8
TS = 25024 * 128
WS_T, WS_REC, WS_DESC, WS_STAMP = 0, 0x00D00000, 0x01100000, 0x01200000
LOG2E = 1.4426950408889634
STRIDE = 41
NLOC = 400
NGRP = NLOC // 16
AUS = 144
STAMPS = opt("stamps", False)
TSC = "" if opt("tplain") else " sc1"
OSC = {"plain": "", "sc1": " sc1", "nt": " nt", "sc01": " sc0 sc1"}[opt("osc", "plain")]
PRIO = not opt("noprio")
ASLIST = opt("aslist", False)

L_LIST = 0
L_STAGE = 0
L_AU = NLOC * STRIDE * 4
L_WL = L_AU + 416 * AUS
L_Z = L_WL + 32768
L_CNT = L_Z
L_BINS = L_CNT + 416 * 4
L_CNTA = L_BINS + 256
L_MISC = L_CNTA + 256
L_ZEND = L_MISC + 16
L_PERM = L_ZEND
L_DESC = L_PERM + NLOC * 4
L_END = L_DESC + 1024
assert L_AU % 16 == 0 and L_WL % 16 == 0 and L_END <= 163840, L_END

sWG, sWAVE, sSL, sBK = 2, 3, 4, 5
sT0, sT1, sT2, sT3 = 6, 7, 8, 9
sVAL, sOVF = 10, 12
sK, sMAX = 14, 15
pX, pE, pSRC, pDST, pWA, pWB, pWC, pWU, pWV, pOUT, pDBG, pWS = 16, 18, 20, 22, 24, 26, 28, 30, 32, 34, 36, 38
rX, rW, rT, rREC, rDESC, rA, rB, rC = 40, 44, 48, 52, 56, 60, 64, 68
sMHI, sM7F0, sM7FF, sTINY, sPERM, sNL2E, sMIN, sBASE = 72, 73, 74, 75, 76, 77, 78, 79
sMSK = 80
sST, rST = 96, 98
rW2 = 80
rDBG = 16
sSL64 = 20
sSPIN = 21

def srd(a, r, p, nbytes, add=None):
    if add is None:
        a(f"s_mov_b32 {s(r)}, {s(p)}")
        a(f"s_and_b32 {s(r+1)}, {s(p+1)}, 0xffff")
    else:
        a(f"s_add_u32 {s(r)}, {s(p)}, {add}")
        a(f"s_addc_u32 {s(r+1)}, {s(p+1)}, 0")
        a(f"s_and_b32 {s(r+1)}, {s(r+1)}, 0xffff")
    a(f"s_mov_b32 {s(r+2)}, {hx(nbytes)}")
    a(f"s_mov_b32 {s(r+3)}, 0x20000")

def stamp(a, idx, vt, wave=0):
    if not STAMPS: return
    l = a.uid("ST")
    if wave is not None:
        a(f"s_cmp_lg_u32 {s(sWAVE)}, {wave}")
        a(f"s_cbranch_scc1 {l}")
    a(f"s_memrealtime {s(sST,2)}")
    a(f"s_waitcnt lgkmcnt(0)")
    a(f"v_mov_b32 {v(vt)}, {s(sST)}")
    a(f"v_mov_b32 {v(vt+1)}, {s(sST+1)}")
    a(f"s_lshl_b32 {s(sST)}, {s(sWG)}, 8")
    if wave is None:
        a(f"s_lshl_b32 {s(sST+1)}, {s(sWAVE)}, 3")
        a(f"s_add_u32 {s(sST)}, {s(sST)}, {s(sST+1)}")
    a(f"s_add_u32 {s(sST)}, {s(sST)}, {WS_STAMP + idx*8}")
    a(f"v_mov_b32 {v(vt+2)}, {s(sST)}")
    a(f"s_mov_b64 {s(rST,2)}, exec")
    a(f"s_mov_b64 exec, 1")
    a(f"global_store_dwordx2 {v(vt+2)}, {v(vt,2)}, {s(pWS,2)}")
    a(f"s_mov_b64 exec, {s(rST,2)}")
    a(f"{l}:")

def scan64(a, r):
    for sh in (1, 2, 4, 8):
        a("s_nop 1")
        a(f"v_add_u32_dpp {v(r)}, {v(r)}, {v(r)} row_shr:{sh} row_mask:0xf bank_mask:0xf")
    a("s_nop 1")
    a(f"v_add_u32_dpp {v(r)}, {v(r)}, {v(r)} row_bcast:15 row_mask:0xa bank_mask:0xf")
    a("s_nop 1")
    a(f"v_add_u32_dpp {v(r)}, {v(r)}, {v(r)} row_bcast:31 row_mask:0xc bank_mask:0xf")

def tr_reads(a, mat, vTR, vWF):
    for t in range(8):
        for q in range(2):
            a(f"ds_read_b64_tr_b16 {v(vWF+4*t+2*q,2)}, {v(vTR)} offset:{mat*8192 + t*1024 + q*256}")

def mfma_chain(a, vWF, vX, vACC):
    for t in range(8):
        c = "0" if t == 0 else v(vACC, 16)
        a(f"v_mfma_f32_32x32x16_bf16 {v(vACC,16)}, {v(vWF+4*t,4)}, {v(vX+4*t,4)}, {c}")

def pack_chain(a, vIN, vOUT, vTMP, vBIG):
    G = range(4)
    m = lambda g: vTMP + g
    t = lambda g: vTMP + 4 + g
    sd = "dst_sel:DWORD dst_unused:UNUSED_PAD src0_sel:DWORD"
    for g in G: a(f"v_cvt_pk_bf16_f32 {v(vOUT+2*g)}, {v(vIN+4*g)}, {v(vIN+4*g+1)}")
    for g in G: a(f"v_med3_f32 {v(m(g))}, |{v(vIN+4*g+1)}|, {s(sTINY)}, {v(vBIG)}")
    for g in G: a(f"v_med3_f32 {v(t(g))}, |{v(vIN+4*g+2)}|, {s(sTINY)}, {v(vBIG)}")
    for g in G: a(f"v_add_u32 {v(m(g))}, 0x8000, {v(m(g))}")
    for g in G: a(f"v_add_u32 {v(t(g))}, 0x8000, {v(t(g))}")
    for g in G: a(f"v_sub_u32_sdwa {v(m(g))}, {v(m(g))}, {v(vOUT+2*g)} {sd} src1_sel:WORD_0")
    for g in G: a(f"v_bfi_b32 {v(vOUT+2*g)}, {s(sM7F0)}, {v(m(g))}, {v(vOUT+2*g)}")
    for g in G: a(f"v_med3_f32 {v(m(g))}, |{v(vIN+4*g+3)}|, {s(sTINY)}, {v(vBIG)}")
    for g in G: a(f"v_sub_u32_sdwa {v(t(g))}, {v(t(g))}, {v(vOUT+2*g)} {sd} src1_sel:WORD_1")
    for g in G: a(f"v_add_u32 {v(m(g))}, 0x8000, {v(m(g))}")
    for g in G: a(f"v_bfi_b32 {v(t(g))}, {s(sM7FF)}, {v(t(g))}, {v(vIN+4*g+2)}")
    for g in G: a(f"v_sub_u32_sdwa {v(m(g))}, {v(m(g))}, {v(t(g))} {sd} src1_sel:WORD_1")
    for g in G: a(f"v_perm_b32 {v(t(g))}, {v(vIN+4*g+3)}, {v(t(g))}, {s(sPERM)}")
    for g in G: a(f"v_bfi_b32 {v(vOUT+2*g+1)}, {s(sM7F0)}, {v(m(g))}, {v(t(g))}")

def poll(a, bit, vA, vD):
    l = a.uid("POLL"); d = a.uid("POLLD")
    a(f"s_mov_b32 {s(sSPIN)}, 0x200000")
    a(f"s_mov_b32 {s(sT1)}, {hx(0x01010101 * bit)}")
    a(f"{l}:")
    a(f"buffer_load_dword {v(vD)}, {v(vA)}, {s(rDBG,4)}, 0 offen sc1")
    a("s_waitcnt vmcnt(0)")
    a(f"v_and_b32 {v(vD)}, {s(sT1)}, {v(vD)}")
    a(f"v_cmp_ne_u32 vcc, {s(sT1)}, {v(vD)}")
    a(f"s_cbranch_vccz {d}")
    a("s_sleep 1")
    a(f"s_sub_u32 {s(sSPIN)}, {s(sSPIN)}, 1")
    a(f"s_cbranch_scc0 {l}")
    a(f"{d}:")

def pk(op, d, a0, b0, c0=None, sel=None):
    ops = f"{v(d,2)}, {a0}, {b0}" + (f", {c0}" if c0 else "")
    return f"v_pk_{op}_f32 {ops}" + (f" {sel}" if sel else "")

def gen(a):
    R = Regs(1, 128)
    vt = R.alloc(4)
    vLane = R.alloc(); vOne = R.alloc(); vJ16 = R.alloc()
    vWC = R.alloc(8)
    m0 = R.mark()
    vAUa = R.alloc(); vTR = R.alloc(); vBIG = R.alloc(); vI = R.alloc(); vRB = R.alloc(); vML = R.alloc()
    vDS = R.alloc(8); vRC = R.alloc(16, 4)
    vX = R.alloc(32, 4); vWF = R.alloc(32, 4); vACC = R.alloc(16, 4)
    vDST = vRC; vSRC = vRC + 2; vR0 = vRC + 4; vR1 = vRC + 6; vRK = vRC + 8; vBK = vRC + 10
    vEP = vRC + 12; vCN = vRC + 13; vEX = vRC + 14
    vO = vRC; vTM = vRC + 8
    vW = vWF
    a.raw(f".globl {KNAME}")
    a.raw(".p2align 8")
    a.raw(f".type {KNAME},@function")
    a.raw(f"{KNAME}:")
    a(f"s_cmp_ge_u32 s2, {NWG}")
    a(f"s_cbranch_scc1 K_END")
    a("s_load_dwordx16 s[16:31], s[0:1], 0")
    a("s_load_dwordx8 s[32:39], s[0:1], 64")
    a(f"v_lshrrev_b32 v1, 6, v0")
    a(f"s_and_b32 {s(sSL)}, s2, 3")
    a(f"v_readfirstlane_b32 {s(sWAVE)}, v1")
    a(f"s_lshr_b32 {s(sBK)}, s2, 2")
    a(f"s_mov_b32 {s(sMHI)}, 0xffff0000")
    a(f"s_mov_b32 {s(sM7F0)}, 0x7fff0000")
    a(f"s_mov_b32 {s(sM7FF)}, 0x7fffffff")
    a(f"s_mov_b32 {s(sTINY)}, 0x00800000")
    a(f"s_mov_b32 {s(sPERM)}, 0x07060302")
    a(f"s_mov_b32 {s(sNL2E)}, {hx(fbits(-LOG2E))}")
    a(f"v_and_b32 {v(vLane)}, 63, v0")
    a(f"v_mov_b32 {v(vOne)}, 1")
    nz = (L_ZEND - L_Z) // 4
    a(f"v_lshlrev_b32 {v(vt)}, 2, v0")
    a(f"v_add_u32 {v(vt)}, {L_Z}, {v(vt)}")
    a(f"v_mov_b32 {v(vt+1)}, 0")
    a(f"v_cmp_gt_u32 vcc, {nz}, v0")
    a("s_mov_b64 exec, vcc")
    a(f"ds_write_b32 {v(vt)}, {v(vt+1)}")
    a("s_mov_b64 exec, -1")
    a(f"s_mul_i32 {s(sT0)}, s2, {CH}")
    a(f"v_lshl_add_u32 {v(vt)}, v0, 1, {s(sT0)}")
    a(f"s_mov_b32 {s(sT1)}, {E}")
    a(f"v_cmp_gt_u32 vcc, {CH//2}, v0")
    a(f"v_cmp_gt_u32 {s(sVAL,2)}, {s(sT1)}, {v(vt)}")
    a(f"v_lshlrev_b32 {v(vt+1)}, 2, {v(vt)}")
    a(f"v_lshlrev_b32 {v(vt+2)}, 1, {v(vt)}")
    a(f"s_and_b64 {s(sVAL,2)}, {s(sVAL,2)}, vcc")
    a("s_waitcnt lgkmcnt(0)")
    stamp(a, 0, vACC)
    srd(a, rA, pDST, E*4); srd(a, rB, pSRC, E*4); srd(a, rC, pE, E*2)
    a(f"s_mov_b64 exec, {s(sVAL,2)}")
    a("s_cbranch_execz K_NOEDGE")
    a(f"buffer_load_dwordx2 {v(vDST,2)}, {v(vt+1)}, {s(rA,4)}, 0 offen")
    a(f"buffer_load_dwordx2 {v(vSRC,2)}, {v(vt+1)}, {s(rB,4)}, 0 offen")
    a(f"buffer_load_dword {v(vEP)}, {v(vt+2)}, {s(rC,4)}, 0 offen")
    a("K_NOEDGE:")
    a("s_mov_b64 exec, -1")
    a(f"s_cmp_ge_u32 {s(sWAVE)}, 8")
    for r, p0, p1 in ((rW, pWB, pWV), (rW2, pWA, pWU)):
        a(f"s_cselect_b32 {s(r)}, {s(p1)}, {s(p0)}")
        a(f"s_cselect_b32 {s(r+1)}, {s(p1+1)}, {s(p0+1)}")
    for r in (rW, rW2):
        a(f"s_and_b32 {s(r+1)}, {s(r+1)}, 0xffff")
        a(f"s_mov_b32 {s(r+2)}, {128*256}")
        a(f"s_mov_b32 {s(r+3)}, 0x20000")
    a(f"v_bfe_u32 {v(vt)}, v0, 2, 7")
    a(f"v_lshlrev_b32 {v(vt)}, 8, {v(vt)}")
    a(f"v_and_b32 {v(vJ16)}, 3, v0")
    a(f"v_lshlrev_b32 {v(vJ16)}, 4, {v(vJ16)}")
    a(f"v_add_u32 {v(vt)}, {v(vt)}, {v(vJ16)}")
    a(f"s_lshl_b32 {s(sT2)}, {s(sSL)}, 6")
    a(f"buffer_load_dwordx4 {v(vW,4)}, {v(vt)}, {s(rW,4)}, {s(sT2)} offen")
    a(f"buffer_load_dwordx4 {v(vW+4,4)}, {v(vt)}, {s(rW2,4)}, {s(sT2)} offen")
    srd(a, rC, pWC, 256)
    a(f"buffer_load_dwordx4 {v(vWC,4)}, {v(vJ16)}, {s(rC,4)}, {s(sT2)} offen")
    srd(a, rX, pX, N*256)
    a(f"v_and_b32 {v(vAUa)}, 31, {v(vLane)}")
    a(f"s_lshl_b32 {s(sT0)}, {s(sWAVE)}, 5")
    a(f"v_add_u32 {v(vAUa)}, {s(sT0)}, {v(vAUa)}")
    a(f"v_lshlrev_b32 {v(vt)}, 6, {v(vAUa)}")
    a(f"v_add_u32 {v(vt)}, {s(sBK)}, {v(vt)}")
    a(f"v_lshrrev_b32 {v(vt+2)}, 5, {v(vLane)}")
    a(f"v_lshlrev_b32 {v(vt+2)}, 4, {v(vt+2)}")
    a(f"v_lshl_add_u32 {v(vt+1)}, {v(vt)}, 8, {v(vt+2)}")
    a("s_barrier")
    for t in range(8):
        a(f"buffer_load_dwordx4 {v(vX+4*t,4)}, {v(vt+1)}, {s(rX,4)}, 0 offen offset:{32*t}")
    a(f"v_mul_u32_u24 {v(vAUa)}, {AUS}, {v(vAUa)}")
    a(f"s_mov_b32 {s(sT0)}, {L_AU}")
    a(f"v_add3_u32 {v(vAUa)}, {v(vAUa)}, {v(vt+2)}, {s(sT0)}")
    a(f"s_mul_i32 {s(sT0)}, {s(sSL)}, {TS}")
    srd(a, rT, pWS, N*128, s(sT0))
    srd(a, rREC, pWS, NWG*CHB, WS_REC)
    srd(a, rDESC, pWS, 65536, WS_DESC)
    srd(a, rA, pOUT, N*256)
    srd(a, rDBG, pDBG, 256)
    a(f"s_lshl_b32 {s(sSL64)}, {s(sSL)}, 6")
    a(f"v_lshrrev_b32 {v(vTR)}, 5, {v(vLane)}")
    a(f"v_lshlrev_b32 {v(vTR)}, 3, {v(vTR)}")
    a(f"v_bfe_u32 {v(vt)}, {v(vLane)}, 2, 2")
    a(f"v_add_u32 {v(vTR)}, {v(vTR)}, {v(vt)}")
    a(f"v_lshlrev_b32 {v(vTR)}, 6, {v(vTR)}")
    a(f"v_bfe_u32 {v(vt)}, {v(vLane)}, 4, 1")
    a(f"v_lshl_add_u32 {v(vTR)}, {v(vt)}, 5, {v(vTR)}")
    a(f"v_and_b32 {v(vt)}, 1, {v(vLane)}")
    a(f"v_lshl_add_u32 {v(vTR)}, {v(vt)}, 4, {v(vTR)}")
    a(f"v_and_b32 {v(vt)}, 2, {v(vLane)}")
    a(f"v_lshl_add_u32 {v(vTR)}, {v(vt)}, 2, {v(vTR)}")
    a(f"v_add_u32 {v(vTR)}, {L_WL}, {v(vTR)}")
    a(f"v_mov_b32 {v(vBIG)}, 0x7f7f7fff")
    a(f"v_lshrrev_b32 {v(vt)}, 5, {v(vLane)}")
    a(f"s_lshl_b32 {s(sT0)}, {s(sWAVE)}, 4")
    a(f"v_add_u32 {v(vML)}, {s(sT0)}, {v(vt)}")
    a(f"v_and_b32 {v(vI)}, 31, {v(vLane)}")
    a(f"s_mov_b32 {s(sT0)}, {CHB}")
    a(f"v_mul_lo_u32 {v(vRB)}, {v(vML)}, {s(sT0)}")
    a(f"v_lshl_add_u32 {v(vRB)}, {v(vI)}, 3, {v(vRB)}")
    a(f"s_mov_b64 exec, {s(sVAL,2)}")
    a("s_cbranch_execz K_NORANK")
    a("s_waitcnt vmcnt(11)")
    a(f"s_mov_b32 {s(sT0)}, {L_CNTA}")
    for i in range(2):
        a(f"v_and_b32 {v(vBK+i)}, 62, {v(vDST+i)}")
        a(f"v_and_b32 {v(vt+i)}, 1, {v(vDST+i)}")
        a(f"v_lshlrev_b32 {v(vBK+i)}, 1, {v(vBK+i)}")
        a(f"v_lshl_or_b32 {v(vBK+i)}, {v(vt+i)}, 7, {v(vBK+i)}")
        a(f"v_add_u32 {v(vt+i)}, {s(sT0)}, {v(vBK+i)}")
        a(f"ds_add_rtn_u32 {v(vRK+i)}, {v(vt+i)}, {v(vOne)}")
    a(f"v_lshl_or_b32 {v(vR0)}, {v(vEP)}, 16, {v(vSRC)}")
    a(f"v_lshrrev_b32 {v(vR0+1)}, 6, {v(vDST)}")
    a(f"v_and_or_b32 {v(vR1)}, {v(vEP)}, {s(sMHI)}, {v(vSRC+1)}")
    a(f"v_lshrrev_b32 {v(vR1+1)}, 6, {v(vDST+1)}")
    a("K_NORANK:")
    a("s_mov_b64 exec, -1")
    a("s_waitcnt vmcnt(9)")
    a(f"v_lshlrev_b32 {v(vt)}, 4, v0")
    a(f"v_add_u32 {v(vt)}, {L_WL}, {v(vt)}")
    a(f"ds_write_b128 {v(vt)}, {v(vW,4)}")
    a(f"ds_write_b128 {v(vt)}, {v(vW+4,4)} offset:16384")
    a("s_waitcnt vmcnt(8)")
    for d in range(4): a(f"v_and_b32 {v(vWC+4+d)}, {s(sMHI)}, {v(vWC+d)}")
    for d in range(4): a(f"v_lshlrev_b32 {v(vWC+d)}, 16, {v(vWC+d)}")
    for d in range(8): a(f"v_mul_f32 {v(vWC+d)}, {s(sNL2E)}, {v(vWC+d)}")
    a("s_waitcnt lgkmcnt(0)")
    a("s_barrier")
    stamp(a, 1, vACC)
    a(f"v_lshlrev_b32 {v(vt)}, 2, {v(vLane)}")
    a(f"v_add_u32 {v(vt+1)}, {L_CNTA}, {v(vt)}")
    a(f"ds_read_b32 {v(vCN)}, {v(vt+1)}")
    if True:
        tr_reads(a, 0, vTR, vWF)
    a("s_waitcnt lgkmcnt(15)")
    a("s_waitcnt lgkmcnt(0)")
    a(f"v_mov_b32 {v(vEX)}, {v(vCN)}")
    scan64(a, vEX)
    a(f"v_sub_u32 {v(vEX)}, {v(vEX)}, {v(vCN)}")
    a(f"ds_bpermute_b32 {v(vt+2)}, {v(vBK)}, {v(vEX)}")
    a(f"ds_bpermute_b32 {v(vt+3)}, {v(vBK+1)}, {v(vEX)}")
    a(f"v_lshl_or_b32 {v(vCN)}, {v(vCN)}, 16, {v(vEX)}")
    a(f"s_mov_b64 exec, {s(sVAL,2)}")
    a("s_waitcnt lgkmcnt(0)")
    for i in range(2):
        a(f"v_add_lshl_u32 {v(vt+2+i)}, {v(vt+2+i)}, {v(vRK+i)}, 3")
    a(f"ds_write_b64 {v(vt+2)}, {v(vR0,2)} offset:{L_STAGE}")
    a(f"ds_write_b64 {v(vt+3)}, {v(vR1,2)} offset:{L_STAGE}")
    a("s_mov_b64 exec, -1")
    a("s_waitcnt lgkmcnt(0)")
    a("s_barrier")
    stamp(a, 2, vACC)
    a(f"s_cmp_lt_u32 {s(sWAVE)}, 13")
    a("s_cbranch_scc1 K_GEMM")
    a("s_waitcnt vmcnt(0)")
    a(f"v_subrev_u32 {v(vt+1)}, {13*64}, v0")
    a(f"v_lshlrev_b32 {v(vt+1)}, 4, {v(vt+1)}")
    for i in range(4):
        a(f"ds_read_b128 {v(vX+4*i,4)}, {v(vt+1)} offset:{L_STAGE + i*3072}")
    a(f"ds_read_b128 {v(vX+16,4)}, {v(vt+1)} offset:{L_STAGE + 4*3072}")
    a(f"s_mul_i32 {s(sT0)}, s2, {CHB}")
    a(f"s_lshl_b32 {s(sT1)}, s2, 8")
    a(f"s_cmp_lg_u32 {s(sWAVE)}, 14")
    a("s_cbranch_scc1 K_NODESC")
    a(f"buffer_store_dword {v(vCN)}, {v(vt)}, {s(rDESC,4)}, {s(sT1)} offen sc1")
    a("K_NODESC:")
    for i in range(4):
        a(f"s_waitcnt lgkmcnt({4-i})")
        a(f"buffer_store_dwordx4 {v(vX+4*i,4)}, {v(vt+1)}, {s(rREC,4)}, {s(sT0)} offen offset:{(i*3072) % 4096} sc1" if i < 2 else
          f"s_add_u32 {s(sT2)}, {s(sT0)}, {i*3072}\nbuffer_store_dwordx4 {v(vX+4*i,4)}, {v(vt+1)}, {s(rREC,4)}, {s(sT2)} offen sc1")
    a(f"s_cmp_lg_u32 {s(sWAVE)}, 13")
    a("s_cbranch_scc1 K_NOLAST")
    a(f"s_add_u32 {s(sT2)}, {s(sT0)}, {4*3072}")
    a("s_mov_b64 exec, 0xffff")
    a("s_waitcnt lgkmcnt(0)")
    a(f"buffer_store_dwordx4 {v(vX+16,4)}, {v(vt+1)}, {s(rREC,4)}, {s(sT2)} offen sc1")
    a("s_mov_b64 exec, -1")
    a("K_NOLAST:")
    a("s_waitcnt vmcnt(0) lgkmcnt(0)")
    a(f"v_mov_b32 {v(vt+2)}, {L_MISC}")
    a("s_mov_b64 exec, 1")
    a(f"ds_add_rtn_u32 {v(vt+3)}, {v(vt+2)}, {v(vOne)} offset:4")
    a("s_waitcnt lgkmcnt(0)")
    a(f"v_readfirstlane_b32 {s(sT0)}, {v(vt+3)}")
    a(f"v_mov_b32 {v(vt+3)}, s2")
    a(f"s_cmp_lg_u32 {s(sT0)}, 2")
    a("s_cbranch_scc1 K_NOFLAGA")
    a(f"buffer_store_byte {v(vOne)}, {v(vt+3)}, {s(rDBG,4)}, 0 offen sc1")
    a("K_NOFLAGA:")
    a("s_mov_b64 exec, -1")
    stamp(a, 3, vACC, 15)
    a(f"s_cmp_lg_u32 {s(sWAVE)}, 15")
    a("s_cbranch_scc1 K_RECS")
    poll(a, 1, vt, vt+1)
    stamp(a, 4, vACC, 15)
    a(f"s_lshr_b32 {s(sT0)}, {s(sBK)}, 1")
    a(f"s_and_b32 {s(sT1)}, {s(sBK)}, 1")
    a(f"s_lshl_b32 {s(sT1)}, {s(sT1)}, 5")
    a(f"s_or_b32 {s(sT0)}, {s(sT0)}, {s(sT1)}")
    a(f"s_lshl_b32 {s(sT0)}, {s(sT0)}, 2")
    a(f"v_lshlrev_b32 {v(vt+1)}, 8, {v(vLane)}")
    for i in range(4):
        a(f"buffer_load_dword {v(vX+i)}, {v(vt+1)}, {s(rDESC,4)}, {s(sT0)} offen sc1")
        if i < 3: a(f"s_add_u32 {s(sT0)}, {s(sT0)}, 16384")
    a(f"v_add_u32 {v(vt+1)}, {L_DESC}, {v(vt)}")
    for i in range(4):
        a(f"s_waitcnt vmcnt({3-i})")
        a(f"ds_write_b32 {v(vt+1)}, {v(vX+i)} offset:{i*256}")
    a("s_waitcnt lgkmcnt(0)")
    a(f"ds_write_b32 {v(vt+2)}, {v(vOne)} offset:12")
    stamp(a, 5, vACC, 15)
    a("s_branch K_RECS")
    a("K_GEMM:")
    a("s_waitcnt vmcnt(0)")
    stamp(a, 6, vTM)
    stamp(a, 7, vTM, 12)
    for mat in range(2):
        mfma_chain(a, vWF, vX, vACC)
        tr_reads(a, mat + 1, vTR, vWF)
        if mat == 0:
            for r in range(16): a(f"v_mul_f32 {v(vACC+r)}, {s(sNL2E)}, {v(vACC+r)}")
        pack_chain(a, vACC, vO, vTM, vBIG)
        a(f"ds_write_b128 {v(vAUa)}, {v(vO,4)} offset:{mat*64}")
        a(f"ds_write_b128 {v(vAUa)}, {v(vO+4,4)} offset:{mat*64+32}")
        if mat == 0: a("s_waitcnt lgkmcnt(2)")
    a(f"v_lshrrev_b32 {v(vt)}, 3, {v(vLane)}")
    a(f"s_lshl_b32 {s(sT0)}, {s(sWAVE)}, 5")
    a(f"v_add_u32 {v(vt)}, {s(sT0)}, {v(vt)}")
    a(f"v_and_b32 {v(vt+1)}, 7, {v(vLane)}")
    a(f"v_lshlrev_b32 {v(vt+1)}, 4, {v(vt+1)}")
    a(f"v_mul_u32_u24 {v(vt+2)}, {AUS}, {v(vt)}")
    a(f"s_mov_b32 {s(sT0)}, {L_AU}")
    a(f"v_add3_u32 {v(vt+2)}, {v(vt+2)}, {v(vt+1)}, {s(sT0)}")
    a(f"v_lshl_add_u32 {v(vt)}, {v(vt)}, 13, {v(vt+1)}")
    a("s_waitcnt lgkmcnt(0)")
    for i in range(4):
        a(f"ds_read_b128 {v(vACC+4*i,4)}, {v(vt+2)} offset:{i*8*AUS}")
    a(f"s_lshl_b32 {s(sT0)}, {s(sBK)}, 7")
    a(f"v_add_u32 {v(vt)}, {s(sT0)}, {v(vt)}")
    for i in range(4):
        a(f"s_waitcnt lgkmcnt({3-i})")
        a(f"buffer_store_dwordx4 {v(vACC+4*i,4)}, {v(vt)}, {s(rT,4)}, 0 offen sc1")
        if i < 3: a(f"v_add_u32 {v(vt)}, 0x10000, {v(vt)}")
    stamp(a, 8, vTM)
    a("K_RECS:")
    a(f"v_mov_b32 {v(vt+2)}, {L_MISC}")
    a(f"s_mov_b32 {s(sSPIN)}, 0x400000")
    a("K_DW:")
    a(f"ds_read_b32 {v(vt+3)}, {v(vt+2)} offset:12")
    a("s_waitcnt lgkmcnt(0)")
    a(f"v_readfirstlane_b32 {s(sT0)}, {v(vt+3)}")
    a(f"s_cmp_lg_u32 {s(sT0)}, 0")
    a("s_cbranch_scc1 K_DWD")
    a("s_sleep 1")
    a(f"s_sub_u32 {s(sSPIN)}, {s(sSPIN)}, 1")
    a("s_cbranch_scc0 K_DW")
    a("K_DWD:")
    a(f"v_lshlrev_b32 {v(vt)}, 2, {v(vML)}")
    a(f"v_add_u32 {v(vt)}, {L_DESC}, {v(vt)}")
    for it in range(0, 8, 2):
        a(f"ds_read2_b32 {v(vDS+it,2)}, {v(vt)} offset0:{2*it} offset1:{2*it+2}")
    a(f"s_mov_b32 {s(sBASE)}, 0")
    a(f"s_mov_b64 {s(sOVF,2)}, 0")
    a(f"v_mov_b32 {v(vML)}, 0")
    a("s_waitcnt lgkmcnt(0)")
    for it in range(8):
        a(f"v_lshrrev_b32 {v(vt)}, 16, {v(vDS+it)}")
        a(f"v_max_u32 {v(vML)}, {v(vML)}, {v(vt)}")
    a("K_SWEEP:")
    a(f"v_mov_b32 {v(vt+1)}, 8")
    for it in range(8):
        a(f"v_mad_u32_u16 {v(vt)}, {v(vDS+it)}, {v(vt+1)}, {v(vRB)}")
        a(f"s_mov_b32 {s(sT0)}, {it*2*CHB}")
        a(f"buffer_load_dwordx2 {v(vRC+2*it,2)}, {v(vt)}, {s(rREC,4)}, {s(sT0)} offen sc1")
        a(f"v_cmp_lt_u32_sdwa {s(sMSK+2*it,2)}, {v(vI)}, {v(vDS+it)} src0_sel:DWORD src1_sel:WORD_1")
    a(f"s_cmp_lg_u32 {s(sBASE)}, 0")
    a("s_cbranch_scc1 K_PROC")
    a(f"s_cmp_ge_u32 {s(sWAVE)}, 13")
    a("s_cbranch_scc1 K_PROC")
    vPK = vDS
    for mat in (2, 3):
        mfma_chain(a, vWF, vX, vACC)
        if mat == 2:
            tr_reads(a, 3, vTR, vWF)
            for r in range(16): a(f"v_mul_f32 {v(vACC+r)}, {s(sNL2E)}, {v(vACC+r)}")
        else:
            a("s_nop 11")
        for d in range(8):
            a(f"v_cvt_pk_bf16_f32 {v(vACC+d)}, {v(vACC+2*d)}, {v(vACC+2*d+1)}")
        a(f"ds_write_b128 {v(vAUa)}, {v(vACC,4)} offset:{(mat-2)*64}")
        a(f"ds_write_b128 {v(vAUa)}, {v(vACC+4,4)} offset:{(mat-2)*64+32}")
        a("s_waitcnt lgkmcnt(0)")
    stamp(a, 9, vX)
    a("s_waitcnt vmcnt(0)")
    a(f"v_mov_b32 {v(vt+2)}, {L_MISC}")
    a("s_mov_b64 exec, 1")
    a(f"ds_add_rtn_u32 {v(vt+3)}, {v(vt+2)}, {v(vOne)} offset:8")
    a("s_waitcnt lgkmcnt(0)")
    a(f"v_readfirstlane_b32 {s(sT0)}, {v(vt+3)}")
    a(f"v_mov_b32 {v(vt+3)}, s2")
    a(f"v_mov_b32 {v(vt+2)}, 3")
    a(f"s_cmp_lg_u32 {s(sT0)}, 12")
    a("s_cbranch_scc1 K_NOFLAGB")
    a(f"buffer_store_byte {v(vt+2)}, {v(vt+3)}, {s(rDBG,4)}, 0 offen sc1")
    if STAMPS:
        a("s_mov_b64 exec, -1")
        a(f"s_mov_b32 {s(sT3)}, {s(sWAVE)}")
        a(f"s_mov_b32 {s(sWAVE)}, 0")
        stamp(a, 10, vX)
        a(f"s_mov_b32 {s(sWAVE)}, {s(sT3)}")
    a("K_NOFLAGB:")
    a("s_mov_b64 exec, -1")
    a("K_PROC:")
    vRK8 = vX; vAD = vX + 8
    a("s_waitcnt vmcnt(0)")
    a(f"s_mov_b32 {s(sT0)}, {L_CNT}")
    for it in range(8):
        a(f"v_lshl_add_u32 {v(vAD+it)}, {v(vRC+2*it+1)}, 2, {s(sT0)}")
    for it in range(8):
        a(f"s_mov_b64 exec, {s(sMSK+2*it,2)}")
        a(f"ds_add_rtn_u32 {v(vRK8+it)}, {v(vAD+it)}, {v(vOne)}")
    a("s_mov_b64 exec, -1")
    a(f"v_mov_b32 {v(vt)}, {STRIDE}")
    for it in range(8):
        a(f"s_waitcnt lgkmcnt({7-it})")
        a(f"v_mad_u32_u24 {v(vAD+it)}, {v(vRC+2*it+1)}, {v(vt)}, {v(vRK8+it)}")
        a(f"v_cmp_gt_u32 vcc, {STRIDE}, {v(vRK8+it)}")
        a(f"v_lshlrev_b32 {v(vAD+it)}, 2, {v(vAD+it)}")
        a(f"s_andn2_b64 {s(sT0,2)}, {s(sMSK+2*it,2)}, vcc")
        a(f"s_and_b64 {s(sMSK+2*it,2)}, {s(sMSK+2*it,2)}, vcc")
        a(f"s_or_b64 {s(sOVF,2)}, {s(sOVF,2)}, {s(sT0,2)}")
    for it in range(8):
        a(f"s_mov_b64 exec, {s(sMSK+2*it,2)}")
        a(f"ds_write_b32 {v(vAD+it)}, {v(vRC+2*it)} offset:{L_LIST}")
    a("s_mov_b64 exec, -1")
    a(f"s_add_u32 {s(sBASE)}, {s(sBASE)}, 32")
    a(f"v_add_u32 {v(vI)}, 32, {v(vI)}")
    a(f"v_add_u32 {v(vRB)}, 256, {v(vRB)}")
    a(f"v_cmp_lt_u32 vcc, {s(sBASE)}, {v(vML)}")
    a("s_cbranch_vccnz K_SWEEP")
    a("s_waitcnt lgkmcnt(0)")
    a("s_barrier")
    stamp(a, 11, vACC)
    vDG = vX; vBN = vX + 1; vR2 = vX + 2; vBC = vX + 3; vBE = vX + 4
    a(f"s_movk_i32 {s(sT0)}, {NLOC}")
    a(f"v_cmp_gt_u32 {s(sVAL,2)}, {s(sT0)}, v0")
    a(f"v_lshlrev_b32 {v(vt)}, 2, v0")
    a(f"v_add_u32 {v(vt)}, {L_CNT}, {v(vt)}")
    a(f"s_mov_b64 exec, {s(sVAL,2)}")
    a(f"ds_read_b32 {v(vDG)}, {v(vt)}")
    a("s_waitcnt lgkmcnt(0)")
    a(f"v_min_u32 {v(vDG)}, {STRIDE}, {v(vDG)}")
    a(f"v_sub_u32 {v(vBN)}, 63, {v(vDG)}")
    a(f"v_lshlrev_b32 {v(vBN)}, 2, {v(vBN)}")
    a(f"v_add_u32 {v(vt)}, {L_BINS}, {v(vBN)}")
    a(f"ds_add_rtn_u32 {v(vR2)}, {v(vt)}, {v(vOne)}")
    a("s_mov_b64 exec, -1")
    a("s_waitcnt lgkmcnt(0)")
    a("s_barrier")
    a(f"s_cmp_lg_u32 {s(sWAVE)}, 15")
    a("s_cbranch_scc1 K_NOPOLLB")
    a(f"v_lshlrev_b32 {v(vt)}, 2, {v(vLane)}")
    poll(a, 2, vt, vt+1)
    stamp(a, 12, vACC, 15)
    a("K_NOPOLLB:")
    a(f"s_cmp_ge_u32 {s(sWAVE)}, {(NLOC+63)//64}")
    a("s_cbranch_scc1 K_NOPERM")
    a(f"v_lshlrev_b32 {v(vt)}, 2, {v(vLane)}")
    a(f"v_add_u32 {v(vt)}, {L_BINS}, {v(vt)}")
    a(f"ds_read_b32 {v(vBC)}, {v(vt)}")
    a("s_waitcnt lgkmcnt(0)")
    a(f"v_mov_b32 {v(vBE)}, {v(vBC)}")
    scan64(a, vBE)
    a(f"v_sub_u32 {v(vBE)}, {v(vBE)}, {v(vBC)}")
    a(f"ds_bpermute_b32 {v(vt)}, {v(vBN)}, {v(vBE)}")
    a(f"v_lshl_or_b32 {v(vDG)}, {v(vDG)}, 16, v0")
    a("s_waitcnt lgkmcnt(0)")
    a(f"v_add_lshl_u32 {v(vt)}, {v(vt)}, {v(vR2)}, 2")
    a(f"v_add_u32 {v(vt)}, {L_PERM}, {v(vt)}")
    a(f"s_mov_b64 exec, {s(sVAL,2)}")
    a(f"ds_write_b32 {v(vt)}, {v(vDG)}")
    a("s_mov_b64 exec, -1")
    a("s_waitcnt lgkmcnt(0)")
    a("K_NOPERM:")
    stamp(a, 13, vACC)
    a("s_barrier")
    stamp(a, 14, vACC)
    R.release(m0)
    vDEN = R.alloc(8); vNUM = R.alloc(8); vEA = R.alloc(8)
    vBUF = [R.alloc(16, 4), R.alloc(16, 4)]
    vLa = R.alloc(4); vLb = R.alloc(4); vUa = R.alloc(4); vUb = R.alloc(4); vP = R.alloc(8)
    vE = [R.alloc(2), R.alloc(2)]
    vREC = R.alloc(2); vADR = R.alloc(2)
    vU = R.alloc(4, 4); vXS = R.alloc(4, 4)
    vINFO = R.alloc(); vDEG = R.alloc(); vLA = R.alloc(); vOFF = R.alloc(); v128 = R.alloc()
    vPB = R.alloc(); vQA = R.alloc(); vAUB = R.alloc()
    a(f"v_mov_b32 {v(v128)}, 128")
    a(f"v_lshrrev_b32 {v(vPB)}, 2, {v(vLane)}")
    a(f"v_lshlrev_b32 {v(vPB)}, 2, {v(vPB)}")
    a(f"v_add_u32 {v(vPB)}, {L_PERM}, {v(vPB)}")
    a(f"v_mov_b32 {v(vQA)}, {L_MISC}")
    a(f"v_add_u32 {v(vAUB)}, {L_AU}, {v(vJ16)}")
    if PRIO: a("s_setprio 2")

    def G(nb):
        B = vBUF[nb]
        a(f"v_mad_u32_u16 {v(vADR)}, {v(vREC)}, {v(v128)}, {v(vJ16)}")
        a(f"v_mad_u32_u16 {v(vADR+1)}, {v(vREC+1)}, {v(v128)}, {v(vJ16)}")
        a(f"v_and_b32 {v(vE[nb])}, {s(sMHI)}, {v(vREC)}")
        a(f"v_and_b32 {v(vE[nb]+1)}, {s(sMHI)}, {v(vREC+1)}")
        a(f"buffer_load_dwordx4 {v(B,4)}, {v(vADR)}, {s(rT,4)}, 0 offen{TSC}")
        a(f"buffer_load_dwordx4 {v(B+4,4)}, {v(vADR)}, {s(rT,4)}, 0 offen offset:64{TSC}")
        a(f"buffer_load_dwordx4 {v(B+8,4)}, {v(vADR+1)}, {s(rT,4)}, 0 offen{TSC}")
        a(f"buffer_load_dwordx4 {v(B+12,4)}, {v(vADR+1)}, {s(rT,4)}, 0 offen offset:64{TSC}")
        a(f"v_add_u32 {v(vLA)}, 8, {v(vLA)}")
        a(f"ds_read2_b32 {v(vREC,2)}, {v(vLA)} offset0:0 offset1:1")

    def front(B, L, e, hi):
        sel = "op_sel:[1,0,0] op_sel_hi:[1,1,1]" if hi else "op_sel_hi:[0,1,1]"
        prs = [L, L+2, B, B+2]
        a(f"v_lshlrev_b64 {v(L,2)}, 16, {v(B,2)}")
        a(f"v_lshlrev_b64 {v(L+2,2)}, 16, {v(B+2,2)}")
        for i in (2, 3, 0, 1):
            a(pk("fma", prs[i], v(e,2), v(vWC+2*i,2), v(prs[i],2), sel))
        for i in (2, 3, 0, 1):
            a(f"v_exp_f32 {v(prs[i])}, {v(prs[i])}")
            a(f"v_exp_f32 {v(prs[i]+1)}, {v(prs[i]+1)}")
        return prs
    def front2(prs):
        for i in (2, 3, 0, 1):
            a(pk("fma", prs[i], v(vEA+2*i,2), v(prs[i],2), "1.0", "op_sel_hi:[1,1,0]"))

    def Cpair(nb):
        B = vBUF[nb]
        Ba, Va, Bb, Vb = B, B+4, B+8, B+12
        pa = front(Ba, vLa, vE[nb], False)
        pb = front(Bb, vLb, vE[nb], True)
        front2(pa)
        front2(pb)
        for i in range(4): a(pk("mul", vP+2*i, v(pa[i],2), v(pb[i],2)))
        a(f"v_lshlrev_b64 {v(vUa,2)}, 16, {v(Va,2)}")
        a(f"v_lshlrev_b64 {v(vUa+2,2)}, 16, {v(Va+2,2)}")
        a(f"v_lshlrev_b64 {v(vUb,2)}, 16, {v(Vb,2)}")
        a(f"v_lshlrev_b64 {v(vUb+2,2)}, 16, {v(Vb+2,2)}")
        for i in range(8): a(f"v_rcp_f32 {v(vP+i)}, {v(vP+i)}")
        qa = [vUa, vUa+2, Va, Va+2]; qb = [vUb, vUb+2, Vb, Vb+2]
        for i in range(4): a(pk("mul", qa[i], v(qa[i],2), v(pb[i],2)))
        for i in range(4): a(pk("fma", qa[i], v(qb[i],2), v(pa[i],2), v(qa[i],2)))
        for i in range(4): a(pk("add", pa[i], v(pa[i],2), v(pb[i],2)))
        for i in range(4): a(pk("fma", vNUM+2*i, v(qa[i],2), v(vP+2*i,2), v(vNUM+2*i,2)))
        for i in range(4): a(pk("fma", vDEN+2*i, v(pa[i],2), v(vP+2*i,2), v(vDEN+2*i,2)))

    def Csingle(nb, hi):
        B = vBUF[nb] + (8 if hi else 0)
        V = B + 4
        p = front(B, vLa, vE[nb], hi)
        a(f"v_lshlrev_b64 {v(vUa,2)}, 16, {v(V,2)}")
        front2(p)
        a(f"v_lshlrev_b64 {v(vUa+2,2)}, 16, {v(V+2,2)}")
        for i in (2, 3, 0, 1):
            a(f"v_rcp_f32 {v(p[i])}, {v(p[i])}")
            a(f"v_rcp_f32 {v(p[i]+1)}, {v(p[i]+1)}")
        q = [vUa, vUa+2, V, V+2]
        for i in (2, 3, 0, 1): a(pk("add", vDEN+2*i, v(vDEN+2*i,2), v(p[i],2)))
        for i in (2, 3, 0, 1): a(pk("fma", vNUM+2*i, v(q[i],2), v(p[i],2), v(vNUM+2*i,2)))

    a("K_GROUP:")
    a("s_mov_b64 exec, 1")
    a(f"ds_add_rtn_u32 {v(vINFO)}, {v(vQA)}, {v(vOne)}")
    a("s_mov_b64 exec, -1")
    a("s_waitcnt lgkmcnt(0)")
    a(f"v_readfirstlane_b32 {s(sT0)}, {v(vINFO)}")
    a(f"s_cmp_ge_u32 {s(sT0)}, {NGRP}")
    a("s_cbranch_scc1 K_DONE")
    a(f"s_lshl_b32 {s(sT0)}, {s(sT0)}, 6")
    a(f"v_add_u32 {v(vt)}, {s(sT0)}, {v(vPB)}")
    a(f"ds_read_b32 {v(vINFO)}, {v(vt)}")
    a("s_waitcnt lgkmcnt(0)")
    a(f"v_lshrrev_b32 {v(vDEG)}, 16, {v(vINFO)}")
    a(f"v_and_b32 {v(vINFO)}, 0xffff, {v(vINFO)}")
    a(f"v_mul_u32_u24 {v(vLA)}, {STRIDE*4}, {v(vINFO)}")
    a(f"ds_read2_b32 {v(vREC,2)}, {v(vLA)} offset0:0 offset1:1")
    a(f"v_mul_u32_u24 {v(vt)}, {AUS}, {v(vINFO)}")
    a(f"v_add_u32 {v(vt)}, {v(vt)}, {v(vAUB)}")
    a(f"ds_read_b128 {v(vEA,4)}, {v(vt)}")
    a(f"ds_read_b128 {v(vU,4)}, {v(vt)} offset:64")
    a(f"v_readlane_b32 {s(sMAX)}, {v(vDEG)}, 0")
    a(f"v_readlane_b32 {s(sMIN)}, {v(vDEG)}, 63")
    a(f"v_lshlrev_b32 {v(vOFF)}, 6, {v(vINFO)}")
    a(f"v_add_u32 {v(vOFF)}, {s(sBK)}, {v(vOFF)}")
    a(f"v_lshl_add_u32 {v(vOFF)}, {v(vOFF)}, 8, {v(vJ16)}")
    a(f"buffer_load_dwordx4 {v(vXS,4)}, {v(vOFF)}, {s(rX,4)}, {s(sSL64)} offen")
    a("s_waitcnt lgkmcnt(2)")
    G(0)
    a("s_waitcnt lgkmcnt(2)")
    for d in range(4): a(f"v_and_b32 {v(vEA+4+d)}, {s(sMHI)}, {v(vEA+d)}")
    for d in range(4): a(f"v_lshlrev_b32 {v(vEA+d)}, 16, {v(vEA+d)}")
    for d in (4, 5, 6, 7, 0, 1, 2, 3): a(f"v_exp_f32 {v(vEA+d)}, {v(vEA+d)}")
    for d in range(8):
        a(f"v_mov_b32 {v(vDEN+d)}, {hx(fbits(1e-6))}")
        a(f"v_mov_b32 {v(vNUM+d)}, 0")
    a(f"s_mov_b32 {s(sK)}, 0")
    a(f"s_cmp_eq_u32 {s(sMAX)}, 0")
    a("s_cbranch_scc1 K_EPI")
    a("K_LOOP:")
    for cur in range(2):
        a("s_waitcnt lgkmcnt(0)")
        G(1 - cur)
        a(f"s_add_u32 {s(sT0)}, {s(sK)}, 2")
        a(f"s_cmp_le_u32 {s(sT0)}, {s(sMIN)}")
        a("s_waitcnt vmcnt(4)")
        a(f"s_cbranch_scc0 K_TAIL{cur}")
        Cpair(cur)
        a(f"K_NEXT{cur}:")
        a(f"s_add_u32 {s(sK)}, {s(sK)}, 2")
        a(f"s_cmp_ge_u32 {s(sK)}, {s(sMAX)}")
        a("s_cbranch_scc1 K_EPI" if cur == 0 else "s_cbranch_scc0 K_LOOP")
    a("K_EPI:")
    a("s_mov_b64 exec, -1")
    a("s_waitcnt vmcnt(4) lgkmcnt(0)")
    for d in range(8): a(f"v_rcp_f32 {v(vDEN+d)}, {v(vDEN+d)}")
    Uu = vP; Xu = vLa
    assert vLb == vLa + 4
    for d in range(4):
        a(f"v_lshlrev_b32 {v(Uu+d)}, 16, {v(vU+d)}")
        a(f"v_and_b32 {v(Uu+4+d)}, {s(sMHI)}, {v(vU+d)}")
        a(f"v_lshlrev_b32 {v(Xu+d)}, 16, {v(vXS+d)}")
        a(f"v_and_b32 {v(Xu+4+d)}, {s(sMHI)}, {v(vXS+d)}")
    for i in range(4): a(pk("fma", Uu+2*i, v(vNUM+2*i,2), v(vDEN+2*i,2), v(Uu+2*i,2)))
    for d in range(8): a(f"v_max_f32 {v(Uu+d)}, 0, {v(Uu+d)}")
    for i in range(4): a(pk("add", Uu+2*i, v(Uu+2*i,2), v(Xu+2*i,2)))
    for d in range(4): a(f"v_cvt_pk_bf16_f32 {v(vUa+d)}, {v(Uu+d)}, {v(Uu+4+d)}")
    a(f"buffer_store_dwordx4 {v(vUa,4)}, {v(vOFF)}, {s(rA,4)}, {s(sSL64)} offen{OSC}")
    if PRIO: a("s_setprio 0")
    a("s_branch K_GROUP")
    for cur in range(2):
        a(f"K_TAIL{cur}:")
        a(f"v_cmpx_lt_u32 vcc, {s(sK)}, {v(vDEG)}")
        Csingle(cur, False)
        a(f"s_add_u32 {s(sT0)}, {s(sK)}, 1")
        a(f"s_cmp_ge_u32 {s(sT0)}, {s(sMAX)}")
        a("s_cbranch_scc1 K_EPI")
        a(f"v_cmpx_lt_u32 vcc, {s(sT0)}, {v(vDEG)}")
        Csingle(cur, True)
        a(f"s_branch K_NEXT{cur}")
    a("K_DONE:")
    stamp(a, 16, vP, None)
    a("K_END:")
    a("s_endpgm")
    return R.hi

def main():
    a = Asm()
    hdr = open("standalone__edge_featured_mpnn_gatedgcn__graph.s.ref").read().split("\n")
    for l in hdr:
        if l.startswith("; Override"): break
        a.raw(l)
    if ASLIST:
        a.raw(f"; @launch kernel={KNAME} grid=({NWG},1,1) block=(1024,1,1) lds={L_END}")
    else:
        a.raw(f"; @launch grid=({NWG},1,1) block=(1024,1,1) lds={L_END}")
    a.raw('.amdgcn_target "amdgcn-amd-amdhsa--gfx950"')
    a.raw(".text")
    nv = gen(a)
    a.raw('.section .rodata,"a"')
    a.raw(".p2align 6")
    a.raw(f".amdhsa_kernel {KNAME}")
    a.raw(f"  .amdhsa_next_free_vgpr {nv}")
    a.raw(f"  .amdhsa_next_free_sgpr 100")
    a.raw(f"  .amdhsa_accum_offset {(nv+3)//4*4}")
    a.raw(f"  .amdhsa_group_segment_fixed_size 0")
    a.raw(f"  .amdhsa_kernarg_size 96")
    a.raw(f"  .amdhsa_user_sgpr_count 2")
    a.raw(f"  .amdhsa_user_sgpr_kernarg_segment_ptr 1")
    a.raw(f"  .amdhsa_system_sgpr_workgroup_id_x 1")
    a.raw(f".end_amdhsa_kernel")
    out = [x for x in sys.argv[1:] if not x.startswith("--")]
    open(out[0] if out else "out.s", "w").write(a.text())
    print("vgprs", nv, "lds", L_END, file=sys.stderr)

main()
```

```python
import sys, math
from asmlib import *

def opt(name, default=None):
    for x in sys.argv[1:]:
        if x == "--" + name: return True
        if x.startswith("--" + name + "="): return x.split("=", 1)[1]
    return default

KNAME = "standalone__edge_featured_mpnn_gatedgcn__graph_kernel"
N, E, D = 25000, 400000, 128
NWG = 256
CH = 1568
CHB = CH * 8
TS = 25024 * 128
WS_T, WS_REC, WS_DESC, WS_STAMP, WS_FLAG = 0, 0x00D00000, 0x01100000, 0x01200000, 0x01300000
LOG2E = 1.4426950408889634
STRIDE = 41
NLOC = 400
NGRP = NLOC // 16
AUS = 144
NPB = 391
MAGIC = 42909
NSH = int(opt('nsh', 16))
NREP = int(opt('nrep', 8))
FSZ = 4096
assert (NSH + 1 + NREP) * 128 <= FSZ
STAMPS = opt("stamps", False)
OSC = {"plain": "", "sc1": " sc1", "nt": " nt", "sc01": " sc0 sc1"}[opt("osc", "plain")]
PRIO = not opt("noprio")
ASLIST = opt("aslist", False)
SLP = int(opt("sleep", 2))
TST = "" if opt("tstplain") else " sc1"

L_LIST = 0
L_AU = NLOC * STRIDE * 4
L_STAGE = 13 * 8192
L_WL = L_AU + 416 * AUS
assert L_STAGE + CHB <= L_WL
L_Z = L_WL + 32768
L_CNT = L_Z
L_BINS = L_CNT + 416 * 4
L_CNTA = L_BINS + 256
L_MISC = L_CNTA + 256
M_Q, M_HS1, M_HS2, M_HS3, M_WRDY, M_XCNT, M_GCNT, M_DRDY = 0, 4, 8, 12, 16, 20, 24, 28
L_ZEND = L_MISC + 32
L_PERM = L_ZEND
L_DESC = L_PERM + NLOC * 4
L_END = L_DESC + 1024
assert L_AU % 16 == 0 and L_WL % 16 == 0 and L_END <= 163840, L_END

sWG, sWAVE, sSL, sBK = 2, 3, 4, 5
sT0, sT1, sT2, sT3 = 6, 7, 8, 9
sVAL, sOVF = 10, 12
sK, sMAX = 14, 15
pX, pE, pSRC, pDST, pWA, pWB, pWC, pWU, pWV, pOUT, pDBG, pWS = 16, 18, 20, 22, 24, 26, 28, 30, 32, 34, 36, 38
rX, rW, rT, rREC, rDESC, rA, rB, rC = 40, 44, 48, 52, 56, 60, 64, 68
sMHI, sM7F0, sM7FF, sTINY, sPERM, sNL2E, sMIN, sBASE = 72, 73, 74, 75, 76, 77, 78, 79
sMSK = 80
sVAL2 = 80
rFLG, rDBG, rOUT = 84, 88, 92
sST, rST = 96, 98
sSL64, sSPIN, sTILE, sXS = 0, 1, 100, 101
sNB0 = 35

def srd(a, r, p, nbytes, add=None):
    if add is None:
        a(f"s_mov_b32 {s(r)}, {s(p)}")
        a(f"s_and_b32 {s(r+1)}, {s(p+1)}, 0xffff")
    else:
        a(f"s_add_u32 {s(r)}, {s(p)}, {add}")
        a(f"s_addc_u32 {s(r+1)}, {s(p+1)}, 0")
        a(f"s_and_b32 {s(r+1)}, {s(r+1)}, 0xffff")
    a(f"s_mov_b32 {s(r+2)}, {hx(nbytes)}")
    a(f"s_mov_b32 {s(r+3)}, 0x20000")

def stamp(a, idx, vt, wave=0, clk=False):
    if not STAMPS: return
    if opt("clk") and idx in (12, 13, 14) and not clk: return
    if clk and not opt("clk"): return
    l = a.uid("ST")
    if wave is not None and wave >= 0:
        a(f"s_cmp_lg_u32 {s(sWAVE)}, {wave}")
        a(f"s_cbranch_scc1 {l}")
    a(f"s_memrealtime {s(sST,2)}" if not clk else f"s_memtime {s(sST,2)}")
    a(f"s_waitcnt lgkmcnt(0)")
    a(f"s_mov_b64 {s(rST,2)}, exec")
    a(f"s_mov_b64 exec, 1")
    a(f"v_mov_b32 {v(vt)}, {s(sST)}")
    a(f"v_mov_b32 {v(vt+1)}, {s(sST+1)}")
    a(f"s_lshl_b32 {s(sST)}, {s(sWG)}, 8")
    if wave is None:
        a(f"s_lshl_b32 {s(sST+1)}, {s(sWAVE)}, 3")
        a(f"s_add_u32 {s(sST)}, {s(sST)}, {s(sST+1)}")
    a(f"s_add_u32 {s(sST)}, {s(sST)}, {WS_STAMP + idx*8}")
    a(f"v_mov_b32 {v(vt+2)}, {s(sST)}")
    a(f"global_store_dwordx2 {v(vt+2)}, {v(vt,2)}, {s(pWS,2)}")
    a(f"s_mov_b64 exec, {s(rST,2)}")
    a(f"{l}:")

def scan64(a, r):
    for sh in (1, 2, 4, 8):
        a("s_nop 1")
        a(f"v_add_u32_dpp {v(r)}, {v(r)}, {v(r)} row_shr:{sh} row_mask:0xf bank_mask:0xf")
    a("s_nop 1")
    a(f"v_add_u32_dpp {v(r)}, {v(r)}, {v(r)} row_bcast:15 row_mask:0xa bank_mask:0xf")
    a("s_nop 1")
    a(f"v_add_u32_dpp {v(r)}, {v(r)}, {v(r)} row_bcast:31 row_mask:0xc bank_mask:0xf")

def tr_reads(a, mat, vTR, vWF):
    for t in range(8):
        for q in range(2):
            a(f"ds_read_b64_tr_b16 {v(vWF+4*t+2*q,2)}, {v(vTR)} offset:{mat*8192 + t*1024 + q*256}")

def mfma_chain(a, vWF, vX, vACC):
    for t in range(8):
        c = "0" if t == 0 else v(vACC, 16)
        a(f"v_mfma_f32_32x32x16_bf16 {v(vACC,16)}, {v(vWF+4*t,4)}, {v(vX+4*t,4)}, {c}")

def pack_chain(a, vIN, vOUT, vTMP, vBIG):
    G = range(4)
    m = lambda g: vTMP + g
    t = lambda g: vTMP + 4 + g
    sd = "dst_sel:DWORD dst_unused:UNUSED_PAD src0_sel:DWORD"
    for g in G: a(f"v_cvt_pk_bf16_f32 {v(vOUT+2*g)}, {v(vIN+4*g)}, {v(vIN+4*g+1)}")
    for g in G: a(f"v_med3_f32 {v(m(g))}, |{v(vIN+4*g+1)}|, {s(sTINY)}, {v(vBIG)}")
    for g in G: a(f"v_med3_f32 {v(t(g))}, |{v(vIN+4*g+2)}|, {s(sTINY)}, {v(vBIG)}")
    for g in G: a(f"v_add_u32 {v(m(g))}, 0x8000, {v(m(g))}")
    for g in G: a(f"v_add_u32 {v(t(g))}, 0x8000, {v(t(g))}")
    for g in G: a(f"v_sub_u32_sdwa {v(m(g))}, {v(m(g))}, {v(vOUT+2*g)} {sd} src1_sel:WORD_0")
    for g in G: a(f"v_bfi_b32 {v(vOUT+2*g)}, {s(sM7F0)}, {v(m(g))}, {v(vOUT+2*g)}")
    for g in G: a(f"v_med3_f32 {v(m(g))}, |{v(vIN+4*g+3)}|, {s(sTINY)}, {v(vBIG)}")
    for g in G: a(f"v_sub_u32_sdwa {v(t(g))}, {v(t(g))}, {v(vOUT+2*g)} {sd} src1_sel:WORD_1")
    for g in G: a(f"v_add_u32 {v(m(g))}, 0x8000, {v(m(g))}")
    for g in G: a(f"v_bfi_b32 {v(t(g))}, {s(sM7FF)}, {v(t(g))}, {v(vIN+4*g+2)}")
    for g in G: a(f"v_sub_u32_sdwa {v(m(g))}, {v(m(g))}, {v(t(g))} {sd} src1_sel:WORD_1")
    for g in G: a(f"v_perm_b32 {v(t(g))}, {v(vIN+4*g+3)}, {v(t(g))}, {s(sPERM)}")
    for g in G: a(f"v_bfi_b32 {v(vOUT+2*g+1)}, {s(sM7F0)}, {v(m(g))}, {v(t(g))}")

def pk(op, d, a0, b0, c0=None, sel=None):
    ops = f"{v(d,2)}, {a0}, {b0}" + (f", {c0}" if c0 else "")
    return f"v_pk_{op}_f32 {ops}" + (f" {sel}" if sel else "")

def gen(a):
    R = Regs(1, 128)
    vt = R.alloc(4)
    vLane = R.alloc(); vOne = R.alloc(); vJ16 = R.alloc(); vMISC = R.alloc()
    vWC = R.alloc(8)
    m0 = R.mark()
    vAUa = R.alloc(); vTR = R.alloc(); vBIG = R.alloc(); vSC = R.alloc()
    vAUP = R.alloc(16, 4)
    vX = R.alloc(32, 4); vWF = R.alloc(32, 4); vACC = R.alloc(16, 4)
    vO = vAUP; vTM = vAUP + 8

    def signal(off, ret=None):
        a("s_mov_b64 exec, 1")
        if ret is None:
            a(f"ds_add_u32 {v(vMISC)}, {v(vOne)} offset:{off}")
        else:
            a(f"ds_add_rtn_u32 {v(ret)}, {v(vMISC)}, {v(vOne)} offset:{off}")
        a("s_mov_b64 exec, -1")
    def spin(off, target, vtmp):
        l = a.uid("SP"); d = a.uid("SPD")
        a(f"s_mov_b32 {s(sSPIN)}, 0x400000")
        a(f"{l}:")
        a(f"ds_read_b32 {v(vtmp)}, {v(vMISC)} offset:{off}")
        a("s_waitcnt lgkmcnt(0)")
        a(f"v_readfirstlane_b32 {s(sT0)}, {v(vtmp)}")
        a(f"s_cmp_ge_u32 {s(sT0)}, {target}")
        a(f"s_cbranch_scc1 {d}")
        a("s_sleep 1")
        a(f"s_sub_u32 {s(sSPIN)}, {s(sSPIN)}, 1")
        a(f"s_cbranch_scc0 {l}")
        a(f"{d}:")
    def arrive(phase, vtmp):
        l = a.uid("ARR")
        a(f"s_and_b32 {s(sT1)}, s2, {NSH-1}")
        a(f"s_lshl_b32 {s(sT1)}, {s(sT1)}, 7")
        a(f"v_mov_b32 {v(vtmp)}, {s(sT1)}")
        a(f"v_mov_b32 {v(vtmp+1)}, 1")
        a(f"s_mov_b32 {s(sT1)}, {phase*FSZ}")
        a("s_mov_b64 exec, 1")
        a(f"buffer_atomic_add {v(vtmp+1)}, {v(vtmp)}, {s(rFLG,4)}, {s(sT1)} offen sc0 sc1")
        a("s_waitcnt vmcnt(0)")
        a(f"v_readfirstlane_b32 {s(sT0)}, {v(vtmp+1)}")
        a(f"s_cmp_lg_u32 {s(sT0)}, {NWG//NSH - 1}")
        a(f"s_cbranch_scc1 {l}")
        if NSH > 1:
            a(f"v_mov_b32 {v(vtmp)}, {NSH*128}")
            a(f"v_mov_b32 {v(vtmp+1)}, 1")
            a(f"buffer_atomic_add {v(vtmp+1)}, {v(vtmp)}, {s(rFLG,4)}, {s(sT1)} offen sc0 sc1")
            a("s_waitcnt vmcnt(0)")
            a(f"v_readfirstlane_b32 {s(sT0)}, {v(vtmp+1)}")
            a(f"s_cmp_lg_u32 {s(sT0)}, {NSH - 1}")
            a(f"s_cbranch_scc1 {l}")
        a(f"s_mov_b64 exec, {hx((1<<NREP)-1)}")
        a(f"v_lshlrev_b32 {v(vtmp)}, 7, {v(vLane)}")
        a(f"s_add_u32 {s(sT1)}, {s(sT1)}, {(NSH+1)*128}")
        a(f"buffer_store_dword {v(vOne)}, {v(vtmp)}, {s(rFLG,4)}, {s(sT1)} offen sc1")
        a(f"{l}:")
        a("s_mov_b64 exec, -1")
    def poll(phase, vA, vD, rF=rFLG):
        l = a.uid("POLL"); d = a.uid("POLLD")
        a(f"s_and_b32 {s(sT1)}, s2, {NREP-1}")
        a(f"s_lshl_b32 {s(sT1)}, {s(sT1)}, 7")
        a(f"s_add_u32 {s(sT1)}, {s(sT1)}, {phase*FSZ + (NSH+1)*128}")
        a(f"v_mov_b32 {v(vA)}, {s(sT1)}")
        a(f"s_mov_b32 {s(sSPIN)}, 0x100000")
        a(f"s_mov_b64 exec, 1")
        a(f"{l}:")
        a(f"buffer_load_dword {v(vD)}, {v(vA)}, {s(rF,4)}, 0 offen sc1")
        a("s_waitcnt vmcnt(0)")
        a(f"v_cmp_eq_u32 vcc, 0, {v(vD)}")
        a(f"s_cbranch_vccz {d}")
        a(f"s_sleep {SLP}")
        a(f"s_sub_u32 {s(sSPIN)}, {s(sSPIN)}, 1")
        a(f"s_cbranch_scc0 {l}")
        a(f"{d}:")
        a("s_mov_b64 exec, -1")
    def x_dma(vA, vB, split=None, thr=0):
        a(f"v_lshrrev_b32 {v(vA)}, 4, {v(vLane)}")
        a(f"v_and_b32 {v(vB)}, 15, {v(vLane)}")
        a(f"v_xor_b32 {v(vB)}, {v(vB)}, {v(vA)}")
        a(f"v_lshlrev_b32 {v(vB)}, 4, {v(vB)}")
        a(f"s_lshl_b32 {s(sT0)}, {s(sTILE)}, 5")
        a(f"v_add_u32 {v(vA)}, {s(sT0)}, {v(vA)}")
        a(f"s_mul_i32 {s(sT0)}, {s(sBK)}, {NPB*256}")
        a(f"v_lshl_add_u32 {v(vA+3)}, {v(vA)}, 8, {s(sT0)}")
        a(f"v_sub_u32 {v(vA)}, {NPB-1}, {v(vA)}")
        a(f"s_mov_b32 m0, {s(sXS)}")
        a(f"s_brev_b32 {s(sT1)}, 1")
        for i in range(8):
            if split is not None and i == split:
                spin(M_XCNT, 4, vt)
                a(f"s_brev_b32 {s(sT1)}, 1")
            a(f"v_xor_b32 {v(vA+2)}, {(i&3)*64}, {v(vB)}")
            a(f"v_add_u32 {v(vA+2)}, {v(vA+2)}, {v(vA+3)}")
            a(f"v_and_or_b32 {v(vA+2)}, {v(vA)}, {s(sT1)}, {v(vA+2)}")
            if thr and i >= thr: a(f"s_waitcnt vmcnt({thr-1})")
            a(f"buffer_load_dwordx4 {v(vA+2)}, {s(rX,4)}, 0 offen lds")
            if i < 7:
                a(f"s_add_u32 m0, m0, 1024")
                a(f"v_add_u32 {v(vA+3)}, 0x400, {v(vA+3)}")
                a(f"v_subrev_u32 {v(vA)}, 4, {v(vA)}")

    a.raw(f".globl {KNAME}")
    a.raw(".p2align 8")
    a.raw(f".type {KNAME},@function")
    a.raw(f"{KNAME}:")
    a(f"s_cmp_ge_u32 s2, {NWG}")
    a(f"s_cbranch_scc1 K_END")
    a("s_load_dwordx16 s[16:31], s[0:1], 0")
    a("s_load_dwordx8 s[32:39], s[0:1], 64")
    a(f"v_lshrrev_b32 v1, 6, v0")
    a(f"s_and_b32 {s(sSL)}, s2, 3")
    a(f"v_readfirstlane_b32 {s(sWAVE)}, v1")
    a(f"s_lshr_b32 {s(sBK)}, s2, 2")
    a(f"v_and_b32 {v(vLane)}, 63, v0")
    a(f"v_mov_b32 {v(vOne)}, 1")
    a(f"v_mov_b32 {v(vMISC)}, {L_MISC}")
    nz = (L_ZEND - L_Z) // 4
    a(f"v_lshlrev_b32 {v(vt)}, 2, v0")
    a(f"v_add_u32 {v(vt)}, {L_Z}, {v(vt)}")
    a(f"v_mov_b32 {v(vt+1)}, 0")
    a(f"v_cmp_gt_u32 vcc, {nz}, v0")
    a("s_mov_b64 exec, vcc")
    a(f"ds_write_b32 {v(vt)}, {v(vt+1)}")
    a("s_mov_b64 exec, -1")
    a(f"v_and_b32 {v(vJ16)}, 3, v0")
    a(f"v_lshlrev_b32 {v(vJ16)}, 4, {v(vJ16)}")
    a(f"s_sub_u32 {s(sTILE)}, {s(sWAVE)}, 4")
    a(f"s_cselect_b32 {s(sTILE)}, 12, {s(sTILE)}")
    a(f"s_lshl_b32 {s(sXS)}, {s(sTILE)}, 13")
    a(f"s_cmp_ge_u32 {s(sWAVE)}, 4")
    a("s_waitcnt lgkmcnt(0)")
    a(f"s_lshl_b32 {s(sSL64)}, {s(sSL)}, 6")
    stamp(a, 0, vACC)
    srd(a, rX, pX, N*256)
    srd(a, rC, pWC, 256)
    srd(a, rFLG, pWS, 2*FSZ, WS_FLAG)
    a(f"s_cmp_ge_u32 {s(sWAVE)}, 4")
    a("s_cbranch_scc1 K_G0")
    vD8 = vX; vS8 = vX + 8; vE4 = vX + 16; vRK = vX + 20; vKY = vWF; vRP = vWF + 8; vCN = vWF + 24; vEX = vWF + 25
    a(f"s_cmp_lg_u32 s2, 0")
    a("s_cbranch_scc1 K_NOZ")
    a(f"s_cmp_lg_u32 {s(sWAVE)}, 3")
    a("s_cbranch_scc1 K_NOZ")
    a(f"v_lshlrev_b32 {v(vt)}, 7, {v(vLane)}")
    a(f"buffer_store_dword {v(vt+1)}, {v(vt)}, {s(rFLG,4)}, 0 offen sc1")
    a("K_NOZ:")
    if opt("hprio"): a("s_setprio 3")
    a(f"s_cmp_eq_u32 {s(sWAVE)}, 1")
    a(f"s_cselect_b32 {s(rW)}, {s(pWV)}, {s(pWB)}")
    a(f"s_cselect_b32 {s(rW+1)}, {s(pWV+1)}, {s(pWB+1)}")
    a(f"s_cmp_eq_u32 {s(sWAVE)}, 2")
    a(f"s_cselect_b32 {s(rW)}, {s(pWA)}, {s(rW)}")
    a(f"s_cselect_b32 {s(rW+1)}, {s(pWA+1)}, {s(rW+1)}")
    a(f"s_cmp_eq_u32 {s(sWAVE)}, 3")
    a(f"s_cselect_b32 {s(rW)}, {s(pWU)}, {s(rW)}")
    a(f"s_cselect_b32 {s(rW+1)}, {s(pWU+1)}, {s(rW+1)}")
    a(f"s_and_b32 {s(rW+1)}, {s(rW+1)}, 0xffff")
    a(f"s_mov_b32 {s(rW+2)}, {128*256}")
    a(f"s_mov_b32 {s(rW+3)}, 0x20000")
    a(f"v_lshrrev_b32 {v(vt)}, 2, {v(vLane)}")
    a(f"v_lshl_add_u32 {v(vt)}, {v(vt)}, 8, {v(vJ16)}")
    a(f"s_lshl_b32 {s(sT0)}, {s(sWAVE)}, 13")
    a(f"s_add_u32 m0, {s(sT0)}, {L_WL}")
    a(f"s_mov_b32 {s(sT1)}, {s(sSL64)}")
    for i in range(8):
        a(f"buffer_load_dwordx4 {v(vt)}, {s(rW,4)}, {s(sT1)} offen lds")
        if i < 7:
            a(f"s_add_u32 m0, m0, 1024")
            a(f"s_add_u32 {s(sT1)}, {s(sT1)}, 4096")
    srd(a, rA, pDST, E*4); srd(a, rB, pSRC, E*4); srd(a, rDESC, pE, E*2)
    a(f"s_mul_i32 {s(sT0)}, s2, {CH}")
    a(f"v_lshl_add_u32 {v(vt)}, v0, 2, {s(sT0)}")
    a(f"v_add_u32 {v(vt+1)}, {CH//2}, {v(vt)}")
    a(f"s_mov_b32 {s(sT1)}, {E}")
    a(f"v_cmp_gt_u32 vcc, {CH//8}, v0")
    a(f"v_cmp_gt_u32 {s(sVAL,2)}, {s(sT1)}, {v(vt)}")
    a(f"v_cmp_gt_u32 {s(sVAL2,2)}, {s(sT1)}, {v(vt+1)}")
    a(f"v_lshlrev_b32 {v(vt+2)}, 2, {v(vt)}")
    a(f"v_lshlrev_b32 {v(vt+3)}, 1, {v(vt)}")
    a(f"s_and_b64 {s(sVAL,2)}, {s(sVAL,2)}, vcc")
    a(f"s_and_b64 {s(sVAL2,2)}, {s(sVAL2,2)}, vcc")
    a("s_mov_b64 exec, vcc")
    a(f"buffer_load_dwordx4 {v(vD8,4)}, {v(vt+2)}, {s(rA,4)}, 0 offen")
    a(f"buffer_load_dwordx4 {v(vD8+4,4)}, {v(vt+2)}, {s(rA,4)}, 0 offen offset:{CH*2}")
    a(f"buffer_load_dwordx4 {v(vS8,4)}, {v(vt+2)}, {s(rB,4)}, 0 offen")
    a(f"buffer_load_dwordx4 {v(vS8+4,4)}, {v(vt+2)}, {s(rB,4)}, 0 offen offset:{CH*2}")
    a(f"buffer_load_dwordx2 {v(vE4,2)}, {v(vt+3)}, {s(rDESC,4)}, 0 offen")
    a(f"buffer_load_dwordx2 {v(vE4+2,2)}, {v(vt+3)}, {s(rDESC,4)}, 0 offen offset:{CH}")
    a("s_mov_b64 exec, -1")
    a(f"s_cmp_lg_u32 {s(sWAVE)}, 0")
    a("s_cbranch_scc1 K_G0")
    x_dma(vACC, vACC + 1)
    a("K_G0:")
    a(f"buffer_load_dwordx4 {v(vWC,4)}, {v(vJ16)}, {s(rC,4)}, {s(sSL64)} offen")
    a("s_barrier")
    a(f"s_cmp_lt_u32 {s(sWAVE)}, 4")
    a("s_cbranch_scc1 K_C0")
    x_dma(vACC, vACC + 1, int(opt("xsplit")) if opt("xsplit") else None, int(opt("thr", 0)))
    a("K_C0:")
    a(f"s_mov_b32 {s(sMHI)}, 0xffff0000")
    a(f"s_mov_b32 {s(sM7F0)}, 0x7fff0000")
    a(f"s_mov_b32 {s(sM7FF)}, 0x7fffffff")
    a(f"s_mov_b32 {s(sTINY)}, 0x00800000")
    a(f"s_mov_b32 {s(sPERM)}, 0x07060302")
    a(f"s_mov_b32 {s(sNL2E)}, {hx(fbits(-LOG2E))}")
    a(f"s_mul_i32 {s(sT0)}, {s(sSL)}, {TS}")
    srd(a, rT, pWS, N*128, s(sT0))
    srd(a, rREC, pWS, NWG*CHB, WS_REC)
    srd(a, rDESC, pWS, 65536, WS_DESC)
    srd(a, rA, pOUT, N*256)
    srd(a, rDBG, pDBG, 256)
    a(f"v_lshrrev_b32 {v(vTR)}, 5, {v(vLane)}")
    a(f"v_lshlrev_b32 {v(vTR)}, 3, {v(vTR)}")
    a(f"v_bfe_u32 {v(vt)}, {v(vLane)}, 2, 2")
    a(f"v_add_u32 {v(vTR)}, {v(vTR)}, {v(vt)}")
    a(f"v_lshlrev_b32 {v(vTR)}, 6, {v(vTR)}")
    a(f"v_bfe_u32 {v(vt)}, {v(vLane)}, 4, 1")
    a(f"v_lshl_add_u32 {v(vTR)}, {v(vt)}, 5, {v(vTR)}")
    a(f"v_and_b32 {v(vt)}, 1, {v(vLane)}")
    a(f"v_lshl_add_u32 {v(vTR)}, {v(vt)}, 4, {v(vTR)}")
    a(f"v_and_b32 {v(vt)}, 2, {v(vLane)}")
    a(f"v_lshl_add_u32 {v(vTR)}, {v(vt)}, 2, {v(vTR)}")
    a(f"v_add_u32 {v(vTR)}, {L_WL}, {v(vTR)}")
    a(f"v_mov_b32 {v(vBIG)}, 0x7f7f7fff")
    a(f"v_and_b32 {v(vt)}, 31, {v(vLane)}")
    a(f"v_mul_u32_u24 {v(vt)}, {AUS}, {v(vt)}")
    a(f"v_lshrrev_b32 {v(vt+1)}, 5, {v(vLane)}")
    a(f"v_lshl_add_u32 {v(vt)}, {v(vt+1)}, 4, {v(vt)}")
    a(f"v_add_u32 {v(vSC)}, {s(sXS)}, {v(vt)}")
    a(f"s_mul_i32 {s(sT0)}, {s(sTILE)}, {32*AUS}")
    a(f"s_add_u32 {s(sT0)}, {s(sT0)}, {L_AU}")
    a(f"v_add_u32 {v(vAUa)}, {s(sT0)}, {v(vt)}")
    a(f"s_cmp_ge_u32 {s(sWAVE)}, 4")
    a("s_cbranch_scc1 K_GEMM")
    a(f"s_cmp_eq_u32 {s(sWAVE)}, 0")
    a("s_cbranch_scc1 K_W0")
    a("s_waitcnt vmcnt(1)")
    a("K_W0:")
    a("s_waitcnt vmcnt(9)")
    signal(M_WRDY)
    stamp(a, 1, vACC, 1)
    a(f"s_cmp_lg_u32 s2, 0")
    a("s_cbranch_scc1 K_NOGO")
    a(f"s_cmp_lg_u32 {s(sWAVE)}, 3")
    a("s_cbranch_scc1 K_NOGO")
    a(f"v_mov_b32 {v(vt)}, 0")
    a("s_mov_b64 exec, 1")
    a(f"buffer_store_dword {v(vOne)}, {v(vt)}, {s(rDBG,4)}, 0 offen sc1")
    a("s_mov_b64 exec, -1")
    a("K_NOGO:")
    a(f"s_mov_b32 {s(sT0)}, {L_CNTA}")
    a(f"s_mov_b32 {s(sT1)}, {-NPB & 0xffffffff}")
    for i in range(8):
        a(f"v_mul_u32_u24 {v(vt)}, {MAGIC}, {v(vD8+i)}")
        a(f"v_lshrrev_b32 {v(vt)}, 24, {v(vt)}")
        a(f"v_mad_i32_i24 {v(vD8+i)}, {v(vt)}, {s(sT1)}, {v(vD8+i)}")
        a(f"v_and_b32 {v(vKY+i)}, 62, {v(vt)}")
        a(f"v_and_b32 {v(vt)}, 1, {v(vt)}")
        a(f"v_lshlrev_b32 {v(vKY+i)}, 1, {v(vKY+i)}")
        a(f"v_lshl_or_b32 {v(vKY+i)}, {v(vt)}, 7, {v(vKY+i)}")
        a(f"v_add_u32 {v(vRP+i)}, {s(sT0)}, {v(vKY+i)}")
    for i in range(8):
        if i % 4 == 0: a(f"s_mov_b64 exec, {s(sVAL if i == 0 else sVAL2,2)}")
        a(f"ds_add_rtn_u32 {v(vRK+i)}, {v(vRP+i)}, {v(vOne)}")
    a("s_mov_b64 exec, -1")
    a("s_waitcnt lgkmcnt(0)")
    signal(M_HS1)
    for i in range(8):
        e = vE4 + i // 2
        if i % 2 == 0: a(f"v_lshl_or_b32 {v(vRP+2*i)}, {v(e)}, 16, {v(vS8+i)}")
        else:          a(f"v_and_or_b32 {v(vRP+2*i)}, {v(e)}, {s(sMHI)}, {v(vS8+i)}")
        a(f"v_mov_b32 {v(vRP+2*i+1)}, {v(vD8+i)}")
    spin(M_HS1, 4, vt)
    a(f"v_lshlrev_b32 {v(vt)}, 2, {v(vLane)}")
    a(f"v_add_u32 {v(vt+1)}, {L_CNTA}, {v(vt)}")
    a(f"ds_read_b32 {v(vCN)}, {v(vt+1)}")
    a("s_waitcnt lgkmcnt(0)")
    a(f"v_mov_b32 {v(vEX)}, {v(vCN)}")
    scan64(a, vEX)
    a(f"v_sub_u32 {v(vEX)}, {v(vEX)}, {v(vCN)}")
    for i in range(8):
        a(f"ds_bpermute_b32 {v(vD8+i)}, {v(vKY+i)}, {v(vEX)}")
    a(f"v_lshl_or_b32 {v(vCN)}, {v(vCN)}, 16, {v(vEX)}")
    a(f"s_mov_b32 {s(sT0)}, {L_STAGE // 8}")
    for i in range(8):
        a(f"s_waitcnt lgkmcnt({7-i})")
        a(f"v_add3_u32 {v(vD8+i)}, {v(vD8+i)}, {v(vRK+i)}, {s(sT0)}")
        a(f"v_lshlrev_b32 {v(vD8+i)}, 3, {v(vD8+i)}")
    for i in range(8):
        if i % 4 == 0: a(f"s_mov_b64 exec, {s(sVAL if i == 0 else sVAL2,2)}")
        a(f"ds_write_b64 {v(vD8+i)}, {v(vRP+2*i,2)}")
    a("s_mov_b64 exec, -1")
    a("s_waitcnt lgkmcnt(0)")
    signal(M_HS2)
    a(f"s_cmp_lg_u32 {s(sWAVE)}, 2")
    a("s_cbranch_scc1 K_NODESC")
    a(f"s_lshl_b32 {s(sT1)}, s2, 8")
    a(f"buffer_store_dword {v(vCN)}, {v(vt)}, {s(rDESC,4)}, {s(sT1)} offen sc1")
    a("K_NODESC:")
    a(f"v_lshlrev_b32 {v(vt+1)}, 4, v0")
    a(f"v_add_u32 {v(vt+2)}, {L_STAGE}, {v(vt+1)}")
    spin(M_HS2, 4, vt+3)
    for i in range(4):
        a(f"ds_read_b128 {v(vX+4*i,4)}, {v(vt+2)} offset:{i*4096}")
    a(f"s_mul_i32 {s(sT0)}, s2, {CHB}")
    for i in range(3):
        a(f"s_waitcnt lgkmcnt({3-i})")
        a(f"buffer_store_dwordx4 {v(vX+4*i,4)}, {v(vt+1)}, {s(rREC,4)}, {s(sT0)} offen sc1")
        a(f"s_add_u32 {s(sT0)}, {s(sT0)}, 4096")
    a("s_waitcnt lgkmcnt(0)")
    a(f"s_cmp_lg_u32 {s(sWAVE)}, 0")
    a("s_cbranch_scc1 K_NOLAST")
    a("s_mov_b64 exec, 0xffff")
    a(f"buffer_store_dwordx4 {v(vX+12,4)}, {v(vt+1)}, {s(rREC,4)}, {s(sT0)} offen sc1")
    a("s_mov_b64 exec, -1")
    a("K_NOLAST:")
    signal(M_XCNT)
    stamp(a, 2, vACC, 1)
    a(f"v_mov_b32 {v(vt+2)}, 0")
    a(f"s_mov_b32 {s(sSPIN)}, 0x100000")
    a("K_GOL:")
    a(f"buffer_load_dword {v(vt+3)}, {v(vt+2)}, {s(rDBG,4)}, 0 offen sc1")
    a("s_waitcnt vmcnt(0)")
    a(f"v_readfirstlane_b32 {s(sT0)}, {v(vt+3)}")
    a(f"s_cmp_lg_u32 {s(sT0)}, 0")
    a("s_cbranch_scc1 K_GOD")
    a(f"s_sub_u32 {s(sSPIN)}, {s(sSPIN)}, 1")
    a("s_cbranch_scc0 K_GOL")
    a("K_GOD:")
    signal(M_HS3, vt+3)
    a("s_waitcnt lgkmcnt(0)")
    a(f"v_readfirstlane_b32 {s(sT0)}, {v(vt+3)}")
    a(f"s_cmp_lg_u32 {s(sT0)}, 3")
    a("s_cbranch_scc1 K_NOFLAGA")
    arrive(0, vt+2)
    stamp(a, 3, vACC, -1)
    a("K_NOFLAGA:")
    a(f"s_cmp_eq_u32 {s(sWAVE)}, 0")
    a("s_cbranch_scc1 K_GEMM")
    a(f"s_cmp_lg_u32 {s(sWAVE)}, 3")
    a("s_cbranch_scc1 K_RECS")
    if opt("latepoll"): spin(M_GCNT, 13, vt+1)
    poll(0, vt+1, vt+2)
    stamp(a, 4, vACC, 3)
    a(f"s_lshr_b32 {s(sT0)}, {s(sBK)}, 1")
    a(f"s_and_b32 {s(sT1)}, {s(sBK)}, 1")
    a(f"s_lshl_b32 {s(sT1)}, {s(sT1)}, 5")
    a(f"s_or_b32 {s(sT0)}, {s(sT0)}, {s(sT1)}")
    a(f"s_lshl_b32 {s(sT0)}, {s(sT0)}, 2")
    a(f"v_lshlrev_b32 {v(vt+1)}, 8, {v(vLane)}")
    for i in range(4):
        a(f"buffer_load_dword {v(vX+i)}, {v(vt+1)}, {s(rDESC,4)}, {s(sT0)} offen sc1")
        if i < 3: a(f"s_add_u32 {s(sT0)}, {s(sT0)}, 16384")
    a(f"v_add_u32 {v(vt+1)}, {L_DESC}, {v(vt)}")
    for i in range(4):
        a(f"s_waitcnt vmcnt({3-i})")
        a(f"ds_write_b32 {v(vt+1)}, {v(vX+i)} offset:{i*256}")
    a("s_waitcnt lgkmcnt(0)")
    signal(M_DRDY)
    stamp(a, 5, vACC, 3)
    a("s_branch K_RECS")
    a("K_GEMM:")
    spin(M_WRDY, 4, vt)
    tr_reads(a, 0, vTR, vWF)
    a(f"v_and_b32 {v(vt)}, 31, {v(vLane)}")
    a(f"v_lshlrev_b32 {v(vt+1)}, 8, {v(vt)}")
    a(f"v_add_u32 {v(vt+1)}, {s(sXS)}, {v(vt+1)}")
    a(f"v_lshrrev_b32 {v(vt+2)}, 5, {v(vLane)}")
    a(f"v_xor_b32 {v(vt)}, {v(vt)}, {v(vt+2)}")
    a(f"v_and_b32 {v(vt)}, 15, {v(vt)}")
    a(f"v_lshlrev_b32 {v(vt)}, 4, {v(vt)}")
    for t in range(8):
        a(f"v_xor_b32 {v(vACC+t)}, {t*32}, {v(vt)}")
        a(f"v_add_u32 {v(vACC+t)}, {v(vACC+t)}, {v(vt+1)}")
    a("s_waitcnt vmcnt(0)")
    stamp(a, 6, vAUP, 4)
    stamp(a, 7, vAUP, 15)
    if opt("gprio"): a("s_setprio 3")
    for t in range(8):
        a(f"ds_read_b128 {v(vX+4*t,4)}, {v(vACC+t)}")
    a("s_waitcnt lgkmcnt(0)")
    for mat in range(2):
        mfma_chain(a, vWF, vX, vACC)
        tr_reads(a, mat + 1, vTR, vWF)
        if mat == 0:
            for r in range(16): a(f"v_mul_f32 {v(vACC+r)}, {s(sNL2E)}, {v(vACC+r)}")
        pack_chain(a, vACC, vO, vTM, vBIG)
        a(f"ds_write_b128 {v(vSC)}, {v(vO,4)} offset:{mat*64}")
        a(f"ds_write_b128 {v(vSC)}, {v(vO+4,4)} offset:{mat*64+32}")
        if mat == 0: a("s_waitcnt lgkmcnt(2)")
    a(f"v_lshrrev_b32 {v(vt)}, 3, {v(vLane)}")
    a(f"v_and_b32 {v(vt+1)}, 7, {v(vLane)}")
    a(f"v_lshlrev_b32 {v(vt+1)}, 4, {v(vt+1)}")
    a(f"v_mul_u32_u24 {v(vt+2)}, {AUS}, {v(vt)}")
    a(f"v_add3_u32 {v(vt+2)}, {v(vt+2)}, {v(vt+1)}, {s(sXS)}")
    a(f"s_lshl_b32 {s(sT0)}, {s(sTILE)}, 5")
    a(f"v_add_u32 {v(vt)}, {s(sT0)}, {v(vt)}")
    a(f"v_sub_u32 {v(vt+3)}, {NPB-1}, {v(vt)}")
    a(f"v_lshl_add_u32 {v(vt)}, {v(vt)}, 7, {v(vt+1)}")
    a(f"s_mul_i32 {s(sT0)}, {s(sBK)}, {NPB*128}")
    a(f"v_add_u32 {v(vt)}, {s(sT0)}, {v(vt)}")
    a(f"s_brev_b32 {s(sT1)}, 1")
    a("s_waitcnt lgkmcnt(0)")
    for i in range(4):
        a(f"ds_read_b128 {v(vAUP+4*i,4)}, {v(vt+2)} offset:{i*8*AUS}")
    if not opt("gprio"): mfma_chain(a, vWF, vX, vACC)
    for i in range(4):
        a(f"s_waitcnt lgkmcnt({3-i})")
        a(f"v_and_or_b32 {v(vt+1)}, {v(vt+3)}, {s(sT1)}, {v(vt)}")
        a(f"buffer_store_dwordx4 {v(vAUP+4*i,4)}, {v(vt+1)}, {s(rT,4)}, 0 offen offset:{i*1024}{TST}")
        if i < 3: a(f"v_subrev_u32 {v(vt+3)}, 8, {v(vt+3)}")
    signal(M_XCNT)
    stamp(a, 8, vt, 15)
    if opt("gprio"):
        a("s_setprio 0")
        mfma_chain(a, vWF, vX, vACC)
    tr_reads(a, 3, vTR, vWF)
    for r in range(16): a(f"v_mul_f32 {v(vACC+r)}, {s(sNL2E)}, {v(vACC+r)}")
    for d in range(8): a(f"v_cvt_pk_bf16_f32 {v(vAUP+d)}, {v(vACC+2*d)}, {v(vACC+2*d+1)}")
    a("s_waitcnt lgkmcnt(0)")
    mfma_chain(a, vWF, vX, vACC)
    a("s_nop 11")
    for d in range(8): a(f"v_cvt_pk_bf16_f32 {v(vAUP+8+d)}, {v(vACC+2*d)}, {v(vACC+2*d+1)}")
    a("s_waitcnt vmcnt(0)")
    signal(M_GCNT, vt+3)
    a("s_waitcnt lgkmcnt(0)")
    a(f"v_readfirstlane_b32 {s(sT0)}, {v(vt+3)}")
    a(f"s_cmp_lg_u32 {s(sT0)}, 12")
    a("s_cbranch_scc1 K_NOFLAGB")
    spin(M_HS3, 4, vt+3)
    arrive(1, vt+2)
    stamp(a, 9, vACC, -1)
    a("K_NOFLAGB:")
    spin(M_XCNT, 17, vt+3)
    for q in range(4):
        a(f"ds_write_b128 {v(vAUa)}, {v(vAUP+4*q,4)} offset:{q*32}")
    a("K_RECS:")
    if opt("hprio"): a("s_setprio 0")
    vDS = vX; vRC = vX + 8; vRC2 = vX + 24; vRK8 = vX + 40; vAD = vX + 48; vI = vX + 56; vRB = vX + 57; vML = vX + 58
    for d in range(4): a(f"v_and_b32 {v(vWC+4+d)}, {s(sMHI)}, {v(vWC+d)}")
    for d in range(4): a(f"v_lshlrev_b32 {v(vWC+d)}, 16, {v(vWC+d)}")
    for d in range(8): a(f"v_mul_f32 {v(vWC+d)}, {s(sNL2E)}, {v(vWC+d)}")
    a(f"v_lshrrev_b32 {v(vt)}, 5, {v(vLane)}")
    a(f"s_lshl_b32 {s(sT0)}, {s(sWAVE)}, 4")
    a(f"v_add_u32 {v(vt)}, {s(sT0)}, {v(vt)}")
    a(f"v_and_b32 {v(vI)}, 31, {v(vLane)}")
    a(f"s_mov_b32 {s(sT0)}, {CHB}")
    a(f"v_mul_lo_u32 {v(vRB)}, {v(vt)}, {s(sT0)}")
    a(f"v_lshl_add_u32 {v(vRB)}, {v(vI)}, 3, {v(vRB)}")
    a(f"v_lshlrev_b32 {v(vt)}, 2, {v(vt)}")
    a(f"v_add_u32 {v(vt)}, {L_DESC}, {v(vt)}")
    spin(M_DRDY, 1, vt+3)
    for it in range(0, 8, 2):
        a(f"ds_read2_b32 {v(vDS+it,2)}, {v(vt)} offset0:{2*it} offset1:{2*it+2}")
    a(f"s_mov_b32 {s(sBASE)}, 0")
    a(f"s_mov_b64 {s(sOVF,2)}, 0")
    a(f"v_mov_b32 {v(vML)}, 0")
    a(f"v_mov_b32 {v(vt+1)}, 8")
    a(f"v_mov_b32 {v(vt+2)}, {STRIDE}")
    a("s_waitcnt lgkmcnt(0)")
    for it in range(8):
        a(f"v_lshrrev_b32 {v(vt)}, 16, {v(vDS+it)}")
        a(f"v_max_u32 {v(vML)}, {v(vML)}, {v(vt)}")
    sM2 = 16
    a("K_SWEEP:")
    a(f"v_add_u32 {v(vt+3)}, 32, {v(vI)}")
    for it in range(8):
        a(f"v_mad_u32_u16 {v(vAD+it)}, {v(vDS+it)}, {v(vt+1)}, {v(vRB)}")
        a(f"s_mov_b32 {s(sT0)}, {it*2*CHB}")
        a(f"buffer_load_dwordx2 {v(vRC+2*it,2)}, {v(vAD+it)}, {s(rREC,4)}, {s(sT0)} offen sc1")
        a(f"v_cmp_lt_u32_sdwa {s(sMSK+2*it,2)}, {v(vI)}, {v(vDS+it)} src0_sel:DWORD src1_sel:WORD_1")
        a(f"v_cmp_lt_u32_sdwa {s(sM2+2*it,2)}, {v(vt+3)}, {v(vDS+it)} src0_sel:DWORD src1_sel:WORD_1")
    for it in range(8):
        l = a.uid("S2")
        a(f"s_cmp_eq_u64 {s(sM2+2*it,2)}, 0")
        a(f"s_cbranch_scc1 {l}")
        a(f"s_mov_b32 {s(sT0)}, {it*2*CHB}")
        a(f"buffer_load_dwordx2 {v(vRC2+2*it,2)}, {v(vAD+it)}, {s(rREC,4)}, {s(sT0)} offen offset:256 sc1")
        a(f"{l}:")
    spin(M_XCNT, 17, vt)
    stamp(a, 10, vACC, 8)
    a("s_waitcnt vmcnt(0)")
    stamp(a, 11, vACC, 8)
    def proc(rc, msk, its):
        a(f"s_mov_b32 {s(sT0)}, {L_CNT}")
        for it in its: a(f"v_lshl_add_u32 {v(vAD+it)}, {v(rc+2*it+1)}, 2, {s(sT0)}")
        for it in its:
            a(f"s_mov_b64 exec, {s(msk+2*it,2)}")
            a(f"ds_add_rtn_u32 {v(vRK8+it)}, {v(vAD+it)}, {v(vOne)}")
        a("s_mov_b64 exec, -1")
        for j, it in enumerate(its):
            a(f"s_waitcnt lgkmcnt({len(its)-1-j})")
            a(f"v_mad_u32_u24 {v(vAD+it)}, {v(rc+2*it+1)}, {v(vt+2)}, {v(vRK8+it)}")
            a(f"v_cmp_gt_u32 vcc, {STRIDE}, {v(vRK8+it)}")
            a(f"v_lshlrev_b32 {v(vAD+it)}, 2, {v(vAD+it)}")
            a(f"s_andn2_b64 {s(sT2,2)}, {s(msk+2*it,2)}, vcc")
            a(f"s_and_b64 {s(msk+2*it,2)}, {s(msk+2*it,2)}, vcc")
            a(f"s_or_b64 {s(sOVF,2)}, {s(sOVF,2)}, {s(sT2,2)}")
        for it in its:
            if opt("fakesrc"): a(f"v_and_b32 {v(rc+2*it)}, {opt('fakesrc')}, {v(rc+2*it)}")
            a(f"s_mov_b64 exec, {s(msk+2*it,2)}")
            a(f"ds_write_b32 {v(vAD+it)}, {v(rc+2*it)} offset:{L_LIST}")
        a("s_mov_b64 exec, -1")
    proc(vRC, sMSK, list(range(8)))
    for it in range(8):
        l = a.uid("P2")
        a(f"s_cmp_eq_u64 {s(sM2+2*it,2)}, 0")
        a(f"s_cbranch_scc1 {l}")
        proc(vRC2, sM2, [it])
        a(f"{l}:")
    a(f"s_add_u32 {s(sBASE)}, {s(sBASE)}, 64")
    a(f"v_add_u32 {v(vI)}, 64, {v(vI)}")
    a(f"v_add_u32 {v(vRB)}, 512, {v(vRB)}")
    a(f"v_cmp_lt_u32 vcc, {s(sBASE)}, {v(vML)}")
    a("s_cbranch_vccnz K_SWEEP")
    a("s_waitcnt lgkmcnt(0)")
    a("s_barrier")
    stamp(a, 12, vACC)
    srd(a, rB, pWS, 2*FSZ, WS_FLAG)
    vDG = vX; vBN = vX + 1; vR2 = vX + 2; vBC = vX + 3; vBE = vX + 4
    a(f"s_movk_i32 {s(sT0)}, {NLOC}")
    a(f"v_cmp_gt_u32 {s(sVAL,2)}, {s(sT0)}, v0")
    a(f"v_lshlrev_b32 {v(vt)}, 2, v0")
    a(f"v_add_u32 {v(vt)}, {L_CNT}, {v(vt)}")
    a(f"s_mov_b64 exec, {s(sVAL,2)}")
    a(f"ds_read_b32 {v(vDG)}, {v(vt)}")
    a("s_waitcnt lgkmcnt(0)")
    a(f"v_min_u32 {v(vDG)}, {STRIDE}, {v(vDG)}")
    a(f"v_sub_u32 {v(vBN)}, 63, {v(vDG)}")
    a(f"v_lshlrev_b32 {v(vBN)}, 2, {v(vBN)}")
    a(f"v_add_u32 {v(vt)}, {L_BINS}, {v(vBN)}")
    a(f"ds_add_rtn_u32 {v(vR2)}, {v(vt)}, {v(vOne)}")
    a("s_mov_b64 exec, -1")
    a("s_waitcnt lgkmcnt(0)")
    a("s_barrier")
    a(f"s_cmp_lg_u32 {s(sWAVE)}, 15")
    a("s_cbranch_scc1 K_NOPOLLB")
    poll(1, vt, vt+1, rB)
    stamp(a, 13, vACC, 15)
    a("K_NOPOLLB:")
    a(f"s_cmp_ge_u32 {s(sWAVE)}, {(NLOC+63)//64}")
    a("s_cbranch_scc1 K_NOPERM")
    a(f"v_lshlrev_b32 {v(vt)}, 2, {v(vLane)}")
    a(f"v_add_u32 {v(vt)}, {L_BINS}, {v(vt)}")
    a(f"ds_read_b32 {v(vBC)}, {v(vt)}")
    a("s_waitcnt lgkmcnt(0)")
    a(f"v_mov_b32 {v(vBE)}, {v(vBC)}")
    scan64(a, vBE)
    a(f"v_sub_u32 {v(vBE)}, {v(vBE)}, {v(vBC)}")
    a(f"ds_bpermute_b32 {v(vt)}, {v(vBN)}, {v(vBE)}")
    a(f"v_lshl_or_b32 {v(vDG)}, {v(vDG)}, 16, v0")
    a("s_waitcnt lgkmcnt(0)")
    a(f"v_add_lshl_u32 {v(vt)}, {v(vt)}, {v(vR2)}, 2")
    a(f"v_add_u32 {v(vt)}, {L_PERM}, {v(vt)}")
    a(f"s_mov_b64 exec, {s(sVAL,2)}")
    a(f"ds_write_b32 {v(vt)}, {v(vDG)}")
    a("s_mov_b64 exec, -1")
    a("s_waitcnt lgkmcnt(0)")
    a("K_NOPERM:")
    stamp(a, 14, vACC)
    a("s_barrier")
    stamp(a, 15, vACC)
    stamp(a, 13, vACC, 7, True)
    NB = int(opt("nbuf", 3))
    R2 = Regs(m0, 128)
    vDEN = R2.alloc(8); vNUM = R2.alloc(8); vEA = R2.alloc(8)
    vBUF = [R2.alloc(16, 4) for _ in range(NB)]
    vLa = R2.alloc(4); vLb = R2.alloc(4); vUa = R2.alloc(4); vUb = R2.alloc(4)
    vE = [R2.alloc(2) for _ in range(NB)]
    vREC = R2.alloc(2); vADR = vt
    vU = R2.alloc(4, 4); vXS = R2.alloc(4, 4)
    vINFO = vt + 2; vDEG = vt + 3; vLA = R2.alloc(); vOFF = R2.alloc()
    vPB = 0; vAUB = vLane; vOB = 1
    R.hi = max(R.hi, R2.hi)
    sSGN = sBASE; s128 = sVAL; sKG = sVAL + 1
    a(f"s_brev_b32 {s(sSGN)}, 1")
    a(f"s_movk_i32 {s(s128)}, 128")
    a(f"s_mul_i32 {s(sT0)}, {s(sBK)}, {NPB*256}")
    a(f"v_add_u32 {v(vOB)}, {s(sT0)}, {v(vJ16)}")
    a(f"v_lshrrev_b32 {v(vPB)}, 2, {v(vLane)}")
    a(f"v_lshlrev_b32 {v(vPB)}, 2, {v(vPB)}")
    a(f"v_add_u32 {v(vPB)}, {L_PERM}, {v(vPB)}")
    a(f"v_add_u32 {v(vAUB)}, {L_AU}, {v(vJ16)}")
    if PRIO: a("s_setprio 2")

    def G(nb, rec=None, nxt=True):
        B = vBUF[nb]
        rec = vREC if rec is None else rec
        a(f"v_mad_u32_u16 {v(vADR)}, {v(rec)}, {s(s128)}, {v(vJ16)}")
        a(f"v_mad_u32_u16 {v(vADR+1)}, {v(rec+1)}, {s(s128)}, {v(vJ16)}")
        a(f"v_and_b32 {v(vE[nb])}, {s(sMHI)}, {v(rec)}")
        a(f"v_and_b32 {v(vE[nb]+1)}, {s(sMHI)}, {v(rec+1)}")
        a(f"buffer_load_dwordx4 {v(B,4)}, {v(vADR)}, {s(rT,4)}, 0 offen")
        a(f"buffer_load_dwordx4 {v(B+4,4)}, {v(vADR)}, {s(rT,4)}, 0 offen offset:64")
        a(f"buffer_load_dwordx4 {v(B+8,4)}, {v(vADR+1)}, {s(rT,4)}, 0 offen")
        a(f"buffer_load_dwordx4 {v(B+12,4)}, {v(vADR+1)}, {s(rT,4)}, 0 offen offset:64")

    def front(B, L, e, hi):
        sel = "op_sel:[1,0,0] op_sel_hi:[1,1,1]" if hi else "op_sel_hi:[0,1,1]"
        prs = [L, L+2, B, B+2]
        a(f"v_lshlrev_b64 {v(L,2)}, 16, {v(B,2)}")
        a(f"v_lshlrev_b64 {v(L+2,2)}, 16, {v(B+2,2)}")
        for i in (2, 3, 0, 1):
            a(pk("fma", prs[i], v(e,2), v(vWC+2*i,2), v(prs[i],2), sel))
        for i in (2, 3, 0, 1):
            a(f"v_exp_f32 {v(prs[i])}, {v(prs[i])}")
            a(f"v_exp_f32 {v(prs[i]+1)}, {v(prs[i]+1)}")
        return prs
    def front2(prs):
        for i in (2, 3, 0, 1):
            a(pk("fma", prs[i], v(vEA+2*i,2), v(prs[i],2), "1.0", "op_sel_hi:[1,1,0]"))

    def Cpair(nb):
        if opt("novalu"): return
        B = vBUF[nb]
        Ba, Va, Bb, Vb = B, B+4, B+8, B+12
        pa = front(Ba, vLa, vE[nb], False)
        pb = front(Bb, vLb, vE[nb], True)
        a(f"v_lshlrev_b64 {v(vUa,2)}, 16, {v(Va,2)}")
        a(f"v_lshlrev_b64 {v(vUa+2,2)}, 16, {v(Va+2,2)}")
        a(f"v_lshlrev_b64 {v(vUb,2)}, 16, {v(Vb,2)}")
        a(f"v_lshlrev_b64 {v(vUb+2,2)}, 16, {v(Vb+2,2)}")
        front2(pa)
        front2(pb)
        qa = [vUa, vUa+2, Va, Va+2]; qb = [vUb, vUb+2, Vb, Vb+2]
        for i in range(4): a(pk("mul", qa[i], v(qa[i],2), v(pb[i],2)))
        for i in range(4): a(pk("fma", qa[i], v(qb[i],2), v(pa[i],2), v(qa[i],2)))
        for i in range(4): a(pk("mul", qb[i], v(pa[i],2), v(pb[i],2)))
        for i in range(4): a(pk("add", pa[i], v(pa[i],2), v(pb[i],2)))
        for i in range(4):
            a(f"v_rcp_f32 {v(qb[i])}, {v(qb[i])}")
            a(f"v_rcp_f32 {v(qb[i]+1)}, {v(qb[i]+1)}")
        for i in range(4): a(pk("fma", vNUM+2*i, v(qa[i],2), v(qb[i],2), v(vNUM+2*i,2)))
        for i in range(4): a(pk("fma", vDEN+2*i, v(pa[i],2), v(qb[i],2), v(vDEN+2*i,2)))

    def Csingle(nb, hi):
        if opt("novalu"): return
        B = vBUF[nb] + (8 if hi else 0)
        V = B + 4
        p = front(B, vLa, vE[nb], hi)
        a(f"v_lshlrev_b64 {v(vUa,2)}, 16, {v(V,2)}")
        front2(p)
        a(f"v_lshlrev_b64 {v(vUa+2,2)}, 16, {v(V+2,2)}")
        for i in (2, 3, 0, 1):
            a(f"v_rcp_f32 {v(p[i])}, {v(p[i])}")
            a(f"v_rcp_f32 {v(p[i]+1)}, {v(p[i]+1)}")
        q = [vUa, vUa+2, V, V+2]
        for i in (2, 3, 0, 1): a(pk("add", vDEN+2*i, v(vDEN+2*i,2), v(p[i],2)))
        for i in (2, 3, 0, 1): a(pk("fma", vNUM+2*i, v(q[i],2), v(p[i],2), v(vNUM+2*i,2)))

    DEP = NB - 1
    a("K_GROUP:")
    signal(M_Q, vINFO)
    a("s_waitcnt lgkmcnt(0)")
    a(f"v_readfirstlane_b32 {s(sT0)}, {v(vINFO)}")
    a(f"s_cmp_ge_u32 {s(sT0)}, {NGRP}")
    a("s_cbranch_scc1 K_DONE")
    a(f"s_lshl_b32 {s(sT0)}, {s(sT0)}, 6")
    a(f"v_add_u32 {v(vINFO)}, {s(sT0)}, {v(vPB)}")
    a(f"ds_read_b32 {v(vINFO)}, {v(vINFO)}")
    a("s_waitcnt lgkmcnt(0)")
    a(f"v_lshrrev_b32 {v(vDEG)}, 16, {v(vINFO)}")
    a(f"v_and_b32 {v(vINFO)}, 0xffff, {v(vINFO)}")
    a(f"v_mul_u32_u24 {v(vLA)}, {STRIDE*4}, {v(vINFO)}")
    for j in range(DEP):
        a(f"ds_read2_b32 {v(vLa+2*j,2)}, {v(vLA)} offset0:{2*j} offset1:{2*j+1}")
    a(f"ds_read2_b32 {v(vREC,2)}, {v(vLA)} offset0:{2*DEP} offset1:{2*DEP+1}")
    a(f"v_mul_u32_u24 {v(vADR)}, {AUS}, {v(vINFO)}")
    a(f"v_add_u32 {v(vADR)}, {v(vADR)}, {v(vAUB)}")
    a(f"ds_read_b128 {v(vEA,4)}, {v(vADR)}")
    a(f"ds_read_b128 {v(vU,4)}, {v(vADR)} offset:64")
    a(f"v_readlane_b32 {s(sMAX)}, {v(vDEG)}, 0")
    a(f"v_readlane_b32 {s(sMIN)}, {v(vDEG)}, 63")
    a(f"v_lshl_add_u32 {v(vOFF)}, {v(vINFO)}, 8, {v(vOB)}")
    a(f"v_sub_u32 {v(vINFO)}, {NPB-1}, {v(vINFO)}")
    a(f"v_and_or_b32 {v(vOFF)}, {v(vINFO)}, {s(sSGN)}, {v(vOFF)}")
    a(f"buffer_load_dwordx4 {v(vXS,4)}, {v(vOFF)}, {s(rX,4)}, {s(sSL64)} offen")
    for j in range(DEP):
        a(f"s_waitcnt lgkmcnt({DEP - j + 2})")
        G(j, vLa + 2*j)
    a("s_waitcnt lgkmcnt(1)")
    for d in range(4): a(f"v_and_b32 {v(vEA+4+d)}, {s(sMHI)}, {v(vEA+d)}")
    for d in range(4): a(f"v_lshlrev_b32 {v(vEA+d)}, 16, {v(vEA+d)}")
    for d in (4, 5, 6, 7, 0, 1, 2, 3): a(f"v_exp_f32 {v(vEA+d)}, {v(vEA+d)}")
    a(f"v_mov_b32 {v(vDEN)}, {hx(fbits(1e-6))}")
    a(f"v_mov_b32 {v(vDEN+1)}, {v(vDEN)}")
    for d in range(2, 8, 2): a(f"v_mov_b64 {v(vDEN+d,2)}, {v(vDEN,2)}")
    for d in range(0, 8, 2): a(f"v_mov_b64 {v(vNUM+d,2)}, 0")
    a(f"s_mov_b32 {s(sK)}, 0")
    a(f"s_sub_u32 {s(sKG)}, {s(sMAX)}, {2*DEP}")
    a(f"s_cmp_eq_u32 {s(sMAX)}, 0")
    a("s_cbranch_scc1 K_EPI0")
    a("K_LOOP:")
    for cur in range(NB):
        a(f"s_cmp_lt_i32 {s(sK)}, {s(sKG)}")
        a(f"s_cbranch_scc0 K_NOG{cur}")
        a("s_waitcnt lgkmcnt(0)")
        G((cur + DEP) % NB)
        a(f"ds_read2_b32 {v(vREC,2)}, {v(vLA)} offset0:{2*(DEP+1+cur)} offset1:{2*(DEP+1+cur)+1}")
        if cur == NB - 1: a(f"v_add_u32 {v(vLA)}, {8*NB}, {v(vLA)}")
        a(f"s_waitcnt vmcnt({4*DEP})")
        a(f"K_GOT{cur}:")
        a(f"s_add_u32 {s(sT0)}, {s(sK)}, 2")
        a(f"s_cmp_le_u32 {s(sT0)}, {s(sMIN)}")
        a(f"s_cbranch_scc0 K_TAIL{cur}")
        Cpair(cur)
        a(f"K_NEXT{cur}:")
        a(f"s_add_u32 {s(sK)}, {s(sK)}, 2")
        a(f"s_cmp_ge_u32 {s(sK)}, {s(sMAX)}")
        a("s_cbranch_scc1 K_EPI" if cur < NB - 1 else "s_cbranch_scc0 K_LOOP")
    a("K_EPI:")
    a("s_mov_b64 exec, -1")
    a("s_waitcnt lgkmcnt(0)")
    for d in range(8): a(f"v_rcp_f32 {v(vDEN+d)}, {v(vDEN+d)}")
    Uu = vUa; Xu = vLa
    assert vLb == vLa + 4 and vUb == vUa + 4
    for d in range(4):
        a(f"v_lshlrev_b32 {v(Uu+d)}, 16, {v(vU+d)}")
        a(f"v_and_b32 {v(Uu+4+d)}, {s(sMHI)}, {v(vU+d)}")
        a(f"v_lshlrev_b32 {v(Xu+d)}, 16, {v(vXS+d)}")
        a(f"v_and_b32 {v(Xu+4+d)}, {s(sMHI)}, {v(vXS+d)}")
    for i in range(4): a(pk("fma", Uu+2*i, v(vNUM+2*i,2), v(vDEN+2*i,2), v(Uu+2*i,2)))
    for d in range(8): a(f"v_max_f32 {v(Uu+d)}, 0, {v(Uu+d)}")
    for i in range(4): a(pk("add", Uu+2*i, v(Uu+2*i,2), v(Xu+2*i,2)))
    for d in range(4): a(f"v_cvt_pk_bf16_f32 {v(vNUM+d)}, {v(Uu+d)}, {v(Uu+4+d)}")
    a(f"buffer_store_dwordx4 {v(vNUM,4)}, {v(vOFF)}, {s(rA,4)}, {s(sSL64)} offen{OSC}")
    if PRIO: a("s_setprio 0")
    a("s_branch K_GROUP")
    a("K_EPI0:")
    a("s_waitcnt vmcnt(0)")
    a("s_branch K_EPI")
    for cur in range(NB):
        a(f"K_NOG{cur}:")
        if DEP >= 2:
            a(f"s_add_u32 {s(sT0)}, {s(sK)}, 2")
            a(f"s_cmp_lt_u32 {s(sT0)}, {s(sMAX)}")
            a(f"s_cbranch_scc0 K_NOGZ{cur}")
            a("s_waitcnt vmcnt(4)")
            a(f"s_branch K_GOT{cur}")
            a(f"K_NOGZ{cur}:")
        a("s_waitcnt vmcnt(0)")
        a(f"s_branch K_GOT{cur}")
        a(f"K_TAIL{cur}:")
        a(f"v_cmpx_lt_u32 vcc, {s(sK)}, {v(vDEG)}")
        Csingle(cur, False)
        a(f"s_add_u32 {s(sT0)}, {s(sK)}, 1")
        a(f"s_cmp_ge_u32 {s(sT0)}, {s(sMAX)}")
        a("s_cbranch_scc1 K_EPI")
        a(f"v_cmpx_lt_u32 vcc, {s(sT0)}, {v(vDEG)}")
        Csingle(cur, True)
        a(f"s_branch K_NEXT{cur}")
    vP = vLa
    a("K_DONE:")
    stamp(a, 16, vP, None)
    stamp(a, 14, vP, 7, True)
    a("K_END:")
    a("s_endpgm")
    return R.hi

def main():
    a = Asm()
    hdr = open("standalone__edge_featured_mpnn_gatedgcn__graph.s.ref").read().split("\n")
    for l in hdr:
        if l.startswith("; Override"): break
        a.raw(l)
    if ASLIST:
        a.raw(f"; @launch kernel={KNAME} grid=({NWG},1,1) block=(1024,1,1) lds={L_END}")
    else:
        a.raw(f"; @launch grid=({NWG},1,1) block=(1024,1,1) lds={L_END}")
    a.raw('.amdgcn_target "amdgcn-amd-amdhsa--gfx950"')
    a.raw(".text")
    nv = gen(a)
    a.raw('.section .rodata,"a"')
    a.raw(".p2align 6")
    a.raw(f".amdhsa_kernel {KNAME}")
    a.raw(f"  .amdhsa_next_free_vgpr {nv}")
    a.raw(f"  .amdhsa_next_free_sgpr 102")
    a.raw(f"  .amdhsa_accum_offset {(nv+3)//4*4}")
    a.raw(f"  .amdhsa_group_segment_fixed_size 0")
    a.raw(f"  .amdhsa_kernarg_size 96")
    a.raw(f"  .amdhsa_user_sgpr_count 2")
    a.raw(f"  .amdhsa_user_sgpr_kernarg_segment_ptr 1")
    a.raw(f"  .amdhsa_system_sgpr_workgroup_id_x 1")
    a.raw(f".end_amdhsa_kernel")
    out = [x for x in sys.argv[1:] if not x.startswith("--")]
    open(out[0] if out else "out.s", "w").write(a.text())
    print("vgprs", nv, "lds", L_END, file=sys.stderr)

main()
```

```python
import sys, math
from asmlib import *

def opt(name, default=None):
    for x in sys.argv[1:]:
        if x == "--" + name: return True
        if x.startswith("--" + name + "="): return x.split("=", 1)[1]
    return default

KNAME = "standalone__edge_featured_mpnn_gatedgcn__graph_kernel"
N, E, D = 25000, 400000, 128
NWG = 256
CH = 1568
CHB = CH * 8
TS = 25024 * 128
WS_T, WS_REC, WS_DESC, WS_STAMP, WS_FLAG = 0, 0x00D00000, 0x01100000, 0x01200000, 0x01300000
LOG2E = 1.4426950408889634
STRIDE = 41
NLOC = 400
NGRP = NLOC // 16
AUS = 144
NPB = 391
MAGIC = 42909
NSH = int(opt('nsh', 16))
NREP = int(opt('nrep', 8))
FSZ = 4096
assert (NSH + 1 + NREP) * 128 <= FSZ
STAMPS = opt("stamps", False)
OSC = {"plain": "", "sc1": " sc1", "nt": " nt", "sc01": " sc0 sc1"}[opt("osc", "plain")]
PRIO = not opt("noprio")
ASLIST = opt("aslist", False)
WSBASE = int(opt("wsbase", 0)) << 20
SLP = int(opt("sleep", 2))
TST = "" if opt("tstplain") else " sc1"

L_LIST = 0
L_AU = NLOC * STRIDE * 4
L_STAGE = 13 * 8192
L_WL = L_AU + 416 * AUS
assert L_STAGE + CHB <= L_WL
L_Z = L_WL + 32768
L_CNT = L_Z
L_BINS = L_CNT + 416 * 4
L_CNTA = L_BINS + 256
L_MISC = L_CNTA + 256
M_Q, M_HS1, M_HS2, M_HS3, M_WRDY, M_XCNT, M_GCNT, M_DRDY = 0, 4, 8, 12, 16, 20, 24, 28
L_ZEND = L_MISC + 32
L_PERM = L_ZEND
L_DESC = L_PERM + NLOC * 4
L_END = L_DESC + 1024
assert L_AU % 16 == 0 and L_WL % 16 == 0 and L_END <= 163840, L_END

sWG, sWAVE, sSL, sBK = 2, 3, 4, 5
sT0, sT1, sT2, sT3 = 6, 7, 8, 9
sVAL, sOVF = 10, 12
sK, sMAX = 14, 15
pX, pE, pSRC, pDST, pWA, pWB, pWC, pWU, pWV, pOUT, pDBG, pWS = 16, 18, 20, 22, 24, 26, 28, 30, 32, 34, 36, 38
rX, rW, rT, rREC, rDESC, rA, rB, rC = 40, 44, 48, 52, 56, 60, 64, 68
sMHI, sM7F0, sM7FF, sTINY, sPERM, sNL2E, sMIN, sBASE = 72, 73, 74, 75, 76, 77, 78, 79
sMSK = 80
sVAL2 = 80
rFLG, rDBG, rOUT = 84, 88, 92
sST, rST = 96, 98
sSL64, sSPIN, sTILE, sXS = 0, 1, 100, 101
sNB0 = 35

def srd(a, r, p, nbytes, add=None):
    if add is None:
        a(f"s_mov_b32 {s(r)}, {s(p)}")
        a(f"s_and_b32 {s(r+1)}, {s(p+1)}, 0xffff")
    else:
        a(f"s_add_u32 {s(r)}, {s(p)}, {add}")
        a(f"s_addc_u32 {s(r+1)}, {s(p+1)}, 0")
        a(f"s_and_b32 {s(r+1)}, {s(r+1)}, 0xffff")
    a(f"s_mov_b32 {s(r+2)}, {hx(nbytes)}")
    a(f"s_mov_b32 {s(r+3)}, 0x20000")

def stamp(a, idx, vt, wave=0, clk=False):
    if not STAMPS: return
    if opt("clk") and idx in (12, 13, 14) and not clk: return
    if clk and not opt("clk"): return
    l = a.uid("ST")
    if wave is not None and wave >= 0:
        a(f"s_cmp_lg_u32 {s(sWAVE)}, {wave}")
        a(f"s_cbranch_scc1 {l}")
    a(f"s_memrealtime {s(sST,2)}" if not clk else f"s_memtime {s(sST,2)}")
    a(f"s_waitcnt lgkmcnt(0)")
    a(f"s_mov_b64 {s(rST,2)}, exec")
    a(f"s_mov_b64 exec, 1")
    a(f"v_mov_b32 {v(vt)}, {s(sST)}")
    a(f"v_mov_b32 {v(vt+1)}, {s(sST+1)}")
    a(f"s_lshl_b32 {s(sST)}, {s(sWG)}, 8")
    if wave is None:
        a(f"s_lshl_b32 {s(sST+1)}, {s(sWAVE)}, 3")
        a(f"s_add_u32 {s(sST)}, {s(sST)}, {s(sST+1)}")
    a(f"s_add_u32 {s(sST)}, {s(sST)}, {WS_STAMP + idx*8}")
    a(f"v_mov_b32 {v(vt+2)}, {s(sST)}")
    a(f"global_store_dwordx2 {v(vt+2)}, {v(vt,2)}, {s(pWS,2)}")
    a(f"s_mov_b64 exec, {s(rST,2)}")
    a(f"{l}:")

def scan64(a, r):
    for sh in (1, 2, 4, 8):
        a("s_nop 1")
        a(f"v_add_u32_dpp {v(r)}, {v(r)}, {v(r)} row_shr:{sh} row_mask:0xf bank_mask:0xf")
    a("s_nop 1")
    a(f"v_add_u32_dpp {v(r)}, {v(r)}, {v(r)} row_bcast:15 row_mask:0xa bank_mask:0xf")
    a("s_nop 1")
    a(f"v_add_u32_dpp {v(r)}, {v(r)}, {v(r)} row_bcast:31 row_mask:0xc bank_mask:0xf")

def tr_reads(a, mat, vTR, vWF):
    for t in range(8):
        for q in range(2):
            a(f"ds_read_b64_tr_b16 {v(vWF+4*t+2*q,2)}, {v(vTR)} offset:{mat*8192 + t*1024 + q*256}")

def mfma_chain(a, vWF, vX, vACC):
    for t in range(8):
        c = "0" if t == 0 else v(vACC, 16)
        a(f"v_mfma_f32_32x32x16_bf16 {v(vACC,16)}, {v(vWF+4*t,4)}, {v(vX+4*t,4)}, {c}")

def pack_chain(a, vIN, vOUT, vTMP, vBIG):
    G = range(4)
    m = lambda g: vTMP + g
    t = lambda g: vTMP + 4 + g
    sd = "dst_sel:DWORD dst_unused:UNUSED_PAD src0_sel:DWORD"
    for g in G: a(f"v_cvt_pk_bf16_f32 {v(vOUT+2*g)}, {v(vIN+4*g)}, {v(vIN+4*g+1)}")
    for g in G: a(f"v_med3_f32 {v(m(g))}, |{v(vIN+4*g+1)}|, {s(sTINY)}, {v(vBIG)}")
    for g in G: a(f"v_med3_f32 {v(t(g))}, |{v(vIN+4*g+2)}|, {s(sTINY)}, {v(vBIG)}")
    for g in G: a(f"v_add_u32 {v(m(g))}, 0x8000, {v(m(g))}")
    for g in G: a(f"v_add_u32 {v(t(g))}, 0x8000, {v(t(g))}")
    for g in G: a(f"v_sub_u32_sdwa {v(m(g))}, {v(m(g))}, {v(vOUT+2*g)} {sd} src1_sel:WORD_0")
    for g in G: a(f"v_bfi_b32 {v(vOUT+2*g)}, {s(sM7F0)}, {v(m(g))}, {v(vOUT+2*g)}")
    for g in G: a(f"v_med3_f32 {v(m(g))}, |{v(vIN+4*g+3)}|, {s(sTINY)}, {v(vBIG)}")
    for g in G: a(f"v_sub_u32_sdwa {v(t(g))}, {v(t(g))}, {v(vOUT+2*g)} {sd} src1_sel:WORD_1")
    for g in G: a(f"v_add_u32 {v(m(g))}, 0x8000, {v(m(g))}")
    for g in G: a(f"v_bfi_b32 {v(t(g))}, {s(sM7FF)}, {v(t(g))}, {v(vIN+4*g+2)}")
    for g in G: a(f"v_sub_u32_sdwa {v(m(g))}, {v(m(g))}, {v(t(g))} {sd} src1_sel:WORD_1")
    for g in G: a(f"v_perm_b32 {v(t(g))}, {v(vIN+4*g+3)}, {v(t(g))}, {s(sPERM)}")
    for g in G: a(f"v_bfi_b32 {v(vOUT+2*g+1)}, {s(sM7F0)}, {v(m(g))}, {v(t(g))}")

def pk(op, d, a0, b0, c0=None, sel=None):
    ops = f"{v(d,2)}, {a0}, {b0}" + (f", {c0}" if c0 else "")
    return f"v_pk_{op}_f32 {ops}" + (f" {sel}" if sel else "")

def gen(a):
    R = Regs(1, 128)
    vt = R.alloc(4)
    vLane = R.alloc(); vOne = R.alloc(); vJ16 = R.alloc(); vMISC = R.alloc()
    vWC = R.alloc(8)
    m0 = R.mark()
    vAUa = R.alloc(); vTR = R.alloc(); vBIG = R.alloc(); vSC = R.alloc()
    vAUP = R.alloc(16, 4)
    vX = R.alloc(32, 4); vWF = R.alloc(32, 4); vACC = R.alloc(16, 4)
    vO = vAUP; vTM = vAUP + 8

    def signal(off, ret=None):
        a("s_mov_b64 exec, 1")
        if ret is None:
            a(f"ds_add_u32 {v(vMISC)}, {v(vOne)} offset:{off}")
        else:
            a(f"ds_add_rtn_u32 {v(ret)}, {v(vMISC)}, {v(vOne)} offset:{off}")
        a("s_mov_b64 exec, -1")
    def spin(off, target, vtmp):
        l = a.uid("SP"); d = a.uid("SPD")
        a(f"s_mov_b32 {s(sSPIN)}, 0x400000")
        a(f"{l}:")
        a(f"ds_read_b32 {v(vtmp)}, {v(vMISC)} offset:{off}")
        a("s_waitcnt lgkmcnt(0)")
        a(f"v_readfirstlane_b32 {s(sT0)}, {v(vtmp)}")
        a(f"s_cmp_ge_u32 {s(sT0)}, {target}")
        a(f"s_cbranch_scc1 {d}")
        a("s_sleep 1")
        a(f"s_sub_u32 {s(sSPIN)}, {s(sSPIN)}, 1")
        a(f"s_cbranch_scc0 {l}")
        a(f"{d}:")
    def arrive(phase, vtmp):
        l = a.uid("ARR")
        a(f"s_and_b32 {s(sT1)}, s2, {NSH-1}")
        a(f"s_lshl_b32 {s(sT1)}, {s(sT1)}, 7")
        a(f"v_mov_b32 {v(vtmp)}, {s(sT1)}")
        a(f"v_mov_b32 {v(vtmp+1)}, 1")
        a(f"s_mov_b32 {s(sT1)}, {phase*FSZ}")
        a("s_mov_b64 exec, 1")
        a(f"buffer_atomic_add {v(vtmp+1)}, {v(vtmp)}, {s(rFLG,4)}, {s(sT1)} offen sc0 sc1")
        a("s_waitcnt vmcnt(0)")
        a(f"v_readfirstlane_b32 {s(sT0)}, {v(vtmp+1)}")
        a(f"s_cmp_lg_u32 {s(sT0)}, {NWG//NSH - 1}")
        a(f"s_cbranch_scc1 {l}")
        if NSH > 1:
            a(f"v_mov_b32 {v(vtmp)}, {NSH*128}")
            a(f"v_mov_b32 {v(vtmp+1)}, 1")
            a(f"buffer_atomic_add {v(vtmp+1)}, {v(vtmp)}, {s(rFLG,4)}, {s(sT1)} offen sc0 sc1")
            a("s_waitcnt vmcnt(0)")
            a(f"v_readfirstlane_b32 {s(sT0)}, {v(vtmp+1)}")
            a(f"s_cmp_lg_u32 {s(sT0)}, {NSH - 1}")
            a(f"s_cbranch_scc1 {l}")
        a(f"s_mov_b64 exec, {hx((1<<NREP)-1)}")
        a(f"v_lshlrev_b32 {v(vtmp)}, 7, {v(vLane)}")
        a(f"s_add_u32 {s(sT1)}, {s(sT1)}, {(NSH+1)*128}")
        a(f"buffer_store_dword {v(vOne)}, {v(vtmp)}, {s(rFLG,4)}, {s(sT1)} offen sc1")
        a(f"{l}:")
        a("s_mov_b64 exec, -1")
    def poll(phase, vA, vD, rF=rFLG):
        l = a.uid("POLL"); d = a.uid("POLLD")
        a(f"s_and_b32 {s(sT1)}, s2, {NREP-1}")
        a(f"s_lshl_b32 {s(sT1)}, {s(sT1)}, 7")
        a(f"s_add_u32 {s(sT1)}, {s(sT1)}, {phase*FSZ + (NSH+1)*128}")
        a(f"v_mov_b32 {v(vA)}, {s(sT1)}")
        a(f"s_mov_b32 {s(sSPIN)}, 0x100000")
        a(f"s_mov_b64 exec, 1")
        a(f"{l}:")
        a(f"buffer_load_dword {v(vD)}, {v(vA)}, {s(rF,4)}, 0 offen sc1")
        a("s_waitcnt vmcnt(0)")
        a(f"v_cmp_eq_u32 vcc, 0, {v(vD)}")
        a(f"s_cbranch_vccz {d}")
        a(f"s_sleep {SLP}")
        a(f"s_sub_u32 {s(sSPIN)}, {s(sSPIN)}, 1")
        a(f"s_cbranch_scc0 {l}")
        a(f"{d}:")
        a("s_mov_b64 exec, -1")
    def x_dma(vA, vB, split=None, thr=0):
        a(f"v_lshrrev_b32 {v(vA)}, 4, {v(vLane)}")
        a(f"v_and_b32 {v(vB)}, 15, {v(vLane)}")
        a(f"v_xor_b32 {v(vB)}, {v(vB)}, {v(vA)}")
        a(f"v_lshlrev_b32 {v(vB)}, 4, {v(vB)}")
        a(f"s_lshl_b32 {s(sT0)}, {s(sTILE)}, 5")
        a(f"v_add_u32 {v(vA)}, {s(sT0)}, {v(vA)}")
        a(f"s_mul_i32 {s(sT0)}, {s(sBK)}, {NPB*256}")
        a(f"v_lshl_add_u32 {v(vA+3)}, {v(vA)}, 8, {s(sT0)}")
        a(f"v_sub_u32 {v(vA)}, {NPB-1}, {v(vA)}")
        a(f"s_mov_b32 m0, {s(sXS)}")
        a(f"s_brev_b32 {s(sT1)}, 1")
        for i in range(8):
            if split is not None and i == split:
                spin(M_XCNT, 4, vt)
                a(f"s_brev_b32 {s(sT1)}, 1")
            a(f"v_xor_b32 {v(vA+2)}, {(i&3)*64}, {v(vB)}")
            a(f"v_add_u32 {v(vA+2)}, {v(vA+2)}, {v(vA+3)}")
            a(f"v_and_or_b32 {v(vA+2)}, {v(vA)}, {s(sT1)}, {v(vA+2)}")
            if thr and i >= thr: a(f"s_waitcnt vmcnt({thr-1})")
            a(f"buffer_load_dwordx4 {v(vA+2)}, {s(rX,4)}, 0 offen lds")
            if i < 7:
                a(f"s_add_u32 m0, m0, 1024")
                a(f"v_add_u32 {v(vA+3)}, 0x400, {v(vA+3)}")
                a(f"v_subrev_u32 {v(vA)}, 4, {v(vA)}")

    a.raw(f".globl {KNAME}")
    a.raw(".p2align 8")
    a.raw(f".type {KNAME},@function")
    a.raw(f"{KNAME}:")
    a(f"s_cmp_ge_u32 s2, {NWG}")
    a(f"s_cbranch_scc1 K_END")
    a("s_load_dwordx16 s[16:31], s[0:1], 0")
    a("s_load_dwordx8 s[32:39], s[0:1], 64")
    a(f"v_lshrrev_b32 v1, 6, v0")
    a(f"s_and_b32 {s(sSL)}, s2, 3")
    a(f"v_readfirstlane_b32 {s(sWAVE)}, v1")
    a(f"s_lshr_b32 {s(sBK)}, s2, 2")
    a(f"v_and_b32 {v(vLane)}, 63, v0")
    a(f"v_mov_b32 {v(vOne)}, 1")
    a(f"v_mov_b32 {v(vMISC)}, {L_MISC}")
    nz = (L_ZEND - L_Z) // 4
    a(f"v_lshlrev_b32 {v(vt)}, 2, v0")
    a(f"v_add_u32 {v(vt)}, {L_Z}, {v(vt)}")
    a(f"v_mov_b32 {v(vt+1)}, 0")
    a(f"v_cmp_gt_u32 vcc, {nz}, v0")
    a("s_mov_b64 exec, vcc")
    a(f"ds_write_b32 {v(vt)}, {v(vt+1)}")
    a("s_mov_b64 exec, -1")
    a(f"v_and_b32 {v(vJ16)}, 3, v0")
    a(f"v_lshlrev_b32 {v(vJ16)}, 4, {v(vJ16)}")
    a(f"s_sub_u32 {s(sTILE)}, {s(sWAVE)}, 4")
    a(f"s_cselect_b32 {s(sTILE)}, 12, {s(sTILE)}")
    a(f"s_lshl_b32 {s(sXS)}, {s(sTILE)}, 13")
    a(f"s_cmp_ge_u32 {s(sWAVE)}, 4")
    a("s_waitcnt lgkmcnt(0)")
    if WSBASE:
        a(f"s_add_u32 {s(pWS)}, {s(pWS)}, {WSBASE}")
        a(f"s_addc_u32 {s(pWS+1)}, {s(pWS+1)}, 0")
    a(f"s_lshl_b32 {s(sSL64)}, {s(sSL)}, 6")
    stamp(a, 0, vACC)
    srd(a, rX, pX, N*256)
    srd(a, rC, pWC, 256)
    srd(a, rFLG, pWS, 2*FSZ, WS_FLAG)
    a(f"s_cmp_ge_u32 {s(sWAVE)}, 4")
    a("s_cbranch_scc1 K_G0")
    vD8 = vX; vS8 = vX + 8; vE4 = vX + 16; vRK = vX + 20; vKY = vWF; vRP = vWF + 8; vCN = vWF + 24; vEX = vWF + 25
    a(f"s_cmp_lg_u32 s2, 0")
    a("s_cbranch_scc1 K_NOZ")
    a(f"s_cmp_lg_u32 {s(sWAVE)}, 3")
    a("s_cbranch_scc1 K_NOZ")
    a(f"v_lshlrev_b32 {v(vt)}, 7, {v(vLane)}")
    a(f"buffer_store_dword {v(vt+1)}, {v(vt)}, {s(rFLG,4)}, 0 offen sc1")
    a("K_NOZ:")
    if opt("hprio"): a("s_setprio 3")
    a(f"s_cmp_eq_u32 {s(sWAVE)}, 1")
    a(f"s_cselect_b32 {s(rW)}, {s(pWV)}, {s(pWB)}")
    a(f"s_cselect_b32 {s(rW+1)}, {s(pWV+1)}, {s(pWB+1)}")
    a(f"s_cmp_eq_u32 {s(sWAVE)}, 2")
    a(f"s_cselect_b32 {s(rW)}, {s(pWA)}, {s(rW)}")
    a(f"s_cselect_b32 {s(rW+1)}, {s(pWA+1)}, {s(rW+1)}")
    a(f"s_cmp_eq_u32 {s(sWAVE)}, 3")
    a(f"s_cselect_b32 {s(rW)}, {s(pWU)}, {s(rW)}")
    a(f"s_cselect_b32 {s(rW+1)}, {s(pWU+1)}, {s(rW+1)}")
    a(f"s_and_b32 {s(rW+1)}, {s(rW+1)}, 0xffff")
    a(f"s_mov_b32 {s(rW+2)}, {128*256}")
    a(f"s_mov_b32 {s(rW+3)}, 0x20000")
    a(f"v_lshrrev_b32 {v(vt)}, 2, {v(vLane)}")
    a(f"v_lshl_add_u32 {v(vt)}, {v(vt)}, 8, {v(vJ16)}")
    a(f"s_lshl_b32 {s(sT0)}, {s(sWAVE)}, 13")
    a(f"s_add_u32 m0, {s(sT0)}, {L_WL}")
    a(f"s_mov_b32 {s(sT1)}, {s(sSL64)}")
    for i in range(8):
        a(f"buffer_load_dwordx4 {v(vt)}, {s(rW,4)}, {s(sT1)} offen lds")
        if i < 7:
            a(f"s_add_u32 m0, m0, 1024")
            a(f"s_add_u32 {s(sT1)}, {s(sT1)}, 4096")
    srd(a, rA, pDST, E*4); srd(a, rB, pSRC, E*4); srd(a, rDESC, pE, E*2)
    a(f"s_mul_i32 {s(sT0)}, s2, {CH}")
    a(f"v_lshl_add_u32 {v(vt)}, v0, 2, {s(sT0)}")
    a(f"v_add_u32 {v(vt+1)}, {CH//2}, {v(vt)}")
    a(f"s_mov_b32 {s(sT1)}, {E}")
    a(f"v_cmp_gt_u32 vcc, {CH//8}, v0")
    a(f"v_cmp_gt_u32 {s(sVAL,2)}, {s(sT1)}, {v(vt)}")
    a(f"v_cmp_gt_u32 {s(sVAL2,2)}, {s(sT1)}, {v(vt+1)}")
    a(f"v_lshlrev_b32 {v(vt+2)}, 2, {v(vt)}")
    a(f"v_lshlrev_b32 {v(vt+3)}, 1, {v(vt)}")
    a(f"s_and_b64 {s(sVAL,2)}, {s(sVAL,2)}, vcc")
    a(f"s_and_b64 {s(sVAL2,2)}, {s(sVAL2,2)}, vcc")
    a("s_mov_b64 exec, vcc")
    a(f"buffer_load_dwordx4 {v(vD8,4)}, {v(vt+2)}, {s(rA,4)}, 0 offen")
    a(f"buffer_load_dwordx4 {v(vD8+4,4)}, {v(vt+2)}, {s(rA,4)}, 0 offen offset:{CH*2}")
    a(f"buffer_load_dwordx4 {v(vS8,4)}, {v(vt+2)}, {s(rB,4)}, 0 offen")
    a(f"buffer_load_dwordx4 {v(vS8+4,4)}, {v(vt+2)}, {s(rB,4)}, 0 offen offset:{CH*2}")
    a(f"buffer_load_dwordx2 {v(vE4,2)}, {v(vt+3)}, {s(rDESC,4)}, 0 offen")
    a(f"buffer_load_dwordx2 {v(vE4+2,2)}, {v(vt+3)}, {s(rDESC,4)}, 0 offen offset:{CH}")
    a("s_mov_b64 exec, -1")
    a(f"s_cmp_lg_u32 {s(sWAVE)}, 0")
    a("s_cbranch_scc1 K_G0")
    x_dma(vACC, vACC + 1)
    a("K_G0:")
    a(f"buffer_load_dwordx4 {v(vWC,4)}, {v(vJ16)}, {s(rC,4)}, {s(sSL64)} offen")
    a("s_barrier")
    a(f"s_cmp_lt_u32 {s(sWAVE)}, 4")
    a("s_cbranch_scc1 K_C0")
    x_dma(vACC, vACC + 1, int(opt("xsplit")) if opt("xsplit") else None, int(opt("thr", 0)))
    a("K_C0:")
    a(f"s_mov_b32 {s(sMHI)}, 0xffff0000")
    a(f"s_mov_b32 {s(sM7F0)}, 0x7fff0000")
    a(f"s_mov_b32 {s(sM7FF)}, 0x7fffffff")
    a(f"s_mov_b32 {s(sTINY)}, 0x00800000")
    a(f"s_mov_b32 {s(sPERM)}, 0x07060302")
    a(f"s_mov_b32 {s(sNL2E)}, {hx(fbits(-LOG2E))}")
    a(f"s_mul_i32 {s(sT0)}, {s(sSL)}, {TS}")
    srd(a, rT, pWS, N*128, s(sT0))
    srd(a, rREC, pWS, NWG*CHB, WS_REC)
    srd(a, rDESC, pWS, 65536, WS_DESC)
    srd(a, rA, pOUT, N*256)
    srd(a, rDBG, pDBG, 256)
    a(f"v_lshrrev_b32 {v(vTR)}, 5, {v(vLane)}")
    a(f"v_lshlrev_b32 {v(vTR)}, 3, {v(vTR)}")
    a(f"v_bfe_u32 {v(vt)}, {v(vLane)}, 2, 2")
    a(f"v_add_u32 {v(vTR)}, {v(vTR)}, {v(vt)}")
    a(f"v_lshlrev_b32 {v(vTR)}, 6, {v(vTR)}")
    a(f"v_bfe_u32 {v(vt)}, {v(vLane)}, 4, 1")
    a(f"v_lshl_add_u32 {v(vTR)}, {v(vt)}, 5, {v(vTR)}")
    a(f"v_and_b32 {v(vt)}, 1, {v(vLane)}")
    a(f"v_lshl_add_u32 {v(vTR)}, {v(vt)}, 4, {v(vTR)}")
    a(f"v_and_b32 {v(vt)}, 2, {v(vLane)}")
    a(f"v_lshl_add_u32 {v(vTR)}, {v(vt)}, 2, {v(vTR)}")
    a(f"v_add_u32 {v(vTR)}, {L_WL}, {v(vTR)}")
    a(f"v_mov_b32 {v(vBIG)}, 0x7f7f7fff")
    a(f"v_and_b32 {v(vt)}, 31, {v(vLane)}")
    a(f"v_mul_u32_u24 {v(vt)}, {AUS}, {v(vt)}")
    a(f"v_lshrrev_b32 {v(vt+1)}, 5, {v(vLane)}")
    a(f"v_lshl_add_u32 {v(vt)}, {v(vt+1)}, 4, {v(vt)}")
    a(f"v_add_u32 {v(vSC)}, {s(sXS)}, {v(vt)}")
    a(f"s_mul_i32 {s(sT0)}, {s(sTILE)}, {32*AUS}")
    a(f"s_add_u32 {s(sT0)}, {s(sT0)}, {L_AU}")
    a(f"v_add_u32 {v(vAUa)}, {s(sT0)}, {v(vt)}")
    a(f"s_cmp_ge_u32 {s(sWAVE)}, 4")
    a("s_cbranch_scc1 K_GEMM")
    a(f"s_cmp_eq_u32 {s(sWAVE)}, 0")
    a("s_cbranch_scc1 K_W0")
    a("s_waitcnt vmcnt(1)")
    a("K_W0:")
    a("s_waitcnt vmcnt(9)")
    signal(M_WRDY)
    stamp(a, 1, vACC, 1)
    a(f"s_cmp_lg_u32 s2, 0")
    a("s_cbranch_scc1 K_NOGO")
    a(f"s_cmp_lg_u32 {s(sWAVE)}, 3")
    a("s_cbranch_scc1 K_NOGO")
    a(f"v_mov_b32 {v(vt)}, 0")
    a("s_mov_b64 exec, 1")
    a(f"buffer_store_dword {v(vOne)}, {v(vt)}, {s(rDBG,4)}, 0 offen sc1")
    a("s_mov_b64 exec, -1")
    a("K_NOGO:")
    a(f"s_mov_b32 {s(sT0)}, {L_CNTA}")
    a(f"s_mov_b32 {s(sT1)}, {-NPB & 0xffffffff}")
    for i in range(8):
        a(f"v_mul_u32_u24 {v(vt)}, {MAGIC}, {v(vD8+i)}")
        a(f"v_lshrrev_b32 {v(vt)}, 24, {v(vt)}")
        a(f"v_mad_i32_i24 {v(vD8+i)}, {v(vt)}, {s(sT1)}, {v(vD8+i)}")
        a(f"v_and_b32 {v(vKY+i)}, 62, {v(vt)}")
        a(f"v_and_b32 {v(vt)}, 1, {v(vt)}")
        a(f"v_lshlrev_b32 {v(vKY+i)}, 1, {v(vKY+i)}")
        a(f"v_lshl_or_b32 {v(vKY+i)}, {v(vt)}, 7, {v(vKY+i)}")
        a(f"v_add_u32 {v(vRP+i)}, {s(sT0)}, {v(vKY+i)}")
    for i in range(8):
        if i % 4 == 0: a(f"s_mov_b64 exec, {s(sVAL if i == 0 else sVAL2,2)}")
        a(f"ds_add_rtn_u32 {v(vRK+i)}, {v(vRP+i)}, {v(vOne)}")
    a("s_mov_b64 exec, -1")
    a("s_waitcnt lgkmcnt(0)")
    signal(M_HS1)
    for i in range(8):
        e = vE4 + i // 2
        if i % 2 == 0: a(f"v_lshl_or_b32 {v(vRP+2*i)}, {v(e)}, 16, {v(vS8+i)}")
        else:          a(f"v_and_or_b32 {v(vRP+2*i)}, {v(e)}, {s(sMHI)}, {v(vS8+i)}")
        a(f"v_mov_b32 {v(vRP+2*i+1)}, {v(vD8+i)}")
    spin(M_HS1, 4, vt)
    a(f"v_lshlrev_b32 {v(vt)}, 2, {v(vLane)}")
    a(f"v_add_u32 {v(vt+1)}, {L_CNTA}, {v(vt)}")
    a(f"ds_read_b32 {v(vCN)}, {v(vt+1)}")
    a("s_waitcnt lgkmcnt(0)")
    a(f"v_mov_b32 {v(vEX)}, {v(vCN)}")
    scan64(a, vEX)
    a(f"v_sub_u32 {v(vEX)}, {v(vEX)}, {v(vCN)}")
    for i in range(8):
        a(f"ds_bpermute_b32 {v(vD8+i)}, {v(vKY+i)}, {v(vEX)}")
    a(f"v_lshl_or_b32 {v(vCN)}, {v(vCN)}, 16, {v(vEX)}")
    a(f"s_mov_b32 {s(sT0)}, {L_STAGE // 8}")
    for i in range(8):
        a(f"s_waitcnt lgkmcnt({7-i})")
        a(f"v_add3_u32 {v(vD8+i)}, {v(vD8+i)}, {v(vRK+i)}, {s(sT0)}")
        a(f"v_lshlrev_b32 {v(vD8+i)}, 3, {v(vD8+i)}")
    for i in range(8):
        if i % 4 == 0: a(f"s_mov_b64 exec, {s(sVAL if i == 0 else sVAL2,2)}")
        a(f"ds_write_b64 {v(vD8+i)}, {v(vRP+2*i,2)}")
    a("s_mov_b64 exec, -1")
    a("s_waitcnt lgkmcnt(0)")
    signal(M_HS2)
    a(f"s_cmp_lg_u32 {s(sWAVE)}, 2")
    a("s_cbranch_scc1 K_NODESC")
    a(f"s_lshl_b32 {s(sT1)}, s2, 8")
    a(f"buffer_store_dword {v(vCN)}, {v(vt)}, {s(rDESC,4)}, {s(sT1)} offen sc1")
    a("K_NODESC:")
    a(f"v_lshlrev_b32 {v(vt+1)}, 4, v0")
    a(f"v_add_u32 {v(vt+2)}, {L_STAGE}, {v(vt+1)}")
    spin(M_HS2, 4, vt+3)
    for i in range(4):
        a(f"ds_read_b128 {v(vX+4*i,4)}, {v(vt+2)} offset:{i*4096}")
    a(f"s_mul_i32 {s(sT0)}, s2, {CHB}")
    for i in range(3):
        a(f"s_waitcnt lgkmcnt({3-i})")
        a(f"buffer_store_dwordx4 {v(vX+4*i,4)}, {v(vt+1)}, {s(rREC,4)}, {s(sT0)} offen sc1")
        a(f"s_add_u32 {s(sT0)}, {s(sT0)}, 4096")
    a("s_waitcnt lgkmcnt(0)")
    a(f"s_cmp_lg_u32 {s(sWAVE)}, 0")
    a("s_cbranch_scc1 K_NOLAST")
    a("s_mov_b64 exec, 0xffff")
    a(f"buffer_store_dwordx4 {v(vX+12,4)}, {v(vt+1)}, {s(rREC,4)}, {s(sT0)} offen sc1")
    a("s_mov_b64 exec, -1")
    a("K_NOLAST:")
    signal(M_XCNT)
    stamp(a, 2, vACC, 1)
    a(f"v_mov_b32 {v(vt+2)}, 0")
    a(f"s_mov_b32 {s(sSPIN)}, 0x100000")
    a("K_GOL:")
    a(f"buffer_load_dword {v(vt+3)}, {v(vt+2)}, {s(rDBG,4)}, 0 offen sc1")
    a("s_waitcnt vmcnt(0)")
    a(f"v_readfirstlane_b32 {s(sT0)}, {v(vt+3)}")
    a(f"s_cmp_lg_u32 {s(sT0)}, 0")
    a("s_cbranch_scc1 K_GOD")
    a(f"s_sub_u32 {s(sSPIN)}, {s(sSPIN)}, 1")
    a("s_cbranch_scc0 K_GOL")
    a("K_GOD:")
    signal(M_HS3, vt+3)
    a("s_waitcnt lgkmcnt(0)")
    a(f"v_readfirstlane_b32 {s(sT0)}, {v(vt+3)}")
    a(f"s_cmp_lg_u32 {s(sT0)}, 3")
    a("s_cbranch_scc1 K_NOFLAGA")
    arrive(0, vt+2)
    stamp(a, 3, vACC, -1)
    a("K_NOFLAGA:")
    a(f"s_cmp_eq_u32 {s(sWAVE)}, 0")
    a("s_cbranch_scc1 K_GEMM")
    a(f"s_cmp_lg_u32 {s(sWAVE)}, 3")
    a("s_cbranch_scc1 K_RECS")
    if opt("latepoll"): spin(M_GCNT, 13, vt+1)
    poll(0, vt+1, vt+2)
    stamp(a, 4, vACC, 3)
    a(f"s_lshr_b32 {s(sT0)}, {s(sBK)}, 1")
    a(f"s_and_b32 {s(sT1)}, {s(sBK)}, 1")
    a(f"s_lshl_b32 {s(sT1)}, {s(sT1)}, 5")
    a(f"s_or_b32 {s(sT0)}, {s(sT0)}, {s(sT1)}")
    a(f"s_lshl_b32 {s(sT0)}, {s(sT0)}, 2")
    a(f"v_lshlrev_b32 {v(vt+1)}, 8, {v(vLane)}")
    for i in range(4):
        a(f"buffer_load_dword {v(vX+i)}, {v(vt+1)}, {s(rDESC,4)}, {s(sT0)} offen sc1")
        if i < 3: a(f"s_add_u32 {s(sT0)}, {s(sT0)}, 16384")
    a(f"v_add_u32 {v(vt+1)}, {L_DESC}, {v(vt)}")
    for i in range(4):
        a(f"s_waitcnt vmcnt({3-i})")
        a(f"ds_write_b32 {v(vt+1)}, {v(vX+i)} offset:{i*256}")
    a("s_waitcnt lgkmcnt(0)")
    signal(M_DRDY)
    stamp(a, 5, vACC, 3)
    a("s_branch K_RECS")
    a("K_GEMM:")
    spin(M_WRDY, 4, vt)
    tr_reads(a, 0, vTR, vWF)
    a(f"v_and_b32 {v(vt)}, 31, {v(vLane)}")
    a(f"v_lshlrev_b32 {v(vt+1)}, 8, {v(vt)}")
    a(f"v_add_u32 {v(vt+1)}, {s(sXS)}, {v(vt+1)}")
    a(f"v_lshrrev_b32 {v(vt+2)}, 5, {v(vLane)}")
    a(f"v_xor_b32 {v(vt)}, {v(vt)}, {v(vt+2)}")
    a(f"v_and_b32 {v(vt)}, 15, {v(vt)}")
    a(f"v_lshlrev_b32 {v(vt)}, 4, {v(vt)}")
    for t in range(8):
        a(f"v_xor_b32 {v(vACC+t)}, {t*32}, {v(vt)}")
        a(f"v_add_u32 {v(vACC+t)}, {v(vACC+t)}, {v(vt+1)}")
    a("s_waitcnt vmcnt(0)")
    stamp(a, 6, vAUP, 4)
    stamp(a, 7, vAUP, 15)
    if opt("gprio"): a("s_setprio 3")
    for t in range(8):
        a(f"ds_read_b128 {v(vX+4*t,4)}, {v(vACC+t)}")
    a("s_waitcnt lgkmcnt(0)")
    for mat in range(2):
        mfma_chain(a, vWF, vX, vACC)
        tr_reads(a, mat + 1, vTR, vWF)
        if mat == 0:
            for r in range(16): a(f"v_mul_f32 {v(vACC+r)}, {s(sNL2E)}, {v(vACC+r)}")
        pack_chain(a, vACC, vO, vTM, vBIG)
        a(f"ds_write_b128 {v(vSC)}, {v(vO,4)} offset:{mat*64}")
        a(f"ds_write_b128 {v(vSC)}, {v(vO+4,4)} offset:{mat*64+32}")
        if mat == 0: a("s_waitcnt lgkmcnt(2)")
    a(f"v_lshrrev_b32 {v(vt)}, 3, {v(vLane)}")
    a(f"v_and_b32 {v(vt+1)}, 7, {v(vLane)}")
    a(f"v_lshlrev_b32 {v(vt+1)}, 4, {v(vt+1)}")
    a(f"v_mul_u32_u24 {v(vt+2)}, {AUS}, {v(vt)}")
    a(f"v_add3_u32 {v(vt+2)}, {v(vt+2)}, {v(vt+1)}, {s(sXS)}")
    a(f"s_lshl_b32 {s(sT0)}, {s(sTILE)}, 5")
    a(f"v_add_u32 {v(vt)}, {s(sT0)}, {v(vt)}")
    a(f"v_sub_u32 {v(vt+3)}, {NPB-1}, {v(vt)}")
    a(f"v_lshl_add_u32 {v(vt)}, {v(vt)}, 7, {v(vt+1)}")
    a(f"s_mul_i32 {s(sT0)}, {s(sBK)}, {NPB*128}")
    a(f"v_add_u32 {v(vt)}, {s(sT0)}, {v(vt)}")
    a(f"s_brev_b32 {s(sT1)}, 1")
    a("s_waitcnt lgkmcnt(0)")
    for i in range(4):
        a(f"ds_read_b128 {v(vAUP+4*i,4)}, {v(vt+2)} offset:{i*8*AUS}")
    if not opt("gprio"): mfma_chain(a, vWF, vX, vACC)
    for i in range(4):
        a(f"s_waitcnt lgkmcnt({3-i})")
        a(f"v_and_or_b32 {v(vt+1)}, {v(vt+3)}, {s(sT1)}, {v(vt)}")
        a(f"buffer_store_dwordx4 {v(vAUP+4*i,4)}, {v(vt+1)}, {s(rT,4)}, 0 offen offset:{i*1024}{TST}")
        if i < 3: a(f"v_subrev_u32 {v(vt+3)}, 8, {v(vt+3)}")
    signal(M_XCNT)
    stamp(a, 8, vt, 15)
    if opt("gprio"):
        a("s_setprio 0")
        mfma_chain(a, vWF, vX, vACC)
    tr_reads(a, 3, vTR, vWF)
    for r in range(16): a(f"v_mul_f32 {v(vACC+r)}, {s(sNL2E)}, {v(vACC+r)}")
    for d in range(8): a(f"v_cvt_pk_bf16_f32 {v(vAUP+d)}, {v(vACC+2*d)}, {v(vACC+2*d+1)}")
    a("s_waitcnt lgkmcnt(0)")
    mfma_chain(a, vWF, vX, vACC)
    a("s_nop 11")
    for d in range(8): a(f"v_cvt_pk_bf16_f32 {v(vAUP+8+d)}, {v(vACC+2*d)}, {v(vACC+2*d+1)}")
    a("s_waitcnt vmcnt(0)")
    signal(M_GCNT, vt+3)
    a("s_waitcnt lgkmcnt(0)")
    a(f"v_readfirstlane_b32 {s(sT0)}, {v(vt+3)}")
    a(f"s_cmp_lg_u32 {s(sT0)}, 12")
    a("s_cbranch_scc1 K_NOFLAGB")
    spin(M_HS3, 4, vt+3)
    arrive(1, vt+2)
    stamp(a, 9, vACC, -1)
    a("K_NOFLAGB:")
    spin(M_XCNT, 17, vt+3)
    for q in range(4):
        a(f"ds_write_b128 {v(vAUa)}, {v(vAUP+4*q,4)} offset:{q*32}")
    a("K_RECS:")
    if opt("hprio"): a("s_setprio 0")
    vDS = vX; vRC = vX + 8; vRC2 = vX + 24; vRK8 = vX + 40; vAD = vX + 48; vI = vX + 56; vRB = vX + 57; vML = vX + 58
    for d in range(4): a(f"v_and_b32 {v(vWC+4+d)}, {s(sMHI)}, {v(vWC+d)}")
    for d in range(4): a(f"v_lshlrev_b32 {v(vWC+d)}, 16, {v(vWC+d)}")
    for d in range(8): a(f"v_mul_f32 {v(vWC+d)}, {s(sNL2E)}, {v(vWC+d)}")
    a(f"v_lshrrev_b32 {v(vt)}, 5, {v(vLane)}")
    a(f"s_lshl_b32 {s(sT0)}, {s(sWAVE)}, 4")
    a(f"v_add_u32 {v(vt)}, {s(sT0)}, {v(vt)}")
    a(f"v_and_b32 {v(vI)}, 31, {v(vLane)}")
    a(f"s_mov_b32 {s(sT0)}, {CHB}")
    a(f"v_mul_lo_u32 {v(vRB)}, {v(vt)}, {s(sT0)}")
    a(f"v_lshl_add_u32 {v(vRB)}, {v(vI)}, 3, {v(vRB)}")
    a(f"v_lshlrev_b32 {v(vt)}, 2, {v(vt)}")
    a(f"v_add_u32 {v(vt)}, {L_DESC}, {v(vt)}")
    spin(M_DRDY, 1, vt+3)
    for it in range(0, 8, 2):
        a(f"ds_read2_b32 {v(vDS+it,2)}, {v(vt)} offset0:{2*it} offset1:{2*it+2}")
    a(f"s_mov_b32 {s(sBASE)}, 0")
    a(f"s_mov_b64 {s(sOVF,2)}, 0")
    a(f"v_mov_b32 {v(vML)}, 0")
    a(f"v_mov_b32 {v(vt+1)}, 8")
    a(f"v_mov_b32 {v(vt+2)}, {STRIDE}")
    a("s_waitcnt lgkmcnt(0)")
    for it in range(8):
        a(f"v_lshrrev_b32 {v(vt)}, 16, {v(vDS+it)}")
        a(f"v_max_u32 {v(vML)}, {v(vML)}, {v(vt)}")
    sM2 = 16
    a("K_SWEEP:")
    a(f"v_add_u32 {v(vt+3)}, 32, {v(vI)}")
    for it in range(8):
        a(f"v_mad_u32_u16 {v(vAD+it)}, {v(vDS+it)}, {v(vt+1)}, {v(vRB)}")
        a(f"s_mov_b32 {s(sT0)}, {it*2*CHB}")
        a(f"buffer_load_dwordx2 {v(vRC+2*it,2)}, {v(vAD+it)}, {s(rREC,4)}, {s(sT0)} offen sc1")
        a(f"v_cmp_lt_u32_sdwa {s(sMSK+2*it,2)}, {v(vI)}, {v(vDS+it)} src0_sel:DWORD src1_sel:WORD_1")
        a(f"v_cmp_lt_u32_sdwa {s(sM2+2*it,2)}, {v(vt+3)}, {v(vDS+it)} src0_sel:DWORD src1_sel:WORD_1")
    for it in range(8):
        l = a.uid("S2")
        a(f"s_cmp_eq_u64 {s(sM2+2*it,2)}, 0")
        a(f"s_cbranch_scc1 {l}")
        a(f"s_mov_b32 {s(sT0)}, {it*2*CHB}")
        a(f"buffer_load_dwordx2 {v(vRC2+2*it,2)}, {v(vAD+it)}, {s(rREC,4)}, {s(sT0)} offen offset:256 sc1")
        a(f"{l}:")
    spin(M_XCNT, 17, vt)
    stamp(a, 10, vACC, 8)
    a("s_waitcnt vmcnt(0)")
    stamp(a, 11, vACC, 8)
    def proc(rc, msk, its):
        a(f"s_mov_b32 {s(sT0)}, {L_CNT}")
        for it in its: a(f"v_lshl_add_u32 {v(vAD+it)}, {v(rc+2*it+1)}, 2, {s(sT0)}")
        for it in its:
            a(f"s_mov_b64 exec, {s(msk+2*it,2)}")
            a(f"ds_add_rtn_u32 {v(vRK8+it)}, {v(vAD+it)}, {v(vOne)}")
        a("s_mov_b64 exec, -1")
        for j, it in enumerate(its):
            a(f"s_waitcnt lgkmcnt({len(its)-1-j})")
            a(f"v_mad_u32_u24 {v(vAD+it)}, {v(rc+2*it+1)}, {v(vt+2)}, {v(vRK8+it)}")
            a(f"v_cmp_gt_u32 vcc, {STRIDE}, {v(vRK8+it)}")
            a(f"v_lshlrev_b32 {v(vAD+it)}, 2, {v(vAD+it)}")
            a(f"s_andn2_b64 {s(sT2,2)}, {s(msk+2*it,2)}, vcc")
            a(f"s_and_b64 {s(msk+2*it,2)}, {s(msk+2*it,2)}, vcc")
            a(f"s_or_b64 {s(sOVF,2)}, {s(sOVF,2)}, {s(sT2,2)}")
        for it in its:
            if opt("fakesrc"): a(f"v_and_b32 {v(rc+2*it)}, {opt('fakesrc')}, {v(rc+2*it)}")
            a(f"s_mov_b64 exec, {s(msk+2*it,2)}")
            a(f"ds_write_b32 {v(vAD+it)}, {v(rc+2*it)} offset:{L_LIST}")
        a("s_mov_b64 exec, -1")
    proc(vRC, sMSK, list(range(8)))
    for it in range(8):
        l = a.uid("P2")
        a(f"s_cmp_eq_u64 {s(sM2+2*it,2)}, 0")
        a(f"s_cbranch_scc1 {l}")
        proc(vRC2, sM2, [it])
        a(f"{l}:")
    a(f"s_add_u32 {s(sBASE)}, {s(sBASE)}, 64")
    a(f"v_add_u32 {v(vI)}, 64, {v(vI)}")
    a(f"v_add_u32 {v(vRB)}, 512, {v(vRB)}")
    a(f"v_cmp_lt_u32 vcc, {s(sBASE)}, {v(vML)}")
    a("s_cbranch_vccnz K_SWEEP")
    a("s_waitcnt lgkmcnt(0)")
    a("s_barrier")
    stamp(a, 12, vACC)
    srd(a, rB, pWS, 2*FSZ, WS_FLAG)
    vDG = vX; vBN = vX + 1; vR2 = vX + 2; vBC = vX + 3; vBE = vX + 4
    a(f"s_movk_i32 {s(sT0)}, {NLOC}")
    a(f"v_cmp_gt_u32 {s(sVAL,2)}, {s(sT0)}, v0")
    a(f"v_lshlrev_b32 {v(vt)}, 2, v0")
    a(f"v_add_u32 {v(vt)}, {L_CNT}, {v(vt)}")
    a(f"s_mov_b64 exec, {s(sVAL,2)}")
    a(f"ds_read_b32 {v(vDG)}, {v(vt)}")
    a("s_waitcnt lgkmcnt(0)")
    a(f"v_min_u32 {v(vDG)}, {STRIDE}, {v(vDG)}")
    a(f"v_sub_u32 {v(vBN)}, 63, {v(vDG)}")
    a(f"v_lshlrev_b32 {v(vBN)}, 2, {v(vBN)}")
    a(f"v_add_u32 {v(vt)}, {L_BINS}, {v(vBN)}")
    a(f"ds_add_rtn_u32 {v(vR2)}, {v(vt)}, {v(vOne)}")
    a("s_mov_b64 exec, -1")
    a("s_waitcnt lgkmcnt(0)")
    a("s_barrier")
    a(f"s_cmp_lg_u32 {s(sWAVE)}, 15")
    a("s_cbranch_scc1 K_NOPOLLB")
    poll(1, vt, vt+1, rB)
    stamp(a, 13, vACC, 15)
    a("K_NOPOLLB:")
    a(f"s_cmp_ge_u32 {s(sWAVE)}, {(NLOC+63)//64}")
    a("s_cbranch_scc1 K_NOPERM")
    a(f"v_lshlrev_b32 {v(vt)}, 2, {v(vLane)}")
    a(f"v_add_u32 {v(vt)}, {L_BINS}, {v(vt)}")
    a(f"ds_read_b32 {v(vBC)}, {v(vt)}")
    a("s_waitcnt lgkmcnt(0)")
    a(f"v_mov_b32 {v(vBE)}, {v(vBC)}")
    scan64(a, vBE)
    a(f"v_sub_u32 {v(vBE)}, {v(vBE)}, {v(vBC)}")
    a(f"ds_bpermute_b32 {v(vt)}, {v(vBN)}, {v(vBE)}")
    a(f"v_lshl_or_b32 {v(vDG)}, {v(vDG)}, 16, v0")
    a("s_waitcnt lgkmcnt(0)")
    a(f"v_add_lshl_u32 {v(vt)}, {v(vt)}, {v(vR2)}, 2")
    a(f"v_add_u32 {v(vt)}, {L_PERM}, {v(vt)}")
    a(f"s_mov_b64 exec, {s(sVAL,2)}")
    a(f"ds_write_b32 {v(vt)}, {v(vDG)}")
    a("s_mov_b64 exec, -1")
    a("s_waitcnt lgkmcnt(0)")
    a("K_NOPERM:")
    stamp(a, 14, vACC)
    a("s_barrier")
    stamp(a, 15, vACC)
    stamp(a, 13, vACC, 7, True)
    NB = int(opt("nbuf", 3))
    R2 = Regs(m0, 128)
    vDEN = R2.alloc(8); vNUM = R2.alloc(8); vEA = R2.alloc(8)
    vBUF = [R2.alloc(16, 4) for _ in range(NB)]
    vLa = R2.alloc(4); vLb = R2.alloc(4); vUa = R2.alloc(4); vUb = R2.alloc(4)
    vE = [R2.alloc(2) for _ in range(NB)]
    vREC = R2.alloc(2); vADR = vt
    vU = R2.alloc(4, 4); vXS = R2.alloc(4, 4)
    vINFO = vt + 2; vDEG = vt + 3; vLA = R2.alloc(); vOFF = R2.alloc()
    vPB = 0; vAUB = vLane; vOB = 1
    R.hi = max(R.hi, R2.hi)
    sSGN = sBASE; s128 = sVAL; sKG = sVAL + 1
    a(f"s_brev_b32 {s(sSGN)}, 1")
    a(f"s_movk_i32 {s(s128)}, 128")
    a(f"s_mul_i32 {s(sT0)}, {s(sBK)}, {NPB*256}")
    a(f"v_add_u32 {v(vOB)}, {s(sT0)}, {v(vJ16)}")
    a(f"v_lshrrev_b32 {v(vPB)}, 2, {v(vLane)}")
    a(f"v_lshlrev_b32 {v(vPB)}, 2, {v(vPB)}")
    a(f"v_add_u32 {v(vPB)}, {L_PERM}, {v(vPB)}")
    a(f"v_add_u32 {v(vAUB)}, {L_AU}, {v(vJ16)}")
    if PRIO: a("s_setprio 2")

    def G(nb, rec=None, nxt=True):
        B = vBUF[nb]
        rec = vREC if rec is None else rec
        a(f"v_mad_u32_u16 {v(vADR)}, {v(rec)}, {s(s128)}, {v(vJ16)}")
        a(f"v_mad_u32_u16 {v(vADR+1)}, {v(rec+1)}, {s(s128)}, {v(vJ16)}")
        a(f"v_and_b32 {v(vE[nb])}, {s(sMHI)}, {v(rec)}")
        a(f"v_and_b32 {v(vE[nb]+1)}, {s(sMHI)}, {v(rec+1)}")
        a(f"buffer_load_dwordx4 {v(B,4)}, {v(vADR)}, {s(rT,4)}, 0 offen")
        a(f"buffer_load_dwordx4 {v(B+4,4)}, {v(vADR)}, {s(rT,4)}, 0 offen offset:64")
        a(f"buffer_load_dwordx4 {v(B+8,4)}, {v(vADR+1)}, {s(rT,4)}, 0 offen")
        a(f"buffer_load_dwordx4 {v(B+12,4)}, {v(vADR+1)}, {s(rT,4)}, 0 offen offset:64")

    def front(B, L, e, hi):
        sel = "op_sel:[1,0,0] op_sel_hi:[1,1,1]" if hi else "op_sel_hi:[0,1,1]"
        prs = [L, L+2, B, B+2]
        a(f"v_lshlrev_b64 {v(L,2)}, 16, {v(B,2)}")
        a(f"v_lshlrev_b64 {v(L+2,2)}, 16, {v(B+2,2)}")
        for i in (2, 3, 0, 1):
            a(pk("fma", prs[i], v(e,2), v(vWC+2*i,2), v(prs[i],2), sel))
        for i in (2, 3, 0, 1):
            a(f"v_exp_f32 {v(prs[i])}, {v(prs[i])}")
            a(f"v_exp_f32 {v(prs[i]+1)}, {v(prs[i]+1)}")
        return prs
    def front2(prs):
        for i in (2, 3, 0, 1):
            a(pk("fma", prs[i], v(vEA+2*i,2), v(prs[i],2), "1.0", "op_sel_hi:[1,1,0]"))

    def Cpair(nb):
        if opt("novalu"): return
        B = vBUF[nb]
        Ba, Va, Bb, Vb = B, B+4, B+8, B+12
        pa = front(Ba, vLa, vE[nb], False)
        pb = front(Bb, vLb, vE[nb], True)
        a(f"v_lshlrev_b64 {v(vUa,2)}, 16, {v(Va,2)}")
        a(f"v_lshlrev_b64 {v(vUa+2,2)}, 16, {v(Va+2,2)}")
        a(f"v_lshlrev_b64 {v(vUb,2)}, 16, {v(Vb,2)}")
        a(f"v_lshlrev_b64 {v(vUb+2,2)}, 16, {v(Vb+2,2)}")
        front2(pa)
        front2(pb)
        qa = [vUa, vUa+2, Va, Va+2]; qb = [vUb, vUb+2, Vb, Vb+2]
        for i in range(4): a(pk("mul", qa[i], v(qa[i],2), v(pb[i],2)))
        for i in range(4): a(pk("fma", qa[i], v(qb[i],2), v(pa[i],2), v(qa[i],2)))
        for i in range(4): a(pk("mul", qb[i], v(pa[i],2), v(pb[i],2)))
        for i in range(4): a(pk("add", pa[i], v(pa[i],2), v(pb[i],2)))
        for i in range(4):
            a(f"v_rcp_f32 {v(qb[i])}, {v(qb[i])}")
            a(f"v_rcp_f32 {v(qb[i]+1)}, {v(qb[i]+1)}")
        for i in range(4): a(pk("fma", vNUM+2*i, v(qa[i],2), v(qb[i],2), v(vNUM+2*i,2)))
        for i in range(4): a(pk("fma", vDEN+2*i, v(pa[i],2), v(qb[i],2), v(vDEN+2*i,2)))

    def Csingle(nb, hi):
        if opt("novalu"): return
        B = vBUF[nb] + (8 if hi else 0)
        V = B + 4
        p = front(B, vLa, vE[nb], hi)
        a(f"v_lshlrev_b64 {v(vUa,2)}, 16, {v(V,2)}")
        front2(p)
        a(f"v_lshlrev_b64 {v(vUa+2,2)}, 16, {v(V+2,2)}")
        for i in (2, 3, 0, 1):
            a(f"v_rcp_f32 {v(p[i])}, {v(p[i])}")
            a(f"v_rcp_f32 {v(p[i]+1)}, {v(p[i]+1)}")
        q = [vUa, vUa+2, V, V+2]
        for i in (2, 3, 0, 1): a(pk("add", vDEN+2*i, v(vDEN+2*i,2), v(p[i],2)))
        for i in (2, 3, 0, 1): a(pk("fma", vNUM+2*i, v(q[i],2), v(p[i],2), v(vNUM+2*i,2)))

    DEP = NB - 1
    a("K_GROUP:")
    signal(M_Q, vINFO)
    a("s_waitcnt lgkmcnt(0)")
    a(f"v_readfirstlane_b32 {s(sT0)}, {v(vINFO)}")
    a(f"s_cmp_ge_u32 {s(sT0)}, {NGRP}")
    a("s_cbranch_scc1 K_DONE")
    a(f"s_lshl_b32 {s(sT0)}, {s(sT0)}, 6")
    a(f"v_add_u32 {v(vINFO)}, {s(sT0)}, {v(vPB)}")
    a(f"ds_read_b32 {v(vINFO)}, {v(vINFO)}")
    a("s_waitcnt lgkmcnt(0)")
    a(f"v_lshrrev_b32 {v(vDEG)}, 16, {v(vINFO)}")
    a(f"v_and_b32 {v(vINFO)}, 0xffff, {v(vINFO)}")
    a(f"v_mul_u32_u24 {v(vLA)}, {STRIDE*4}, {v(vINFO)}")
    for j in range(DEP):
        a(f"ds_read2_b32 {v(vLa+2*j,2)}, {v(vLA)} offset0:{2*j} offset1:{2*j+1}")
    a(f"ds_read2_b32 {v(vREC,2)}, {v(vLA)} offset0:{2*DEP} offset1:{2*DEP+1}")
    a(f"v_mul_u32_u24 {v(vADR)}, {AUS}, {v(vINFO)}")
    a(f"v_add_u32 {v(vADR)}, {v(vADR)}, {v(vAUB)}")
    a(f"ds_read_b128 {v(vEA,4)}, {v(vADR)}")
    a(f"ds_read_b128 {v(vU,4)}, {v(vADR)} offset:64")
    a(f"v_readlane_b32 {s(sMAX)}, {v(vDEG)}, 0")
    a(f"v_readlane_b32 {s(sMIN)}, {v(vDEG)}, 63")
    a(f"v_lshl_add_u32 {v(vOFF)}, {v(vINFO)}, 8, {v(vOB)}")
    a(f"v_sub_u32 {v(vINFO)}, {NPB-1}, {v(vINFO)}")
    a(f"v_and_or_b32 {v(vOFF)}, {v(vINFO)}, {s(sSGN)}, {v(vOFF)}")
    a(f"buffer_load_dwordx4 {v(vXS,4)}, {v(vOFF)}, {s(rX,4)}, {s(sSL64)} offen")
    for j in range(DEP):
        a(f"s_waitcnt lgkmcnt({DEP - j + 2})")
        G(j, vLa + 2*j)
    a("s_waitcnt lgkmcnt(1)")
    for d in range(4): a(f"v_and_b32 {v(vEA+4+d)}, {s(sMHI)}, {v(vEA+d)}")
    for d in range(4): a(f"v_lshlrev_b32 {v(vEA+d)}, 16, {v(vEA+d)}")
    for d in (4, 5, 6, 7, 0, 1, 2, 3): a(f"v_exp_f32 {v(vEA+d)}, {v(vEA+d)}")
    a(f"v_mov_b32 {v(vDEN)}, {hx(fbits(1e-6))}")
    a(f"v_mov_b32 {v(vDEN+1)}, {v(vDEN)}")
    for d in range(2, 8, 2): a(f"v_mov_b64 {v(vDEN+d,2)}, {v(vDEN,2)}")
    for d in range(0, 8, 2): a(f"v_mov_b64 {v(vNUM+d,2)}, 0")
    a(f"s_mov_b32 {s(sK)}, 0")
    a(f"s_sub_u32 {s(sKG)}, {s(sMAX)}, {2*DEP}")
    a(f"s_cmp_eq_u32 {s(sMAX)}, 0")
    a("s_cbranch_scc1 K_EPI0")
    a("K_LOOP:")
    for cur in range(NB):
        a(f"s_cmp_lt_i32 {s(sK)}, {s(sKG)}")
        a(f"s_cbranch_scc0 K_NOG{cur}")
        a("s_waitcnt lgkmcnt(0)")
        G((cur + DEP) % NB)
        a(f"ds_read2_b32 {v(vREC,2)}, {v(vLA)} offset0:{2*(DEP+1+cur)} offset1:{2*(DEP+1+cur)+1}")
        if cur == NB - 1: a(f"v_add_u32 {v(vLA)}, {8*NB}, {v(vLA)}")
        a(f"s_waitcnt vmcnt({4*DEP})")
        a(f"K_GOT{cur}:")
        a(f"s_add_u32 {s(sT0)}, {s(sK)}, 2")
        a(f"s_cmp_le_u32 {s(sT0)}, {s(sMIN)}")
        a(f"s_cbranch_scc0 K_TAIL{cur}")
        Cpair(cur)
        a(f"K_NEXT{cur}:")
        a(f"s_add_u32 {s(sK)}, {s(sK)}, 2")
        a(f"s_cmp_ge_u32 {s(sK)}, {s(sMAX)}")
        a("s_cbranch_scc1 K_EPI" if cur < NB - 1 else "s_cbranch_scc0 K_LOOP")
    a("K_EPI:")
    a("s_mov_b64 exec, -1")
    a("s_waitcnt lgkmcnt(0)")
    for d in range(8): a(f"v_rcp_f32 {v(vDEN+d)}, {v(vDEN+d)}")
    Uu = vUa; Xu = vLa
    assert vLb == vLa + 4 and vUb == vUa + 4
    for d in range(4):
        a(f"v_lshlrev_b32 {v(Uu+d)}, 16, {v(vU+d)}")
        a(f"v_and_b32 {v(Uu+4+d)}, {s(sMHI)}, {v(vU+d)}")
        a(f"v_lshlrev_b32 {v(Xu+d)}, 16, {v(vXS+d)}")
        a(f"v_and_b32 {v(Xu+4+d)}, {s(sMHI)}, {v(vXS+d)}")
    for i in range(4): a(pk("fma", Uu+2*i, v(vNUM+2*i,2), v(vDEN+2*i,2), v(Uu+2*i,2)))
    for d in range(8): a(f"v_max_f32 {v(Uu+d)}, 0, {v(Uu+d)}")
    for i in range(4): a(pk("add", Uu+2*i, v(Uu+2*i,2), v(Xu+2*i,2)))
    for d in range(4): a(f"v_cvt_pk_bf16_f32 {v(vNUM+d)}, {v(Uu+d)}, {v(Uu+4+d)}")
    a(f"buffer_store_dwordx4 {v(vNUM,4)}, {v(vOFF)}, {s(rA,4)}, {s(sSL64)} offen{OSC}")
    if PRIO: a("s_setprio 0")
    a("s_branch K_GROUP")
    a("K_EPI0:")
    a("s_waitcnt vmcnt(0)")
    a("s_branch K_EPI")
    for cur in range(NB):
        a(f"K_NOG{cur}:")
        if DEP >= 2:
            a(f"s_add_u32 {s(sT0)}, {s(sK)}, 2")
            a(f"s_cmp_lt_u32 {s(sT0)}, {s(sMAX)}")
            a(f"s_cbranch_scc0 K_NOGZ{cur}")
            a("s_waitcnt vmcnt(4)")
            a(f"s_branch K_GOT{cur}")
            a(f"K_NOGZ{cur}:")
        a("s_waitcnt vmcnt(0)")
        a(f"s_branch K_GOT{cur}")
        a(f"K_TAIL{cur}:")
        a(f"v_cmpx_lt_u32 vcc, {s(sK)}, {v(vDEG)}")
        Csingle(cur, False)
        a(f"s_add_u32 {s(sT0)}, {s(sK)}, 1")
        a(f"s_cmp_ge_u32 {s(sT0)}, {s(sMAX)}")
        a("s_cbranch_scc1 K_EPI")
        a(f"v_cmpx_lt_u32 vcc, {s(sT0)}, {v(vDEG)}")
        Csingle(cur, True)
        a(f"s_branch K_NEXT{cur}")
    vP = vLa
    a("K_DONE:")
    stamp(a, 16, vP, None)
    stamp(a, 14, vP, 7, True)
    a("K_END:")
    a("s_endpgm")
    return R.hi

def main():
    a = Asm()
    hdr = open("standalone__edge_featured_mpnn_gatedgcn__graph.s.ref").read().split("\n")
    for l in hdr:
        if l.startswith("; Override"): break
        a.raw(l)
    if ASLIST:
        a.raw(f"; @launch kernel={KNAME} grid=({NWG},1,1) block=(1024,1,1) lds={L_END}")
    else:
        a.raw(f"; @launch grid=({NWG},1,1) block=(1024,1,1) lds={L_END}")
    a.raw('.amdgcn_target "amdgcn-amd-amdhsa--gfx950"')
    a.raw(".text")
    nv = gen(a)
    a.raw('.section .rodata,"a"')
    a.raw(".p2align 6")
    a.raw(f".amdhsa_kernel {KNAME}")
    a.raw(f"  .amdhsa_next_free_vgpr {nv}")
    a.raw(f"  .amdhsa_next_free_sgpr 102")
    a.raw(f"  .amdhsa_accum_offset {(nv+3)//4*4}")
    a.raw(f"  .amdhsa_group_segment_fixed_size 0")
    a.raw(f"  .amdhsa_kernarg_size 96")
    a.raw(f"  .amdhsa_user_sgpr_count 2")
    a.raw(f"  .amdhsa_user_sgpr_kernarg_segment_ptr 1")
    a.raw(f"  .amdhsa_system_sgpr_workgroup_id_x 1")
    a.raw(f".end_amdhsa_kernel")
    out = [x for x in sys.argv[1:] if not x.startswith("--")]
    open(out[0] if out else "out.s", "w").write(a.text())
    print("vgprs", nv, "lds", L_END, file=sys.stderr)

main()
```

```python
import sys, math
from asmlib import *

def opt(name, default=None):
    for x in sys.argv[1:]:
        if x == "--" + name: return True
        if x.startswith("--" + name + "="): return x.split("=", 1)[1]
    return default

KNAME = "standalone__edge_featured_mpnn_gatedgcn__graph_kernel"
N, E, D = 25000, 400000, 128
NWG = 256
CH = 1568
CHB = CH * 8
TS = 25024 * 128
WS_T, WS_REC, WS_DESC, WS_STAMP, WS_FLAG = 0, 0x00D00000, 0x01100000, 0x01200000, 0x01300000
LOG2E = 1.4426950408889634
STRIDE = 41
NLOC = 400
NGRP = NLOC // 16
AUS = 144
NPB = 391
MAGIC = 42909
NSH = int(opt('nsh', 16))
NREP = int(opt('nrep', 8))
FSZ = 4096
assert (NSH + 1 + NREP) * 128 <= FSZ
STAMPS = opt("stamps", False)
OSC = {"plain": "", "sc1": " sc1", "nt": " nt", "sc01": " sc0 sc1"}[opt("osc", "plain")]
PRIO = not opt("noprio")
ASLIST = opt("aslist", False)
WSBASE = int(opt("wsbase", 0)) << 20
SLP = int(opt("sleep", 2))
TST = "" if opt("tstplain") else " sc1"

L_LIST = 0
L_AU = NLOC * STRIDE * 4
L_STAGE = 13 * 8192
L_WL = L_AU + 416 * AUS
assert L_STAGE + CHB <= L_WL
L_Z = L_WL + 32768
L_CNT = L_Z
L_BINS = L_CNT + 416 * 4
L_CNTA = L_BINS + 256
L_MISC = L_CNTA + 256
M_Q, M_HS1, M_HS2, M_HS3, M_WRDY, M_XCNT, M_GCNT, M_DRDY = 0, 4, 8, 12, 16, 20, 24, 28
L_ZEND = L_MISC + 32
L_PERM = L_ZEND
L_DESC = L_PERM + NLOC * 4
L_END = L_DESC + 1024
assert L_AU % 16 == 0 and L_WL % 16 == 0 and L_END <= 163840, L_END

sWG, sWAVE, sSL, sBK = 2, 3, 4, 5
sT0, sT1, sT2, sT3 = 6, 7, 8, 9
sVAL, sOVF = 10, 12
sK, sMAX = 14, 15
pX, pE, pSRC, pDST, pWA, pWB, pWC, pWU, pWV, pOUT, pDBG, pWS = 16, 18, 20, 22, 24, 26, 28, 30, 32, 34, 36, 38
rX, rW, rT, rREC, rDESC, rA, rB, rC = 40, 44, 48, 52, 56, 60, 64, 68
sMHI, sM7F0, sM7FF, sTINY, sPERM, sNL2E, sMIN, sBASE = 72, 73, 74, 75, 76, 77, 78, 79
sMSK = 80
sVAL2 = 80
rFLG, rDBG, rOUT = 84, 88, 92
sST, rST = 96, 98
sSL64, sSPIN, sTILE, sXS = 0, 1, 100, 101
sNB0 = 35

def srd(a, r, p, nbytes, add=None):
    if add is None:
        a(f"s_mov_b32 {s(r)}, {s(p)}")
        a(f"s_and_b32 {s(r+1)}, {s(p+1)}, 0xffff")
    else:
        a(f"s_add_u32 {s(r)}, {s(p)}, {add}")
        a(f"s_addc_u32 {s(r+1)}, {s(p+1)}, 0")
        a(f"s_and_b32 {s(r+1)}, {s(r+1)}, 0xffff")
    a(f"s_mov_b32 {s(r+2)}, {hx(nbytes)}")
    a(f"s_mov_b32 {s(r+3)}, 0x20000")

def stamp(a, idx, vt, wave=0, clk=False):
    if not STAMPS: return
    if opt("clk") and idx in (12, 13, 14) and not clk: return
    if clk and not opt("clk"): return
    l = a.uid("ST")
    if wave is not None and wave >= 0:
        a(f"s_cmp_lg_u32 {s(sWAVE)}, {wave}")
        a(f"s_cbranch_scc1 {l}")
    a(f"s_memrealtime {s(sST,2)}" if not clk else f"s_memtime {s(sST,2)}")
    a(f"s_waitcnt lgkmcnt(0)")
    a(f"s_mov_b64 {s(rST,2)}, exec")
    a(f"s_mov_b64 exec, 1")
    a(f"v_mov_b32 {v(vt)}, {s(sST)}")
    a(f"v_mov_b32 {v(vt+1)}, {s(sST+1)}")
    a(f"s_lshl_b32 {s(sST)}, {s(sWG)}, 8")
    if wave is None:
        a(f"s_lshl_b32 {s(sST+1)}, {s(sWAVE)}, 3")
        a(f"s_add_u32 {s(sST)}, {s(sST)}, {s(sST+1)}")
    a(f"s_add_u32 {s(sST)}, {s(sST)}, {WS_STAMP + idx*8}")
    a(f"v_mov_b32 {v(vt+2)}, {s(sST)}")
    a(f"global_store_dwordx2 {v(vt+2)}, {v(vt,2)}, {s(pWS,2)}")
    a(f"s_mov_b64 exec, {s(rST,2)}")
    a(f"{l}:")

def scan64(a, r):
    for sh in (1, 2, 4, 8):
        a("s_nop 1")
        a(f"v_add_u32_dpp {v(r)}, {v(r)}, {v(r)} row_shr:{sh} row_mask:0xf bank_mask:0xf")
    a("s_nop 1")
    a(f"v_add_u32_dpp {v(r)}, {v(r)}, {v(r)} row_bcast:15 row_mask:0xa bank_mask:0xf")
    a("s_nop 1")
    a(f"v_add_u32_dpp {v(r)}, {v(r)}, {v(r)} row_bcast:31 row_mask:0xc bank_mask:0xf")

def tr_reads(a, mat, vTR, vWF):
    for t in range(8):
        for q in range(2):
            a(f"ds_read_b64_tr_b16 {v(vWF+4*t+2*q,2)}, {v(vTR)} offset:{mat*8192 + t*1024 + q*256}")

def mfma_chain(a, vWF, vX, vACC):
    for t in range(8):
        c = "0" if t == 0 else v(vACC, 16)
        a(f"v_mfma_f32_32x32x16_bf16 {v(vACC,16)}, {v(vWF+4*t,4)}, {v(vX+4*t,4)}, {c}")

def pack_chain(a, vIN, vOUT, vTMP, vBIG):
    G = range(4)
    m = lambda g: vTMP + g
    t = lambda g: vTMP + 4 + g
    sd = "dst_sel:DWORD dst_unused:UNUSED_PAD src0_sel:DWORD"
    for g in G: a(f"v_cvt_pk_bf16_f32 {v(vOUT+2*g)}, {v(vIN+4*g)}, {v(vIN+4*g+1)}")
    for g in G: a(f"v_med3_f32 {v(m(g))}, |{v(vIN+4*g+1)}|, {s(sTINY)}, {v(vBIG)}")
    for g in G: a(f"v_med3_f32 {v(t(g))}, |{v(vIN+4*g+2)}|, {s(sTINY)}, {v(vBIG)}")
    for g in G: a(f"v_add_u32 {v(m(g))}, 0x8000, {v(m(g))}")
    for g in G: a(f"v_add_u32 {v(t(g))}, 0x8000, {v(t(g))}")
    for g in G: a(f"v_sub_u32_sdwa {v(m(g))}, {v(m(g))}, {v(vOUT+2*g)} {sd} src1_sel:WORD_0")
    for g in G: a(f"v_bfi_b32 {v(vOUT+2*g)}, {s(sM7F0)}, {v(m(g))}, {v(vOUT+2*g)}")
    for g in G: a(f"v_med3_f32 {v(m(g))}, |{v(vIN+4*g+3)}|, {s(sTINY)}, {v(vBIG)}")
    for g in G: a(f"v_sub_u32_sdwa {v(t(g))}, {v(t(g))}, {v(vOUT+2*g)} {sd} src1_sel:WORD_1")
    for g in G: a(f"v_add_u32 {v(m(g))}, 0x8000, {v(m(g))}")
    for g in G: a(f"v_bfi_b32 {v(t(g))}, {s(sM7FF)}, {v(t(g))}, {v(vIN+4*g+2)}")
    for g in G: a(f"v_sub_u32_sdwa {v(m(g))}, {v(m(g))}, {v(t(g))} {sd} src1_sel:WORD_1")
    for g in G: a(f"v_perm_b32 {v(t(g))}, {v(vIN+4*g+3)}, {v(t(g))}, {s(sPERM)}")
    for g in G: a(f"v_bfi_b32 {v(vOUT+2*g+1)}, {s(sM7F0)}, {v(m(g))}, {v(t(g))}")

def pk(op, d, a0, b0, c0=None, sel=None):
    ops = f"{v(d,2)}, {a0}, {b0}" + (f", {c0}" if c0 else "")
    return f"v_pk_{op}_f32 {ops}" + (f" {sel}" if sel else "")

def gen(a):
    R = Regs(1, 128)
    vt = R.alloc(4)
    vLane = R.alloc(); vOne = R.alloc(); vJ16 = R.alloc(); vMISC = R.alloc()
    vWC = R.alloc(8)
    m0 = R.mark()
    vAUa = R.alloc(); vTR = R.alloc(); vBIG = R.alloc(); vSC = R.alloc()
    vAUP = R.alloc(16, 4)
    vX = R.alloc(32, 4); vWF = R.alloc(32, 4); vACC = R.alloc(16, 4)
    vO = vAUP; vTM = vAUP + 8

    def signal(off, ret=None):
        a("s_mov_b64 exec, 1")
        if ret is None:
            a(f"ds_add_u32 {v(vMISC)}, {v(vOne)} offset:{off}")
        else:
            a(f"ds_add_rtn_u32 {v(ret)}, {v(vMISC)}, {v(vOne)} offset:{off}")
        a("s_mov_b64 exec, -1")
    def spin(off, target, vtmp):
        l = a.uid("SP"); d = a.uid("SPD")
        a(f"s_mov_b32 {s(sSPIN)}, 0x400000")
        a(f"{l}:")
        a(f"ds_read_b32 {v(vtmp)}, {v(vMISC)} offset:{off}")
        a("s_waitcnt lgkmcnt(0)")
        a(f"v_readfirstlane_b32 {s(sT0)}, {v(vtmp)}")
        a(f"s_cmp_ge_u32 {s(sT0)}, {target}")
        a(f"s_cbranch_scc1 {d}")
        a("s_sleep 1")
        a(f"s_sub_u32 {s(sSPIN)}, {s(sSPIN)}, 1")
        a(f"s_cbranch_scc0 {l}")
        a(f"{d}:")
    def arrive(phase, vtmp):
        l = a.uid("ARR")
        a(f"s_and_b32 {s(sT1)}, s2, {NSH-1}")
        a(f"s_lshl_b32 {s(sT1)}, {s(sT1)}, 7")
        a(f"v_mov_b32 {v(vtmp)}, {s(sT1)}")
        a(f"v_mov_b32 {v(vtmp+1)}, 1")
        a(f"s_mov_b32 {s(sT1)}, {phase*FSZ}")
        a("s_mov_b64 exec, 1")
        a(f"buffer_atomic_add {v(vtmp+1)}, {v(vtmp)}, {s(rFLG,4)}, {s(sT1)} offen sc0 sc1")
        a("s_waitcnt vmcnt(0)")
        a(f"v_readfirstlane_b32 {s(sT0)}, {v(vtmp+1)}")
        a(f"s_cmp_lg_u32 {s(sT0)}, {NWG//NSH - 1}")
        a(f"s_cbranch_scc1 {l}")
        if NSH > 1:
            a(f"v_mov_b32 {v(vtmp)}, {NSH*128}")
            a(f"v_mov_b32 {v(vtmp+1)}, 1")
            a(f"buffer_atomic_add {v(vtmp+1)}, {v(vtmp)}, {s(rFLG,4)}, {s(sT1)} offen sc0 sc1")
            a("s_waitcnt vmcnt(0)")
            a(f"v_readfirstlane_b32 {s(sT0)}, {v(vtmp+1)}")
            a(f"s_cmp_lg_u32 {s(sT0)}, {NSH - 1}")
            a(f"s_cbranch_scc1 {l}")
        a(f"s_mov_b64 exec, {hx((1<<NREP)-1)}")
        a(f"v_lshlrev_b32 {v(vtmp)}, 7, {v(vLane)}")
        a(f"s_add_u32 {s(sT1)}, {s(sT1)}, {(NSH+1)*128}")
        a(f"buffer_store_dword {v(vOne)}, {v(vtmp)}, {s(rFLG,4)}, {s(sT1)} offen sc1")
        a(f"{l}:")
        a("s_mov_b64 exec, -1")
    def poll(phase, vA, vD, rF=rFLG):
        l = a.uid("POLL"); d = a.uid("POLLD")
        a(f"s_and_b32 {s(sT1)}, s2, {NREP-1}")
        a(f"s_lshl_b32 {s(sT1)}, {s(sT1)}, 7")
        a(f"s_add_u32 {s(sT1)}, {s(sT1)}, {phase*FSZ + (NSH+1)*128}")
        a(f"v_mov_b32 {v(vA)}, {s(sT1)}")
        a(f"s_mov_b32 {s(sSPIN)}, 0x100000")
        a(f"s_mov_b64 exec, 1")
        a(f"{l}:")
        a(f"buffer_load_dword {v(vD)}, {v(vA)}, {s(rF,4)}, 0 offen sc1")
        a("s_waitcnt vmcnt(0)")
        a(f"v_cmp_eq_u32 vcc, 0, {v(vD)}")
        a(f"s_cbranch_vccz {d}")
        a(f"s_sleep {SLP}")
        a(f"s_sub_u32 {s(sSPIN)}, {s(sSPIN)}, 1")
        a(f"s_cbranch_scc0 {l}")
        a(f"{d}:")
        a("s_mov_b64 exec, -1")
    def x_dma(vA, vB, split=None, thr=0):
        a(f"v_lshrrev_b32 {v(vA)}, 4, {v(vLane)}")
        a(f"v_and_b32 {v(vB)}, 15, {v(vLane)}")
        a(f"v_xor_b32 {v(vB)}, {v(vB)}, {v(vA)}")
        a(f"v_lshlrev_b32 {v(vB)}, 4, {v(vB)}")
        a(f"s_lshl_b32 {s(sT0)}, {s(sTILE)}, 5")
        a(f"v_add_u32 {v(vA)}, {s(sT0)}, {v(vA)}")
        a(f"s_mul_i32 {s(sT0)}, {s(sBK)}, {NPB*256}")
        a(f"v_lshl_add_u32 {v(vA+3)}, {v(vA)}, 8, {s(sT0)}")
        a(f"v_sub_u32 {v(vA)}, {NPB-1}, {v(vA)}")
        a(f"s_mov_b32 m0, {s(sXS)}")
        a(f"s_brev_b32 {s(sT1)}, 1")
        for i in range(8):
            if split is not None and i == split:
                spin(M_XCNT, 4, vt)
                a(f"s_brev_b32 {s(sT1)}, 1")
            a(f"v_xor_b32 {v(vA+2)}, {(i&3)*64}, {v(vB)}")
            a(f"v_add_u32 {v(vA+2)}, {v(vA+2)}, {v(vA+3)}")
            a(f"v_and_or_b32 {v(vA+2)}, {v(vA)}, {s(sT1)}, {v(vA+2)}")
            if thr and i >= thr: a(f"s_waitcnt vmcnt({thr-1})")
            a(f"buffer_load_dwordx4 {v(vA+2)}, {s(rX,4)}, 0 offen lds")
            if i < 7:
                a(f"s_add_u32 m0, m0, 1024")
                a(f"v_add_u32 {v(vA+3)}, 0x400, {v(vA+3)}")
                a(f"v_subrev_u32 {v(vA)}, 4, {v(vA)}")

    a.raw(f".globl {KNAME}")
    a.raw(".p2align 8")
    a.raw(f".type {KNAME},@function")
    a.raw(f"{KNAME}:")
    a(f"s_cmp_ge_u32 s2, {NWG}")
    a(f"s_cbranch_scc1 K_END")
    a("s_load_dwordx16 s[16:31], s[0:1], 0")
    a("s_load_dwordx8 s[32:39], s[0:1], 64")
    a(f"v_lshrrev_b32 v1, 6, v0")
    a(f"s_and_b32 {s(sSL)}, s2, 3")
    a(f"v_readfirstlane_b32 {s(sWAVE)}, v1")
    a(f"s_lshr_b32 {s(sBK)}, s2, 2")
    a(f"v_and_b32 {v(vLane)}, 63, v0")
    a(f"v_mov_b32 {v(vOne)}, 1")
    a(f"v_mov_b32 {v(vMISC)}, {L_MISC}")
    nz = (L_ZEND - L_Z) // 4
    a(f"v_lshlrev_b32 {v(vt)}, 2, v0")
    a(f"v_add_u32 {v(vt)}, {L_Z}, {v(vt)}")
    a(f"v_mov_b32 {v(vt+1)}, 0")
    a(f"v_cmp_gt_u32 vcc, {nz}, v0")
    a("s_mov_b64 exec, vcc")
    a(f"ds_write_b32 {v(vt)}, {v(vt+1)}")
    a("s_mov_b64 exec, -1")
    a(f"v_and_b32 {v(vJ16)}, 3, v0")
    a(f"v_lshlrev_b32 {v(vJ16)}, 4, {v(vJ16)}")
    a(f"s_sub_u32 {s(sTILE)}, {s(sWAVE)}, 4")
    a(f"s_cselect_b32 {s(sTILE)}, 12, {s(sTILE)}")
    a(f"s_lshl_b32 {s(sXS)}, {s(sTILE)}, 13")
    a(f"s_cmp_ge_u32 {s(sWAVE)}, 4")
    a("s_waitcnt lgkmcnt(0)")
    if opt("rndws"):
        a(f"s_memrealtime {s(sT2,2)}")
        a("s_waitcnt lgkmcnt(0)")
        a(f"s_lshr_b32 {s(sT2)}, {s(sT2)}, 17")
        a(f"s_and_b32 {s(sT2)}, {s(sT2)}, 3")
        a(f"s_lshl_b32 {s(sT2)}, {s(sT2)}, 26")
        a(f"s_add_u32 {s(pWS)}, {s(pWS)}, {s(sT2)}")
        a(f"s_addc_u32 {s(pWS+1)}, {s(pWS+1)}, 0")
    if WSBASE:
        a(f"s_add_u32 {s(pWS)}, {s(pWS)}, {WSBASE}")
        a(f"s_addc_u32 {s(pWS+1)}, {s(pWS+1)}, 0")
    a(f"s_lshl_b32 {s(sSL64)}, {s(sSL)}, 6")
    stamp(a, 0, vACC)
    srd(a, rX, pX, N*256)
    srd(a, rC, pWC, 256)
    srd(a, rFLG, pWS, 2*FSZ, WS_FLAG)
    a(f"s_cmp_ge_u32 {s(sWAVE)}, 4")
    a("s_cbranch_scc1 K_G0")
    vD8 = vX; vS8 = vX + 8; vE4 = vX + 16; vRK = vX + 20; vKY = vWF; vRP = vWF + 8; vCN = vWF + 24; vEX = vWF + 25
    a(f"s_cmp_lg_u32 s2, 0")
    a("s_cbranch_scc1 K_NOZ")
    a(f"s_cmp_lg_u32 {s(sWAVE)}, 3")
    a("s_cbranch_scc1 K_NOZ")
    a(f"v_lshlrev_b32 {v(vt)}, 7, {v(vLane)}")
    a(f"buffer_store_dword {v(vt+1)}, {v(vt)}, {s(rFLG,4)}, 0 offen sc1")
    a("K_NOZ:")
    if opt("hprio"): a("s_setprio 3")
    a(f"s_cmp_eq_u32 {s(sWAVE)}, 1")
    a(f"s_cselect_b32 {s(rW)}, {s(pWV)}, {s(pWB)}")
    a(f"s_cselect_b32 {s(rW+1)}, {s(pWV+1)}, {s(pWB+1)}")
    a(f"s_cmp_eq_u32 {s(sWAVE)}, 2")
    a(f"s_cselect_b32 {s(rW)}, {s(pWA)}, {s(rW)}")
    a(f"s_cselect_b32 {s(rW+1)}, {s(pWA+1)}, {s(rW+1)}")
    a(f"s_cmp_eq_u32 {s(sWAVE)}, 3")
    a(f"s_cselect_b32 {s(rW)}, {s(pWU)}, {s(rW)}")
    a(f"s_cselect_b32 {s(rW+1)}, {s(pWU+1)}, {s(rW+1)}")
    a(f"s_and_b32 {s(rW+1)}, {s(rW+1)}, 0xffff")
    a(f"s_mov_b32 {s(rW+2)}, {128*256}")
    a(f"s_mov_b32 {s(rW+3)}, 0x20000")
    a(f"v_lshrrev_b32 {v(vt)}, 2, {v(vLane)}")
    a(f"v_lshl_add_u32 {v(vt)}, {v(vt)}, 8, {v(vJ16)}")
    a(f"s_lshl_b32 {s(sT0)}, {s(sWAVE)}, 13")
    a(f"s_add_u32 m0, {s(sT0)}, {L_WL}")
    a(f"s_mov_b32 {s(sT1)}, {s(sSL64)}")
    for i in range(8):
        a(f"buffer_load_dwordx4 {v(vt)}, {s(rW,4)}, {s(sT1)} offen lds")
        if i < 7:
            a(f"s_add_u32 m0, m0, 1024")
            a(f"s_add_u32 {s(sT1)}, {s(sT1)}, 4096")
    srd(a, rA, pDST, E*4); srd(a, rB, pSRC, E*4); srd(a, rDESC, pE, E*2)
    a(f"s_mul_i32 {s(sT0)}, s2, {CH}")
    a(f"v_lshl_add_u32 {v(vt)}, v0, 2, {s(sT0)}")
    a(f"v_add_u32 {v(vt+1)}, {CH//2}, {v(vt)}")
    a(f"s_mov_b32 {s(sT1)}, {E}")
    a(f"v_cmp_gt_u32 vcc, {CH//8}, v0")
    a(f"v_cmp_gt_u32 {s(sVAL,2)}, {s(sT1)}, {v(vt)}")
    a(f"v_cmp_gt_u32 {s(sVAL2,2)}, {s(sT1)}, {v(vt+1)}")
    a(f"v_lshlrev_b32 {v(vt+2)}, 2, {v(vt)}")
    a(f"v_lshlrev_b32 {v(vt+3)}, 1, {v(vt)}")
    a(f"s_and_b64 {s(sVAL,2)}, {s(sVAL,2)}, vcc")
    a(f"s_and_b64 {s(sVAL2,2)}, {s(sVAL2,2)}, vcc")
    a("s_mov_b64 exec, vcc")
    a(f"buffer_load_dwordx4 {v(vD8,4)}, {v(vt+2)}, {s(rA,4)}, 0 offen")
    a(f"buffer_load_dwordx4 {v(vD8+4,4)}, {v(vt+2)}, {s(rA,4)}, 0 offen offset:{CH*2}")
    a(f"buffer_load_dwordx4 {v(vS8,4)}, {v(vt+2)}, {s(rB,4)}, 0 offen")
    a(f"buffer_load_dwordx4 {v(vS8+4,4)}, {v(vt+2)}, {s(rB,4)}, 0 offen offset:{CH*2}")
    a(f"buffer_load_dwordx2 {v(vE4,2)}, {v(vt+3)}, {s(rDESC,4)}, 0 offen")
    a(f"buffer_load_dwordx2 {v(vE4+2,2)}, {v(vt+3)}, {s(rDESC,4)}, 0 offen offset:{CH}")
    a("s_mov_b64 exec, -1")
    a(f"s_cmp_lg_u32 {s(sWAVE)}, 0")
    a("s_cbranch_scc1 K_G0")
    x_dma(vACC, vACC + 1)
    a("K_G0:")
    a(f"buffer_load_dwordx4 {v(vWC,4)}, {v(vJ16)}, {s(rC,4)}, {s(sSL64)} offen")
    a("s_barrier")
    a(f"s_cmp_lt_u32 {s(sWAVE)}, 4")
    a("s_cbranch_scc1 K_C0")
    x_dma(vACC, vACC + 1, int(opt("xsplit")) if opt("xsplit") else None, int(opt("thr", 0)))
    a("K_C0:")
    a(f"s_mov_b32 {s(sMHI)}, 0xffff0000")
    a(f"s_mov_b32 {s(sM7F0)}, 0x7fff0000")
    a(f"s_mov_b32 {s(sM7FF)}, 0x7fffffff")
    a(f"s_mov_b32 {s(sTINY)}, 0x00800000")
    a(f"s_mov_b32 {s(sPERM)}, 0x07060302")
    a(f"s_mov_b32 {s(sNL2E)}, {hx(fbits(-LOG2E))}")
    a(f"s_mul_i32 {s(sT0)}, {s(sSL)}, {TS}")
    srd(a, rT, pWS, N*128, s(sT0))
    srd(a, rREC, pWS, NWG*CHB, WS_REC)
    srd(a, rDESC, pWS, 65536, WS_DESC)
    srd(a, rA, pOUT, N*256)
    srd(a, rDBG, pDBG, 256)
    a(f"v_lshrrev_b32 {v(vTR)}, 5, {v(vLane)}")
    a(f"v_lshlrev_b32 {v(vTR)}, 3, {v(vTR)}")
    a(f"v_bfe_u32 {v(vt)}, {v(vLane)}, 2, 2")
    a(f"v_add_u32 {v(vTR)}, {v(vTR)}, {v(vt)}")
    a(f"v_lshlrev_b32 {v(vTR)}, 6, {v(vTR)}")
    a(f"v_bfe_u32 {v(vt)}, {v(vLane)}, 4, 1")
    a(f"v_lshl_add_u32 {v(vTR)}, {v(vt)}, 5, {v(vTR)}")
    a(f"v_and_b32 {v(vt)}, 1, {v(vLane)}")
    a(f"v_lshl_add_u32 {v(vTR)}, {v(vt)}, 4, {v(vTR)}")
    a(f"v_and_b32 {v(vt)}, 2, {v(vLane)}")
    a(f"v_lshl_add_u32 {v(vTR)}, {v(vt)}, 2, {v(vTR)}")
    a(f"v_add_u32 {v(vTR)}, {L_WL}, {v(vTR)}")
    a(f"v_mov_b32 {v(vBIG)}, 0x7f7f7fff")
    a(f"v_and_b32 {v(vt)}, 31, {v(vLane)}")
    a(f"v_mul_u32_u24 {v(vt)}, {AUS}, {v(vt)}")
    a(f"v_lshrrev_b32 {v(vt+1)}, 5, {v(vLane)}")
    a(f"v_lshl_add_u32 {v(vt)}, {v(vt+1)}, 4, {v(vt)}")
    a(f"v_add_u32 {v(vSC)}, {s(sXS)}, {v(vt)}")
    a(f"s_mul_i32 {s(sT0)}, {s(sTILE)}, {32*AUS}")
    a(f"s_add_u32 {s(sT0)}, {s(sT0)}, {L_AU}")
    a(f"v_add_u32 {v(vAUa)}, {s(sT0)}, {v(vt)}")
    a(f"s_cmp_ge_u32 {s(sWAVE)}, 4")
    a("s_cbranch_scc1 K_GEMM")
    a(f"s_cmp_eq_u32 {s(sWAVE)}, 0")
    a("s_cbranch_scc1 K_W0")
    a("s_waitcnt vmcnt(1)")
    a("K_W0:")
    a("s_waitcnt vmcnt(9)")
    signal(M_WRDY)
    stamp(a, 1, vACC, 1)
    a(f"s_cmp_lg_u32 s2, 0")
    a("s_cbranch_scc1 K_NOGO")
    a(f"s_cmp_lg_u32 {s(sWAVE)}, 3")
    a("s_cbranch_scc1 K_NOGO")
    a(f"v_mov_b32 {v(vt)}, 0")
    a("s_mov_b64 exec, 1")
    a(f"buffer_store_dword {v(vOne)}, {v(vt)}, {s(rDBG,4)}, 0 offen sc1")
    a("s_mov_b64 exec, -1")
    a("K_NOGO:")
    a(f"s_mov_b32 {s(sT0)}, {L_CNTA}")
    a(f"s_mov_b32 {s(sT1)}, {-NPB & 0xffffffff}")
    for i in range(8):
        a(f"v_mul_u32_u24 {v(vt)}, {MAGIC}, {v(vD8+i)}")
        a(f"v_lshrrev_b32 {v(vt)}, 24, {v(vt)}")
        a(f"v_mad_i32_i24 {v(vD8+i)}, {v(vt)}, {s(sT1)}, {v(vD8+i)}")
        a(f"v_and_b32 {v(vKY+i)}, 62, {v(vt)}")
        a(f"v_and_b32 {v(vt)}, 1, {v(vt)}")
        a(f"v_lshlrev_b32 {v(vKY+i)}, 1, {v(vKY+i)}")
        a(f"v_lshl_or_b32 {v(vKY+i)}, {v(vt)}, 7, {v(vKY+i)}")
        a(f"v_add_u32 {v(vRP+i)}, {s(sT0)}, {v(vKY+i)}")
    for i in range(8):
        if i % 4 == 0: a(f"s_mov_b64 exec, {s(sVAL if i == 0 else sVAL2,2)}")
        a(f"ds_add_rtn_u32 {v(vRK+i)}, {v(vRP+i)}, {v(vOne)}")
    a("s_mov_b64 exec, -1")
    a("s_waitcnt lgkmcnt(0)")
    signal(M_HS1)
    for i in range(8):
        e = vE4 + i // 2
        if i % 2 == 0: a(f"v_lshl_or_b32 {v(vRP+2*i)}, {v(e)}, 16, {v(vS8+i)}")
        else:          a(f"v_and_or_b32 {v(vRP+2*i)}, {v(e)}, {s(sMHI)}, {v(vS8+i)}")
        a(f"v_mov_b32 {v(vRP+2*i+1)}, {v(vD8+i)}")
    spin(M_HS1, 4, vt)
    a(f"v_lshlrev_b32 {v(vt)}, 2, {v(vLane)}")
    a(f"v_add_u32 {v(vt+1)}, {L_CNTA}, {v(vt)}")
    a(f"ds_read_b32 {v(vCN)}, {v(vt+1)}")
    a("s_waitcnt lgkmcnt(0)")
    a(f"v_mov_b32 {v(vEX)}, {v(vCN)}")
    scan64(a, vEX)
    a(f"v_sub_u32 {v(vEX)}, {v(vEX)}, {v(vCN)}")
    for i in range(8):
        a(f"ds_bpermute_b32 {v(vD8+i)}, {v(vKY+i)}, {v(vEX)}")
    a(f"v_lshl_or_b32 {v(vCN)}, {v(vCN)}, 16, {v(vEX)}")
    a(f"s_mov_b32 {s(sT0)}, {L_STAGE // 8}")
    for i in range(8):
        a(f"s_waitcnt lgkmcnt({7-i})")
        a(f"v_add3_u32 {v(vD8+i)}, {v(vD8+i)}, {v(vRK+i)}, {s(sT0)}")
        a(f"v_lshlrev_b32 {v(vD8+i)}, 3, {v(vD8+i)}")
    for i in range(8):
        if i % 4 == 0: a(f"s_mov_b64 exec, {s(sVAL if i == 0 else sVAL2,2)}")
        a(f"ds_write_b64 {v(vD8+i)}, {v(vRP+2*i,2)}")
    a("s_mov_b64 exec, -1")
    a("s_waitcnt lgkmcnt(0)")
    signal(M_HS2)
    a(f"s_cmp_lg_u32 {s(sWAVE)}, 2")
    a("s_cbranch_scc1 K_NODESC")
    a(f"s_lshl_b32 {s(sT1)}, s2, 8")
    a(f"buffer_store_dword {v(vCN)}, {v(vt)}, {s(rDESC,4)}, {s(sT1)} offen sc1")
    a("K_NODESC:")
    a(f"v_lshlrev_b32 {v(vt+1)}, 4, v0")
    a(f"v_add_u32 {v(vt+2)}, {L_STAGE}, {v(vt+1)}")
    spin(M_HS2, 4, vt+3)
    for i in range(4):
        a(f"ds_read_b128 {v(vX+4*i,4)}, {v(vt+2)} offset:{i*4096}")
    a(f"s_mul_i32 {s(sT0)}, s2, {CHB}")
    for i in range(3):
        a(f"s_waitcnt lgkmcnt({3-i})")
        a(f"buffer_store_dwordx4 {v(vX+4*i,4)}, {v(vt+1)}, {s(rREC,4)}, {s(sT0)} offen sc1")
        a(f"s_add_u32 {s(sT0)}, {s(sT0)}, 4096")
    a("s_waitcnt lgkmcnt(0)")
    a(f"s_cmp_lg_u32 {s(sWAVE)}, 0")
    a("s_cbranch_scc1 K_NOLAST")
    a("s_mov_b64 exec, 0xffff")
    a(f"buffer_store_dwordx4 {v(vX+12,4)}, {v(vt+1)}, {s(rREC,4)}, {s(sT0)} offen sc1")
    a("s_mov_b64 exec, -1")
    a("K_NOLAST:")
    signal(M_XCNT)
    stamp(a, 2, vACC, 1)
    a(f"v_mov_b32 {v(vt+2)}, 0")
    a(f"s_mov_b32 {s(sSPIN)}, 0x100000")
    a("K_GOL:")
    a(f"buffer_load_dword {v(vt+3)}, {v(vt+2)}, {s(rDBG,4)}, 0 offen sc1")
    a("s_waitcnt vmcnt(0)")
    a(f"v_readfirstlane_b32 {s(sT0)}, {v(vt+3)}")
    a(f"s_cmp_lg_u32 {s(sT0)}, 0")
    a("s_cbranch_scc1 K_GOD")
    a(f"s_sub_u32 {s(sSPIN)}, {s(sSPIN)}, 1")
    a("s_cbranch_scc0 K_GOL")
    a("K_GOD:")
    signal(M_HS3, vt+3)
    a("s_waitcnt lgkmcnt(0)")
    a(f"v_readfirstlane_b32 {s(sT0)}, {v(vt+3)}")
    a(f"s_cmp_lg_u32 {s(sT0)}, 3")
    a("s_cbranch_scc1 K_NOFLAGA")
    arrive(0, vt+2)
    stamp(a, 3, vACC, -1)
    a("K_NOFLAGA:")
    a(f"s_cmp_eq_u32 {s(sWAVE)}, 0")
    a("s_cbranch_scc1 K_GEMM")
    a(f"s_cmp_lg_u32 {s(sWAVE)}, 3")
    a("s_cbranch_scc1 K_RECS")
    if opt("latepoll"): spin(M_GCNT, 13, vt+1)
    poll(0, vt+1, vt+2)
    stamp(a, 4, vACC, 3)
    a(f"s_lshr_b32 {s(sT0)}, {s(sBK)}, 1")
    a(f"s_and_b32 {s(sT1)}, {s(sBK)}, 1")
    a(f"s_lshl_b32 {s(sT1)}, {s(sT1)}, 5")
    a(f"s_or_b32 {s(sT0)}, {s(sT0)}, {s(sT1)}")
    a(f"s_lshl_b32 {s(sT0)}, {s(sT0)}, 2")
    a(f"v_lshlrev_b32 {v(vt+1)}, 8, {v(vLane)}")
    for i in range(4):
        a(f"buffer_load_dword {v(vX+i)}, {v(vt+1)}, {s(rDESC,4)}, {s(sT0)} offen sc1")
        if i < 3: a(f"s_add_u32 {s(sT0)}, {s(sT0)}, 16384")
    a(f"v_add_u32 {v(vt+1)}, {L_DESC}, {v(vt)}")
    for i in range(4):
        a(f"s_waitcnt vmcnt({3-i})")
        a(f"ds_write_b32 {v(vt+1)}, {v(vX+i)} offset:{i*256}")
    a("s_waitcnt lgkmcnt(0)")
    signal(M_DRDY)
    stamp(a, 5, vACC, 3)
    a("s_branch K_RECS")
    a("K_GEMM:")
    spin(M_WRDY, 4, vt)
    tr_reads(a, 0, vTR, vWF)
    a(f"v_and_b32 {v(vt)}, 31, {v(vLane)}")
    a(f"v_lshlrev_b32 {v(vt+1)}, 8, {v(vt)}")
    a(f"v_add_u32 {v(vt+1)}, {s(sXS)}, {v(vt+1)}")
    a(f"v_lshrrev_b32 {v(vt+2)}, 5, {v(vLane)}")
    a(f"v_xor_b32 {v(vt)}, {v(vt)}, {v(vt+2)}")
    a(f"v_and_b32 {v(vt)}, 15, {v(vt)}")
    a(f"v_lshlrev_b32 {v(vt)}, 4, {v(vt)}")
    for t in range(8):
        a(f"v_xor_b32 {v(vACC+t)}, {t*32}, {v(vt)}")
        a(f"v_add_u32 {v(vACC+t)}, {v(vACC+t)}, {v(vt+1)}")
    a("s_waitcnt vmcnt(0)")
    stamp(a, 6, vAUP, 4)
    stamp(a, 7, vAUP, 15)
    if opt("gprio"): a("s_setprio 3")
    for t in range(8):
        a(f"ds_read_b128 {v(vX+4*t,4)}, {v(vACC+t)}")
    a("s_waitcnt lgkmcnt(0)")
    for mat in range(2):
        mfma_chain(a, vWF, vX, vACC)
        tr_reads(a, mat + 1, vTR, vWF)
        if mat == 0:
            for r in range(16): a(f"v_mul_f32 {v(vACC+r)}, {s(sNL2E)}, {v(vACC+r)}")
        pack_chain(a, vACC, vO, vTM, vBIG)
        a(f"ds_write_b128 {v(vSC)}, {v(vO,4)} offset:{mat*64}")
        a(f"ds_write_b128 {v(vSC)}, {v(vO+4,4)} offset:{mat*64+32}")
        if mat == 0: a("s_waitcnt lgkmcnt(2)")
    a(f"v_lshrrev_b32 {v(vt)}, 3, {v(vLane)}")
    a(f"v_and_b32 {v(vt+1)}, 7, {v(vLane)}")
    a(f"v_lshlrev_b32 {v(vt+1)}, 4, {v(vt+1)}")
    a(f"v_mul_u32_u24 {v(vt+2)}, {AUS}, {v(vt)}")
    a(f"v_add3_u32 {v(vt+2)}, {v(vt+2)}, {v(vt+1)}, {s(sXS)}")
    a(f"s_lshl_b32 {s(sT0)}, {s(sTILE)}, 5")
    a(f"v_add_u32 {v(vt)}, {s(sT0)}, {v(vt)}")
    a(f"v_sub_u32 {v(vt+3)}, {NPB-1}, {v(vt)}")
    a(f"v_lshl_add_u32 {v(vt)}, {v(vt)}, 7, {v(vt+1)}")
    a(f"s_mul_i32 {s(sT0)}, {s(sBK)}, {NPB*128}")
    a(f"v_add_u32 {v(vt)}, {s(sT0)}, {v(vt)}")
    a(f"s_brev_b32 {s(sT1)}, 1")
    a("s_waitcnt lgkmcnt(0)")
    for i in range(4):
        a(f"ds_read_b128 {v(vAUP+4*i,4)}, {v(vt+2)} offset:{i*8*AUS}")
    if not opt("gprio"): mfma_chain(a, vWF, vX, vACC)
    for i in range(4):
        a(f"s_waitcnt lgkmcnt({3-i})")
        a(f"v_and_or_b32 {v(vt+1)}, {v(vt+3)}, {s(sT1)}, {v(vt)}")
        a(f"buffer_store_dwordx4 {v(vAUP+4*i,4)}, {v(vt+1)}, {s(rT,4)}, 0 offen offset:{i*1024}{TST}")
        if i < 3: a(f"v_subrev_u32 {v(vt+3)}, 8, {v(vt+3)}")
    signal(M_XCNT)
    stamp(a, 8, vt, 15)
    if opt("gprio"):
        a("s_setprio 0")
        mfma_chain(a, vWF, vX, vACC)
    tr_reads(a, 3, vTR, vWF)
    for r in range(16): a(f"v_mul_f32 {v(vACC+r)}, {s(sNL2E)}, {v(vACC+r)}")
    for d in range(8): a(f"v_cvt_pk_bf16_f32 {v(vAUP+d)}, {v(vACC+2*d)}, {v(vACC+2*d+1)}")
    a("s_waitcnt lgkmcnt(0)")
    mfma_chain(a, vWF, vX, vACC)
    a("s_nop 11")
    for d in range(8): a(f"v_cvt_pk_bf16_f32 {v(vAUP+8+d)}, {v(vACC+2*d)}, {v(vACC+2*d+1)}")
    a("s_waitcnt vmcnt(0)")
    signal(M_GCNT, vt+3)
    a("s_waitcnt lgkmcnt(0)")
    a(f"v_readfirstlane_b32 {s(sT0)}, {v(vt+3)}")
    a(f"s_cmp_lg_u32 {s(sT0)}, 12")
    a("s_cbranch_scc1 K_NOFLAGB")
    spin(M_HS3, 4, vt+3)
    arrive(1, vt+2)
    stamp(a, 9, vACC, -1)
    a("K_NOFLAGB:")
    spin(M_XCNT, 17, vt+3)
    for q in range(4):
        a(f"ds_write_b128 {v(vAUa)}, {v(vAUP+4*q,4)} offset:{q*32}")
    a("K_RECS:")
    if opt("hprio"): a("s_setprio 0")
    vDS = vX; vRC = vX + 8; vRC2 = vX + 24; vRK8 = vX + 40; vAD = vX + 48; vI = vX + 56; vRB = vX + 57; vML = vX + 58
    for d in range(4): a(f"v_and_b32 {v(vWC+4+d)}, {s(sMHI)}, {v(vWC+d)}")
    for d in range(4): a(f"v_lshlrev_b32 {v(vWC+d)}, 16, {v(vWC+d)}")
    for d in range(8): a(f"v_mul_f32 {v(vWC+d)}, {s(sNL2E)}, {v(vWC+d)}")
    a(f"v_lshrrev_b32 {v(vt)}, 5, {v(vLane)}")
    a(f"s_lshl_b32 {s(sT0)}, {s(sWAVE)}, 4")
    a(f"v_add_u32 {v(vt)}, {s(sT0)}, {v(vt)}")
    a(f"v_and_b32 {v(vI)}, 31, {v(vLane)}")
    a(f"s_mov_b32 {s(sT0)}, {CHB}")
    a(f"v_mul_lo_u32 {v(vRB)}, {v(vt)}, {s(sT0)}")
    a(f"v_lshl_add_u32 {v(vRB)}, {v(vI)}, 3, {v(vRB)}")
    a(f"v_lshlrev_b32 {v(vt)}, 2, {v(vt)}")
    a(f"v_add_u32 {v(vt)}, {L_DESC}, {v(vt)}")
    spin(M_DRDY, 1, vt+3)
    for it in range(0, 8, 2):
        a(f"ds_read2_b32 {v(vDS+it,2)}, {v(vt)} offset0:{2*it} offset1:{2*it+2}")
    a(f"s_mov_b32 {s(sBASE)}, 0")
    a(f"s_mov_b64 {s(sOVF,2)}, 0")
    a(f"v_mov_b32 {v(vML)}, 0")
    a(f"v_mov_b32 {v(vt+1)}, 8")
    a(f"v_mov_b32 {v(vt+2)}, {STRIDE}")
    a("s_waitcnt lgkmcnt(0)")
    for it in range(8):
        a(f"v_lshrrev_b32 {v(vt)}, 16, {v(vDS+it)}")
        a(f"v_max_u32 {v(vML)}, {v(vML)}, {v(vt)}")
    sM2 = 16
    a("K_SWEEP:")
    a(f"v_add_u32 {v(vt+3)}, 32, {v(vI)}")
    for it in range(8):
        a(f"v_mad_u32_u16 {v(vAD+it)}, {v(vDS+it)}, {v(vt+1)}, {v(vRB)}")
        a(f"s_mov_b32 {s(sT0)}, {it*2*CHB}")
        a(f"buffer_load_dwordx2 {v(vRC+2*it,2)}, {v(vAD+it)}, {s(rREC,4)}, {s(sT0)} offen sc1")
        a(f"v_cmp_lt_u32_sdwa {s(sMSK+2*it,2)}, {v(vI)}, {v(vDS+it)} src0_sel:DWORD src1_sel:WORD_1")
        a(f"v_cmp_lt_u32_sdwa {s(sM2+2*it,2)}, {v(vt+3)}, {v(vDS+it)} src0_sel:DWORD src1_sel:WORD_1")
    for it in range(8):
        l = a.uid("S2")
        a(f"s_cmp_eq_u64 {s(sM2+2*it,2)}, 0")
        a(f"s_cbranch_scc1 {l}")
        a(f"s_mov_b32 {s(sT0)}, {it*2*CHB}")
        a(f"buffer_load_dwordx2 {v(vRC2+2*it,2)}, {v(vAD+it)}, {s(rREC,4)}, {s(sT0)} offen offset:256 sc1")
        a(f"{l}:")
    spin(M_XCNT, 17, vt)
    stamp(a, 10, vACC, 8)
    a("s_waitcnt vmcnt(0)")
    stamp(a, 11, vACC, 8)
    def proc(rc, msk, its):
        a(f"s_mov_b32 {s(sT0)}, {L_CNT}")
        for it in its: a(f"v_lshl_add_u32 {v(vAD+it)}, {v(rc+2*it+1)}, 2, {s(sT0)}")
        for it in its:
            a(f"s_mov_b64 exec, {s(msk+2*it,2)}")
            a(f"ds_add_rtn_u32 {v(vRK8+it)}, {v(vAD+it)}, {v(vOne)}")
        a("s_mov_b64 exec, -1")
        for j, it in enumerate(its):
            a(f"s_waitcnt lgkmcnt({len(its)-1-j})")
            a(f"v_mad_u32_u24 {v(vAD+it)}, {v(rc+2*it+1)}, {v(vt+2)}, {v(vRK8+it)}")
            a(f"v_cmp_gt_u32 vcc, {STRIDE}, {v(vRK8+it)}")
            a(f"v_lshlrev_b32 {v(vAD+it)}, 2, {v(vAD+it)}")
            a(f"s_andn2_b64 {s(sT2,2)}, {s(msk+2*it,2)}, vcc")
            a(f"s_and_b64 {s(msk+2*it,2)}, {s(msk+2*it,2)}, vcc")
            a(f"s_or_b64 {s(sOVF,2)}, {s(sOVF,2)}, {s(sT2,2)}")
        for it in its:
            if opt("fakesrc"): a(f"v_and_b32 {v(rc+2*it)}, {opt('fakesrc')}, {v(rc+2*it)}")
            a(f"s_mov_b64 exec, {s(msk+2*it,2)}")
            a(f"ds_write_b32 {v(vAD+it)}, {v(rc+2*it)} offset:{L_LIST}")
        a("s_mov_b64 exec, -1")
    proc(vRC, sMSK, list(range(8)))
    for it in range(8):
        l = a.uid("P2")
        a(f"s_cmp_eq_u64 {s(sM2+2*it,2)}, 0")
        a(f"s_cbranch_scc1 {l}")
        proc(vRC2, sM2, [it])
        a(f"{l}:")
    a(f"s_add_u32 {s(sBASE)}, {s(sBASE)}, 64")
    a(f"v_add_u32 {v(vI)}, 64, {v(vI)}")
    a(f"v_add_u32 {v(vRB)}, 512, {v(vRB)}")
    a(f"v_cmp_lt_u32 vcc, {s(sBASE)}, {v(vML)}")
    a("s_cbranch_vccnz K_SWEEP")
    a("s_waitcnt lgkmcnt(0)")
    a("s_barrier")
    stamp(a, 12, vACC)
    srd(a, rB, pWS, 2*FSZ, WS_FLAG)
    vDG = vX; vBN = vX + 1; vR2 = vX + 2; vBC = vX + 3; vBE = vX + 4
    a(f"s_movk_i32 {s(sT0)}, {NLOC}")
    a(f"v_cmp_gt_u32 {s(sVAL,2)}, {s(sT0)}, v0")
    a(f"v_lshlrev_b32 {v(vt)}, 2, v0")
    a(f"v_add_u32 {v(vt)}, {L_CNT}, {v(vt)}")
    a(f"s_mov_b64 exec, {s(sVAL,2)}")
    a(f"ds_read_b32 {v(vDG)}, {v(vt)}")
    a("s_waitcnt lgkmcnt(0)")
    a(f"v_min_u32 {v(vDG)}, {STRIDE}, {v(vDG)}")
    a(f"v_sub_u32 {v(vBN)}, 63, {v(vDG)}")
    a(f"v_lshlrev_b32 {v(vBN)}, 2, {v(vBN)}")
    a(f"v_add_u32 {v(vt)}, {L_BINS}, {v(vBN)}")
    a(f"ds_add_rtn_u32 {v(vR2)}, {v(vt)}, {v(vOne)}")
    a("s_mov_b64 exec, -1")
    a("s_waitcnt lgkmcnt(0)")
    a("s_barrier")
    a(f"s_cmp_lg_u32 {s(sWAVE)}, 15")
    a("s_cbranch_scc1 K_NOPOLLB")
    poll(1, vt, vt+1, rB)
    stamp(a, 13, vACC, 15)
    a("K_NOPOLLB:")
    a(f"s_cmp_ge_u32 {s(sWAVE)}, {(NLOC+63)//64}")
    a("s_cbranch_scc1 K_NOPERM")
    a(f"v_lshlrev_b32 {v(vt)}, 2, {v(vLane)}")
    a(f"v_add_u32 {v(vt)}, {L_BINS}, {v(vt)}")
    a(f"ds_read_b32 {v(vBC)}, {v(vt)}")
    a("s_waitcnt lgkmcnt(0)")
    a(f"v_mov_b32 {v(vBE)}, {v(vBC)}")
    scan64(a, vBE)
    a(f"v_sub_u32 {v(vBE)}, {v(vBE)}, {v(vBC)}")
    a(f"ds_bpermute_b32 {v(vt)}, {v(vBN)}, {v(vBE)}")
    a(f"v_lshl_or_b32 {v(vDG)}, {v(vDG)}, 16, v0")
    a("s_waitcnt lgkmcnt(0)")
    a(f"v_add_lshl_u32 {v(vt)}, {v(vt)}, {v(vR2)}, 2")
    a(f"v_add_u32 {v(vt)}, {L_PERM}, {v(vt)}")
    a(f"s_mov_b64 exec, {s(sVAL,2)}")
    a(f"ds_write_b32 {v(vt)}, {v(vDG)}")
    a("s_mov_b64 exec, -1")
    a("s_waitcnt lgkmcnt(0)")
    a("K_NOPERM:")
    stamp(a, 14, vACC)
    a("s_barrier")
    stamp(a, 15, vACC)
    stamp(a, 13, vACC, 7, True)
    NB = int(opt("nbuf", 3))
    R2 = Regs(m0, 128)
    vDEN = R2.alloc(8); vNUM = R2.alloc(8); vEA = R2.alloc(8)
    vBUF = [R2.alloc(16, 4) for _ in range(NB)]
    vLa = R2.alloc(4); vLb = R2.alloc(4); vUa = R2.alloc(4); vUb = R2.alloc(4)
    vE = [R2.alloc(2) for _ in range(NB)]
    vREC = R2.alloc(2); vADR = vt
    vU = R2.alloc(4, 4); vXS = R2.alloc(4, 4)
    vINFO = vt + 2; vDEG = vt + 3; vLA = R2.alloc(); vOFF = R2.alloc()
    vPB = 0; vAUB = vLane; vOB = 1
    R.hi = max(R.hi, R2.hi)
    sSGN = sBASE; s128 = sVAL; sKG = sVAL + 1
    a(f"s_brev_b32 {s(sSGN)}, 1")
    a(f"s_movk_i32 {s(s128)}, 128")
    a(f"s_mul_i32 {s(sT0)}, {s(sBK)}, {NPB*256}")
    a(f"v_add_u32 {v(vOB)}, {s(sT0)}, {v(vJ16)}")
    a(f"v_lshrrev_b32 {v(vPB)}, 2, {v(vLane)}")
    a(f"v_lshlrev_b32 {v(vPB)}, 2, {v(vPB)}")
    a(f"v_add_u32 {v(vPB)}, {L_PERM}, {v(vPB)}")
    a(f"v_add_u32 {v(vAUB)}, {L_AU}, {v(vJ16)}")
    if PRIO: a("s_setprio 2")

    def G(nb, rec=None, nxt=True):
        B = vBUF[nb]
        rec = vREC if rec is None else rec
        a(f"v_mad_u32_u16 {v(vADR)}, {v(rec)}, {s(s128)}, {v(vJ16)}")
        a(f"v_mad_u32_u16 {v(vADR+1)}, {v(rec+1)}, {s(s128)}, {v(vJ16)}")
        a(f"v_and_b32 {v(vE[nb])}, {s(sMHI)}, {v(rec)}")
        a(f"v_and_b32 {v(vE[nb]+1)}, {s(sMHI)}, {v(rec+1)}")
        a(f"buffer_load_dwordx4 {v(B,4)}, {v(vADR)}, {s(rT,4)}, 0 offen")
        a(f"buffer_load_dwordx4 {v(B+4,4)}, {v(vADR)}, {s(rT,4)}, 0 offen offset:64")
        a(f"buffer_load_dwordx4 {v(B+8,4)}, {v(vADR+1)}, {s(rT,4)}, 0 offen")
        a(f"buffer_load_dwordx4 {v(B+12,4)}, {v(vADR+1)}, {s(rT,4)}, 0 offen offset:64")

    def front(B, L, e, hi):
        sel = "op_sel:[1,0,0] op_sel_hi:[1,1,1]" if hi else "op_sel_hi:[0,1,1]"
        prs = [L, L+2, B, B+2]
        a(f"v_lshlrev_b64 {v(L,2)}, 16, {v(B,2)}")
        a(f"v_lshlrev_b64 {v(L+2,2)}, 16, {v(B+2,2)}")
        for i in (2, 3, 0, 1):
            a(pk("fma", prs[i], v(e,2), v(vWC+2*i,2), v(prs[i],2), sel))
        for i in (2, 3, 0, 1):
            a(f"v_exp_f32 {v(prs[i])}, {v(prs[i])}")
            a(f"v_exp_f32 {v(prs[i]+1)}, {v(prs[i]+1)}")
        return prs
    def front2(prs):
        for i in (2, 3, 0, 1):
            a(pk("fma", prs[i], v(vEA+2*i,2), v(prs[i],2), "1.0", "op_sel_hi:[1,1,0]"))

    def Cpair(nb):
        if opt("novalu"): return
        B = vBUF[nb]
        Ba, Va, Bb, Vb = B, B+4, B+8, B+12
        pa = front(Ba, vLa, vE[nb], False)
        pb = front(Bb, vLb, vE[nb], True)
        a(f"v_lshlrev_b64 {v(vUa,2)}, 16, {v(Va,2)}")
        a(f"v_lshlrev_b64 {v(vUa+2,2)}, 16, {v(Va+2,2)}")
        a(f"v_lshlrev_b64 {v(vUb,2)}, 16, {v(Vb,2)}")
        a(f"v_lshlrev_b64 {v(vUb+2,2)}, 16, {v(Vb+2,2)}")
        front2(pa)
        front2(pb)
        qa = [vUa, vUa+2, Va, Va+2]; qb = [vUb, vUb+2, Vb, Vb+2]
        for i in range(4): a(pk("mul", qa[i], v(qa[i],2), v(pb[i],2)))
        for i in range(4): a(pk("fma", qa[i], v(qb[i],2), v(pa[i],2), v(qa[i],2)))
        for i in range(4): a(pk("mul", qb[i], v(pa[i],2), v(pb[i],2)))
        for i in range(4): a(pk("add", pa[i], v(pa[i],2), v(pb[i],2)))
        for i in range(4):
            a(f"v_rcp_f32 {v(qb[i])}, {v(qb[i])}")
            a(f"v_rcp_f32 {v(qb[i]+1)}, {v(qb[i]+1)}")
        for i in range(4): a(pk("fma", vNUM+2*i, v(qa[i],2), v(qb[i],2), v(vNUM+2*i,2)))
        for i in range(4): a(pk("fma", vDEN+2*i, v(pa[i],2), v(qb[i],2), v(vDEN+2*i,2)))

    def Csingle(nb, hi):
        if opt("novalu"): return
        B = vBUF[nb] + (8 if hi else 0)
        V = B + 4
        p = front(B, vLa, vE[nb], hi)
        a(f"v_lshlrev_b64 {v(vUa,2)}, 16, {v(V,2)}")
        front2(p)
        a(f"v_lshlrev_b64 {v(vUa+2,2)}, 16, {v(V+2,2)}")
        for i in (2, 3, 0, 1):
            a(f"v_rcp_f32 {v(p[i])}, {v(p[i])}")
            a(f"v_rcp_f32 {v(p[i]+1)}, {v(p[i]+1)}")
        q = [vUa, vUa+2, V, V+2]
        for i in (2, 3, 0, 1): a(pk("add", vDEN+2*i, v(vDEN+2*i,2), v(p[i],2)))
        for i in (2, 3, 0, 1): a(pk("fma", vNUM+2*i, v(q[i],2), v(p[i],2), v(vNUM+2*i,2)))

    DEP = NB - 1
    a("K_GROUP:")
    signal(M_Q, vINFO)
    a("s_waitcnt lgkmcnt(0)")
    a(f"v_readfirstlane_b32 {s(sT0)}, {v(vINFO)}")
    a(f"s_cmp_ge_u32 {s(sT0)}, {NGRP}")
    a("s_cbranch_scc1 K_DONE")
    a(f"s_lshl_b32 {s(sT0)}, {s(sT0)}, 6")
    a(f"v_add_u32 {v(vINFO)}, {s(sT0)}, {v(vPB)}")
    a(f"ds_read_b32 {v(vINFO)}, {v(vINFO)}")
    a("s_waitcnt lgkmcnt(0)")
    a(f"v_lshrrev_b32 {v(vDEG)}, 16, {v(vINFO)}")
    a(f"v_and_b32 {v(vINFO)}, 0xffff, {v(vINFO)}")
    a(f"v_mul_u32_u24 {v(vLA)}, {STRIDE*4}, {v(vINFO)}")
    for j in range(DEP):
        a(f"ds_read2_b32 {v(vLa+2*j,2)}, {v(vLA)} offset0:{2*j} offset1:{2*j+1}")
    a(f"ds_read2_b32 {v(vREC,2)}, {v(vLA)} offset0:{2*DEP} offset1:{2*DEP+1}")
    a(f"v_mul_u32_u24 {v(vADR)}, {AUS}, {v(vINFO)}")
    a(f"v_add_u32 {v(vADR)}, {v(vADR)}, {v(vAUB)}")
    a(f"ds_read_b128 {v(vEA,4)}, {v(vADR)}")
    a(f"ds_read_b128 {v(vU,4)}, {v(vADR)} offset:64")
    a(f"v_readlane_b32 {s(sMAX)}, {v(vDEG)}, 0")
    a(f"v_readlane_b32 {s(sMIN)}, {v(vDEG)}, 63")
    a(f"v_lshl_add_u32 {v(vOFF)}, {v(vINFO)}, 8, {v(vOB)}")
    a(f"v_sub_u32 {v(vINFO)}, {NPB-1}, {v(vINFO)}")
    a(f"v_and_or_b32 {v(vOFF)}, {v(vINFO)}, {s(sSGN)}, {v(vOFF)}")
    a(f"buffer_load_dwordx4 {v(vXS,4)}, {v(vOFF)}, {s(rX,4)}, {s(sSL64)} offen")
    for j in range(DEP):
        a(f"s_waitcnt lgkmcnt({DEP - j + 2})")
        G(j, vLa + 2*j)
    a("s_waitcnt lgkmcnt(1)")
    for d in range(4): a(f"v_and_b32 {v(vEA+4+d)}, {s(sMHI)}, {v(vEA+d)}")
    for d in range(4): a(f"v_lshlrev_b32 {v(vEA+d)}, 16, {v(vEA+d)}")
    for d in (4, 5, 6, 7, 0, 1, 2, 3): a(f"v_exp_f32 {v(vEA+d)}, {v(vEA+d)}")
    a(f"v_mov_b32 {v(vDEN)}, {hx(fbits(1e-6))}")
    a(f"v_mov_b32 {v(vDEN+1)}, {v(vDEN)}")
    for d in range(2, 8, 2): a(f"v_mov_b64 {v(vDEN+d,2)}, {v(vDEN,2)}")
    for d in range(0, 8, 2): a(f"v_mov_b64 {v(vNUM+d,2)}, 0")
    a(f"s_mov_b32 {s(sK)}, 0")
    a(f"s_sub_u32 {s(sKG)}, {s(sMAX)}, {2*DEP}")
    a(f"s_cmp_eq_u32 {s(sMAX)}, 0")
    a("s_cbranch_scc1 K_EPI0")
    a("K_LOOP:")
    for cur in range(NB):
        a(f"s_cmp_lt_i32 {s(sK)}, {s(sKG)}")
        a(f"s_cbranch_scc0 K_NOG{cur}")
        a("s_waitcnt lgkmcnt(0)")
        G((cur + DEP) % NB)
        a(f"ds_read2_b32 {v(vREC,2)}, {v(vLA)} offset0:{2*(DEP+1+cur)} offset1:{2*(DEP+1+cur)+1}")
        if cur == NB - 1: a(f"v_add_u32 {v(vLA)}, {8*NB}, {v(vLA)}")
        a(f"s_waitcnt vmcnt({4*DEP})")
        a(f"K_GOT{cur}:")
        a(f"s_add_u32 {s(sT0)}, {s(sK)}, 2")
        a(f"s_cmp_le_u32 {s(sT0)}, {s(sMIN)}")
        a(f"s_cbranch_scc0 K_TAIL{cur}")
        Cpair(cur)
        a(f"K_NEXT{cur}:")
        a(f"s_add_u32 {s(sK)}, {s(sK)}, 2")
        a(f"s_cmp_ge_u32 {s(sK)}, {s(sMAX)}")
        a("s_cbranch_scc1 K_EPI" if cur < NB - 1 else "s_cbranch_scc0 K_LOOP")
    a("K_EPI:")
    a("s_mov_b64 exec, -1")
    a("s_waitcnt lgkmcnt(0)")
    for d in range(8): a(f"v_rcp_f32 {v(vDEN+d)}, {v(vDEN+d)}")
    Uu = vUa; Xu = vLa
    assert vLb == vLa + 4 and vUb == vUa + 4
    for d in range(4):
        a(f"v_lshlrev_b32 {v(Uu+d)}, 16, {v(vU+d)}")
        a(f"v_and_b32 {v(Uu+4+d)}, {s(sMHI)}, {v(vU+d)}")
        a(f"v_lshlrev_b32 {v(Xu+d)}, 16, {v(vXS+d)}")
        a(f"v_and_b32 {v(Xu+4+d)}, {s(sMHI)}, {v(vXS+d)}")
    for i in range(4): a(pk("fma", Uu+2*i, v(vNUM+2*i,2), v(vDEN+2*i,2), v(Uu+2*i,2)))
    for d in range(8): a(f"v_max_f32 {v(Uu+d)}, 0, {v(Uu+d)}")
    for i in range(4): a(pk("add", Uu+2*i, v(Uu+2*i,2), v(Xu+2*i,2)))
    for d in range(4): a(f"v_cvt_pk_bf16_f32 {v(vNUM+d)}, {v(Uu+d)}, {v(Uu+4+d)}")
    a(f"buffer_store_dwordx4 {v(vNUM,4)}, {v(vOFF)}, {s(rA,4)}, {s(sSL64)} offen{OSC}")
    if PRIO: a("s_setprio 0")
    a("s_branch K_GROUP")
    a("K_EPI0:")
    a("s_waitcnt vmcnt(0)")
    a("s_branch K_EPI")
    for cur in range(NB):
        a(f"K_NOG{cur}:")
        if DEP >= 2:
            a(f"s_add_u32 {s(sT0)}, {s(sK)}, 2")
            a(f"s_cmp_lt_u32 {s(sT0)}, {s(sMAX)}")
            a(f"s_cbranch_scc0 K_NOGZ{cur}")
            a("s_waitcnt vmcnt(4)")
            a(f"s_branch K_GOT{cur}")
            a(f"K_NOGZ{cur}:")
        a("s_waitcnt vmcnt(0)")
        a(f"s_branch K_GOT{cur}")
        a(f"K_TAIL{cur}:")
        a(f"v_cmpx_lt_u32 vcc, {s(sK)}, {v(vDEG)}")
        Csingle(cur, False)
        a(f"s_add_u32 {s(sT0)}, {s(sK)}, 1")
        a(f"s_cmp_ge_u32 {s(sT0)}, {s(sMAX)}")
        a("s_cbranch_scc1 K_EPI")
        a(f"v_cmpx_lt_u32 vcc, {s(sT0)}, {v(vDEG)}")
        Csingle(cur, True)
        a(f"s_branch K_NEXT{cur}")
    vP = vLa
    a("K_DONE:")
    stamp(a, 16, vP, None)
    stamp(a, 14, vP, 7, True)
    a("K_END:")
    a("s_endpgm")
    return R.hi

def main():
    a = Asm()
    hdr = open("standalone__edge_featured_mpnn_gatedgcn__graph.s.ref").read().split("\n")
    for l in hdr:
        if l.startswith("; Override"): break
        a.raw(l)
    if ASLIST:
        a.raw(f"; @launch kernel={KNAME} grid=({NWG},1,1) block=(1024,1,1) lds={L_END}")
    else:
        a.raw(f"; @launch grid=({NWG},1,1) block=(1024,1,1) lds={L_END}")
    a.raw('.amdgcn_target "amdgcn-amd-amdhsa--gfx950"')
    a.raw(".text")
    nv = gen(a)
    a.raw('.section .rodata,"a"')
    a.raw(".p2align 6")
    a.raw(f".amdhsa_kernel {KNAME}")
    a.raw(f"  .amdhsa_next_free_vgpr {nv}")
    a.raw(f"  .amdhsa_next_free_sgpr 102")
    a.raw(f"  .amdhsa_accum_offset {(nv+3)//4*4}")
    a.raw(f"  .amdhsa_group_segment_fixed_size 0")
    a.raw(f"  .amdhsa_kernarg_size 96")
    a.raw(f"  .amdhsa_user_sgpr_count 2")
    a.raw(f"  .amdhsa_user_sgpr_kernarg_segment_ptr 1")
    a.raw(f"  .amdhsa_system_sgpr_workgroup_id_x 1")
    a.raw(f".end_amdhsa_kernel")
    out = [x for x in sys.argv[1:] if not x.startswith("--")]
    open(out[0] if out else "out.s", "w").write(a.text())
    print("vgprs", nv, "lds", L_END, file=sys.stderr)

main()
```

```python
import sys, math
from asmlib import *

def opt(name, default=None):
    for x in sys.argv[1:]:
        if x == "--" + name: return True
        if x.startswith("--" + name + "="): return x.split("=", 1)[1]
    return default

KNAME = "standalone__edge_featured_mpnn_gatedgcn__graph_kernel"
N, E, D = 25000, 400000, 128
NWG = 256
CH = 1568
CHB = CH * 8
TS = 25024 * 128
WS_T, WS_REC, WS_DESC, WS_STAMP, WS_FLAG = 0, 0x00D00000, 0x01100000, 0x01200000, 0x01300000
LOG2E = 1.4426950408889634
STRIDE = 41
NLOC = 400
NGRP = NLOC // 16
AUS = 144
NPB = 391
MAGIC = 42909
STAMPS = opt("stamps", False)
OSC = {"plain": "", "sc1": " sc1", "nt": " nt"}[opt("osc", "sc1")]
PRIO = not opt("noprio")
ASLIST = opt("aslist", False)
SLP = int(opt("sleep", 2))

L_LIST = 0
L_STAGE = 0
L_AU = NLOC * STRIDE * 4
L_WL = L_AU + 416 * AUS
L_Z = L_WL + 32768
L_CNT = L_Z
L_BINS = L_CNT + 416 * 4
L_CNTA = L_BINS + 256
L_MISC = L_CNTA + 256
M_Q, M_HS1, M_HS2, M_HS3, M_WRDY, M_XL, M_GCNT, M_DRDY, M_BQ, M_TAG, M_OVF = range(0, 44, 4)
L_ZEND = L_MISC + 48
L_PERM = L_ZEND
L_DESC = L_PERM + NLOC * 4
L_END = L_DESC + 1024
assert L_AU % 16 == 0 and L_WL % 16 == 0 and L_END <= 163840, L_END

sWG, sWAVE, sSL, sBK = 2, 3, 4, 5
sT0, sT1, sT2, sT3 = 6, 7, 8, 9
sVAL, sOVF = 10, 12
sK, sMAX = 14, 15
pX, pE, pSRC, pDST, pWA, pWB, pWC, pWU, pWV, pOUT, pDBG, pWS = 16, 18, 20, 22, 24, 26, 28, 30, 32, 34, 36, 38
rX, rW, rT, rREC, rDESC, rA, rB, rC = 40, 44, 48, 52, 56, 60, 64, 68
sMHI, sM7F0, sM7FF, sTINY, sPERM, sNL2E, sMIN, sBASE = 72, 73, 74, 75, 76, 77, 78, 79
sMSK = 80
sVAL2 = 80
sST, rST = 96, 98
sSL64, sSPIN, sTILE, sXS = 0, 1, 100, 101
sTAG = 32
sPEND = 33
rFLG, rDBG = rB, rC

def srd(a, r, p, nbytes, add=None):
    if add is None:
        a(f"s_mov_b32 {s(r)}, {s(p)}")
        a(f"s_and_b32 {s(r+1)}, {s(p+1)}, 0xffff")
    else:
        a(f"s_add_u32 {s(r)}, {s(p)}, {add}")
        a(f"s_addc_u32 {s(r+1)}, {s(p+1)}, 0")
        a(f"s_and_b32 {s(r+1)}, {s(r+1)}, 0xffff")
    a(f"s_mov_b32 {s(r+2)}, {hx(nbytes)}")
    a(f"s_mov_b32 {s(r+3)}, 0x20000")

def stamp(a, idx, vt, wave=0, clk=False):
    if not STAMPS: return
    if opt("clk") and idx in (12, 13, 14) and not clk: return
    if clk and not opt("clk"): return
    l = a.uid("ST")
    if wave is not None and wave >= 0:
        a(f"s_cmp_lg_u32 {s(sWAVE)}, {wave}")
        a(f"s_cbranch_scc1 {l}")
    a(f"s_memrealtime {s(sST,2)}" if not clk else f"s_memtime {s(sST,2)}")
    a(f"s_waitcnt lgkmcnt(0)")
    a(f"s_mov_b64 {s(rST,2)}, exec")
    a(f"s_mov_b64 exec, 1")
    a(f"v_mov_b32 {v(vt)}, {s(sST)}")
    a(f"v_mov_b32 {v(vt+1)}, {s(sST+1)}")
    a(f"s_lshl_b32 {s(sST)}, {s(sWG)}, 8")
    if wave is None:
        a(f"s_lshl_b32 {s(sST+1)}, {s(sWAVE)}, 3")
        a(f"s_add_u32 {s(sST)}, {s(sST)}, {s(sST+1)}")
    a(f"s_add_u32 {s(sST)}, {s(sST)}, {WS_STAMP + idx*8}")
    a(f"v_mov_b32 {v(vt+2)}, {s(sST)}")
    a(f"global_store_dwordx2 {v(vt+2)}, {v(vt,2)}, {s(pWS,2)}")
    a(f"s_mov_b64 exec, {s(rST,2)}")
    a(f"{l}:")

def scan64(a, r):
    for sh in (1, 2, 4, 8):
        a("s_nop 1")
        a(f"v_add_u32_dpp {v(r)}, {v(r)}, {v(r)} row_shr:{sh} row_mask:0xf bank_mask:0xf")
    a("s_nop 1")
    a(f"v_add_u32_dpp {v(r)}, {v(r)}, {v(r)} row_bcast:15 row_mask:0xa bank_mask:0xf")
    a("s_nop 1")
    a(f"v_add_u32_dpp {v(r)}, {v(r)}, {v(r)} row_bcast:31 row_mask:0xc bank_mask:0xf")

def tr_reads(a, mat, vTR, vWF):
    for t in range(8):
        for q in range(2):
            a(f"ds_read_b64_tr_b16 {v(vWF+4*t+2*q,2)}, {v(vTR)} offset:{mat*8192 + t*1024 + q*256}")

def mfma_chain(a, vWF, vX, vACC):
    for t in range(8):
        c = "0" if t == 0 else v(vACC, 16)
        a(f"v_mfma_f32_32x32x16_bf16 {v(vACC,16)}, {v(vWF+4*t,4)}, {v(vX+4*t,4)}, {c}")

def pack_chain(a, vIN, vOUT, vTMP, vBIG):
    G = range(4)
    m = lambda g: vTMP + g
    t = lambda g: vTMP + 4 + g
    sd = "dst_sel:DWORD dst_unused:UNUSED_PAD src0_sel:DWORD"
    for g in G: a(f"v_cvt_pk_bf16_f32 {v(vOUT+2*g)}, {v(vIN+4*g)}, {v(vIN+4*g+1)}")
    for g in G: a(f"v_med3_f32 {v(m(g))}, |{v(vIN+4*g+1)}|, {s(sTINY)}, {v(vBIG)}")
    for g in G: a(f"v_med3_f32 {v(t(g))}, |{v(vIN+4*g+2)}|, {s(sTINY)}, {v(vBIG)}")
    for g in G: a(f"v_add_u32 {v(m(g))}, 0x8000, {v(m(g))}")
    for g in G: a(f"v_add_u32 {v(t(g))}, 0x8000, {v(t(g))}")
    for g in G: a(f"v_sub_u32_sdwa {v(m(g))}, {v(m(g))}, {v(vOUT+2*g)} {sd} src1_sel:WORD_0")
    for g in G: a(f"v_bfi_b32 {v(vOUT+2*g)}, {s(sM7F0)}, {v(m(g))}, {v(vOUT+2*g)}")
    for g in G: a(f"v_med3_f32 {v(m(g))}, |{v(vIN+4*g+3)}|, {s(sTINY)}, {v(vBIG)}")
    for g in G: a(f"v_sub_u32_sdwa {v(t(g))}, {v(t(g))}, {v(vOUT+2*g)} {sd} src1_sel:WORD_1")
    for g in G: a(f"v_add_u32 {v(m(g))}, 0x8000, {v(m(g))}")
    for g in G: a(f"v_bfi_b32 {v(t(g))}, {s(sM7FF)}, {v(t(g))}, {v(vIN+4*g+2)}")
    for g in G: a(f"v_sub_u32_sdwa {v(m(g))}, {v(m(g))}, {v(t(g))} {sd} src1_sel:WORD_1")
    for g in G: a(f"v_perm_b32 {v(t(g))}, {v(vIN+4*g+3)}, {v(t(g))}, {s(sPERM)}")
    for g in G: a(f"v_bfi_b32 {v(vOUT+2*g+1)}, {s(sM7F0)}, {v(m(g))}, {v(t(g))}")

def pk(op, d, a0, b0, c0=None, sel=None):
    ops = f"{v(d,2)}, {a0}, {b0}" + (f", {c0}" if c0 else "")
    return f"v_pk_{op}_f32 {ops}" + (f" {sel}" if sel else "")

def gen(a):
    R = Regs(1, 128)
    vt = R.alloc(4)
    vLane = R.alloc(); vOne = R.alloc(); vJ16 = R.alloc(); vMISC = R.alloc()
    vWC = R.alloc(8)
    m0 = R.mark()
    vAUa = R.alloc(); vTR = R.alloc(); vBIG = R.alloc(); vXA = R.alloc(); vXV = R.alloc(); vXB = R.alloc()
    vO = R.alloc(16, 4); vTM = vO + 8
    vX = R.alloc(32, 4); vWF = R.alloc(32, 4); vACC = R.alloc(16, 4)

    def signal(off, ret=None):
        a("s_mov_b64 exec, 1")
        if ret is None: a(f"ds_add_u32 {v(vMISC)}, {v(vOne)} offset:{off}")
        else: a(f"ds_add_rtn_u32 {v(ret)}, {v(vMISC)}, {v(vOne)} offset:{off}")
        a("s_mov_b64 exec, -1")
    def spin(off, target, vtmp):
        l = a.uid("SP"); d = a.uid("SPD")
        a(f"s_mov_b32 {s(sSPIN)}, 0x400000")
        a(f"{l}:")
        a(f"ds_read_b32 {v(vtmp)}, {v(vMISC)} offset:{off}")
        a("s_waitcnt lgkmcnt(0)")
        a(f"v_readfirstlane_b32 {s(sT0)}, {v(vtmp)}")
        a(f"s_cmp_ge_u32 {s(sT0)}, {target}")
        a(f"s_cbranch_scc1 {d}")
        a("s_sleep 1")
        a(f"s_sub_u32 {s(sSPIN)}, {s(sSPIN)}, 1")
        a(f"s_cbranch_scc0 {l}")
        a(f"{d}:")
    def x_setup():
        a(f"v_lshrrev_b32 {v(vXV)}, 3, {v(vLane)}")
        a(f"v_lshrrev_b32 {v(vXA)}, 4, {v(vLane)}")
        a(f"v_and_b32 {v(vXB)}, 7, {v(vLane)}")
        a(f"v_xor_b32 {v(vXB)}, {v(vXB)}, {v(vXA)}")
        a(f"v_lshlrev_b32 {v(vXB)}, 4, {v(vXB)}")
        a(f"s_lshl_b32 {s(sT0)}, {s(sTILE)}, 5")
        a(f"v_add_u32 {v(vXV)}, {s(sT0)}, {v(vXV)}")
        a(f"s_mul_i32 {s(sT0)}, {s(sBK)}, {NPB*256}")
        a(f"v_lshl_add_u32 {v(vXA)}, {v(vXV)}, 8, {s(sT0)}")
        a(f"v_sub_u32 {v(vXV)}, {NPB-1}, {v(vXV)}")
    def x_round(rnd, vA):
        a(f"s_mov_b32 m0, {s(sXS)}")
        a(f"s_brev_b32 {s(sT1)}, 1")
        for i in range(4):
            a(f"v_xor_b32 {v(vA)}, {(i&1)*64}, {v(vXB)}")
            a(f"v_add_u32 {v(vA+1)}, {i*2048 + rnd*128}, {v(vXA)}")
            a(f"v_add_u32 {v(vA)}, {v(vA)}, {v(vA+1)}")
            a(f"v_subrev_u32 {v(vA+1)}, {8*i}, {v(vXV)}")
            a(f"v_and_or_b32 {v(vA)}, {v(vA+1)}, {s(sT1)}, {v(vA)}")
            a(f"buffer_load_dwordx4 {v(vA)}, {s(rX,4)}, 0 offen lds")
            if i < 3: a(f"s_add_u32 m0, m0, 1024")
    def tagpoll_issue(vA, vD, n, rr, step, sP):
        for i in range(4):
            l = a.uid("PA")
            a(f"s_mov_b64 exec, {s(sP+2*i,2)}")
            a(f"s_cbranch_execz {l}")
            a(f"s_mov_b32 {s(sT0)}, {i*step}")
            a(f"buffer_load_dword{'x2' if n == 2 else ''} {v(vD+n*i,n)}, {v(vA)}, {s(rr,4)}, {s(sT0)} offen sc1")
            a(f"{l}:")
        a("s_mov_b64 exec, -1")
    def tagpoll(vA, vD, n, rr, step, sP, issued=False):
        l = a.uid("TP"); c = a.uid("TPC"); d = a.uid("TPD")
        a(f"s_mov_b32 {s(sSPIN)}, 0x100000")
        if issued: a(f"s_branch {c}")
        a(f"{l}:")
        tagpoll_issue(vA, vD, n, rr, step, sP)
        a(f"{c}:")
        a("s_waitcnt vmcnt(0)")
        for i in range(4):
            a(f"v_cmp_ne_u32 {s(sP+2*i,2)}, {s(sTAG)}, {v(vD+n*i+n-1)}")
        a(f"s_or_b64 {s(sT2,2)}, {s(sP,2)}, {s(sP+2,2)}")
        a(f"s_or_b64 vcc, {s(sP+4,2)}, {s(sP+6,2)}")
        a(f"s_or_b64 vcc, vcc, {s(sT2,2)}")
        a(f"s_cbranch_vccz {d}")
        a(f"s_sleep {SLP}")
        a(f"s_sub_u32 {s(sSPIN)}, {s(sSPIN)}, 1")
        a(f"s_cbranch_scc0 {l}")
        a(f"{d}:")

    a.raw(f".globl {KNAME}")
    a.raw(".p2align 8")
    a.raw(f".type {KNAME},@function")
    a.raw(f"{KNAME}:")
    a(f"s_cmp_ge_u32 s2, {NWG}")
    a(f"s_cbranch_scc1 K_END")
    a("s_load_dwordx16 s[16:31], s[0:1], 0")
    a("s_load_dwordx8 s[32:39], s[0:1], 64")
    a(f"v_lshrrev_b32 v1, 6, v0")
    a(f"s_and_b32 {s(sSL)}, s2, 3")
    a(f"v_readfirstlane_b32 {s(sWAVE)}, v1")
    a(f"s_lshr_b32 {s(sBK)}, s2, 2")
    a(f"v_and_b32 {v(vLane)}, 63, v0")
    a(f"v_mov_b32 {v(vOne)}, 1")
    a(f"v_mov_b32 {v(vMISC)}, {L_MISC}")
    nz = (L_ZEND - L_Z) // 4
    a(f"v_lshlrev_b32 {v(vt)}, 2, v0")
    a(f"v_add_u32 {v(vt)}, {L_Z}, {v(vt)}")
    a(f"v_mov_b32 {v(vt+1)}, 0")
    a(f"v_cmp_gt_u32 vcc, {nz}, v0")
    a("s_mov_b64 exec, vcc")
    a(f"ds_write_b32 {v(vt)}, {v(vt+1)}")
    a("s_mov_b64 exec, -1")
    a(f"v_and_b32 {v(vJ16)}, 3, v0")
    a(f"v_lshlrev_b32 {v(vJ16)}, 4, {v(vJ16)}")
    a(f"s_sub_u32 {s(sTILE)}, {s(sWAVE)}, 4")
    a(f"s_cselect_b32 {s(sTILE)}, 12, {s(sTILE)}")
    a(f"s_mul_i32 {s(sXS)}, {s(sTILE)}, {32*AUS}")
    a(f"s_add_u32 {s(sXS)}, {s(sXS)}, {L_AU}")
    x_setup()
    a("s_waitcnt lgkmcnt(0)")
    a(f"s_lshl_b32 {s(sSL64)}, {s(sSL)}, 6")
    stamp(a, 0, vACC)
    srd(a, rX, pX, N*256)
    a(f"s_cmp_ge_u32 {s(sWAVE)}, 4")
    a("s_cbranch_scc1 K_G0")
    vD8 = vX; vS8 = vX + 8; vE4 = vX + 16; vRK = vX + 20; vKY = vWF; vRP = vWF + 8; vCN = vWF + 24; vEX = vWF + 26
    a("s_setprio 3")
    a(f"s_or_b32 {s(sT0)}, s2, {s(sWAVE)}")
    a("s_cbranch_scc1 K_NOTAG")
    a(f"s_memrealtime {s(sT2,2)}")
    a("s_waitcnt lgkmcnt(0)")
    a(f"s_or_b32 {s(sT2)}, {s(sT2)}, 1")
    a(f"v_mov_b32 {v(vt)}, {s(sT2)}")
    a("s_mov_b64 exec, 1")
    a(f"global_store_dword {v(vt+1)}, {v(vt)}, {s(pDBG,2)} sc1")
    a("s_mov_b64 exec, -1")
    a("K_NOTAG:")
    a(f"s_cmp_eq_u32 {s(sWAVE)}, 1")
    a(f"s_cselect_b32 {s(rW)}, {s(pWV)}, {s(pWB)}")
    a(f"s_cselect_b32 {s(rW+1)}, {s(pWV+1)}, {s(pWB+1)}")
    a(f"s_cmp_eq_u32 {s(sWAVE)}, 2")
    a(f"s_cselect_b32 {s(rW)}, {s(pWA)}, {s(rW)}")
    a(f"s_cselect_b32 {s(rW+1)}, {s(pWA+1)}, {s(rW+1)}")
    a(f"s_cmp_eq_u32 {s(sWAVE)}, 3")
    a(f"s_cselect_b32 {s(rW)}, {s(pWU)}, {s(rW)}")
    a(f"s_cselect_b32 {s(rW+1)}, {s(pWU+1)}, {s(rW+1)}")
    a(f"s_and_b32 {s(rW+1)}, {s(rW+1)}, 0xffff")
    a(f"s_mov_b32 {s(rW+2)}, {128*256}")
    a(f"s_mov_b32 {s(rW+3)}, 0x20000")
    srd(a, rA, pDST, E*4); srd(a, rB, pSRC, E*4); srd(a, rC, pE, E*2)
    a(f"s_mul_i32 {s(sT0)}, s2, {CH}")
    a(f"v_lshl_add_u32 {v(vt)}, v0, 2, {s(sT0)}")
    a(f"v_add_u32 {v(vt+1)}, {CH//2}, {v(vt)}")
    a(f"s_mov_b32 {s(sT1)}, {E}")
    a(f"v_cmp_gt_u32 vcc, {CH//8}, v0")
    a(f"v_cmp_gt_u32 {s(sVAL,2)}, {s(sT1)}, {v(vt)}")
    a(f"v_cmp_gt_u32 {s(sVAL2,2)}, {s(sT1)}, {v(vt+1)}")
    a(f"v_lshlrev_b32 {v(vt+2)}, 2, {v(vt)}")
    a(f"v_lshlrev_b32 {v(vt+3)}, 1, {v(vt)}")
    a(f"s_and_b64 {s(sVAL,2)}, {s(sVAL,2)}, vcc")
    a(f"s_and_b64 {s(sVAL2,2)}, {s(sVAL2,2)}, vcc")
    a("s_mov_b64 exec, vcc")
    a(f"buffer_load_dwordx4 {v(vD8,4)}, {v(vt+2)}, {s(rA,4)}, 0 offen")
    a(f"buffer_load_dwordx4 {v(vD8+4,4)}, {v(vt+2)}, {s(rA,4)}, 0 offen offset:{CH*2}")
    a(f"buffer_load_dwordx4 {v(vS8,4)}, {v(vt+2)}, {s(rB,4)}, 0 offen")
    a(f"buffer_load_dwordx4 {v(vS8+4,4)}, {v(vt+2)}, {s(rB,4)}, 0 offen offset:{CH*2}")
    a(f"buffer_load_dwordx2 {v(vE4,2)}, {v(vt+3)}, {s(rC,4)}, 0 offen")
    a(f"buffer_load_dwordx2 {v(vE4+2,2)}, {v(vt+3)}, {s(rC,4)}, 0 offen offset:{CH}")
    a("s_mov_b64 exec, -1")
    a(f"v_lshrrev_b32 {v(vt)}, 2, {v(vLane)}")
    a(f"v_lshl_add_u32 {v(vt)}, {v(vt)}, 8, {v(vJ16)}")
    a(f"s_lshl_b32 {s(sT0)}, {s(sWAVE)}, 13")
    a(f"s_add_u32 m0, {s(sT0)}, {L_WL}")
    a(f"s_mov_b32 {s(sT1)}, {s(sSL64)}")
    for i in range(8):
        a(f"buffer_load_dwordx4 {v(vt)}, {s(rW,4)}, {s(sT1)} offen lds")
        if i < 7:
            a(f"s_add_u32 m0, m0, 1024")
            a(f"s_add_u32 {s(sT1)}, {s(sT1)}, 4096")
    a("s_branch K_C0")
    a("K_G0:")
    if not opt("xpost"): x_round(0, vACC)
    a("K_C0:")
    srd(a, rC, pWC, 256)
    a(f"buffer_load_dwordx4 {v(vWC,4)}, {v(vJ16)}, {s(rC,4)}, {s(sSL64)} offen")
    a("s_barrier")
    if opt("xpost"):
        a(f"s_cmp_lt_u32 {s(sWAVE)}, 4")
        a("s_cbranch_scc1 K_C1")
        x_round(0, vACC)
        a("K_C1:")
    a(f"s_mov_b32 {s(sMHI)}, 0xffff0000")
    a(f"s_mov_b32 {s(sM7F0)}, 0x7fff0000")
    a(f"s_mov_b32 {s(sM7FF)}, 0x7fffffff")
    a(f"s_mov_b32 {s(sTINY)}, 0x00800000")
    a(f"s_mov_b32 {s(sPERM)}, 0x07060302")
    a(f"s_mov_b32 {s(sNL2E)}, {hx(fbits(-LOG2E))}")
    a(f"s_mov_b32 {s(sPEND)}, 0")
    a(f"s_mul_i32 {s(sT0)}, {s(sSL)}, {TS}")
    srd(a, rT, pWS, N*128, s(sT0))
    srd(a, rREC, pWS, NWG*CHB, WS_REC)
    srd(a, rDESC, pWS, 131072, WS_DESC)
    srd(a, rA, pOUT, N*256)
    srd(a, rDBG, pDBG, 256)
    srd(a, rFLG, pWS, 32768, WS_FLAG)
    a(f"s_cmp_ge_u32 {s(sWAVE)}, 4")
    a("s_cbranch_scc1 K_GEMM")
    a("s_waitcnt vmcnt(9)")
    stamp(a, 1, vACC, 1)
    a(f"s_mov_b32 {s(sT0)}, {L_CNTA}")
    a(f"s_mov_b32 {s(sT1)}, {-NPB & 0xffffffff}")
    for i in range(8):
        a(f"v_mul_u32_u24 {v(vt)}, {MAGIC}, {v(vD8+i)}")
        a(f"v_lshrrev_b32 {v(vt)}, 24, {v(vt)}")
        a(f"v_mad_i32_i24 {v(vD8+i)}, {v(vt)}, {s(sT1)}, {v(vD8+i)}")
        a(f"v_and_b32 {v(vKY+i)}, 62, {v(vt)}")
        a(f"v_and_b32 {v(vt)}, 1, {v(vt)}")
        a(f"v_lshlrev_b32 {v(vKY+i)}, 1, {v(vKY+i)}")
        a(f"v_lshl_or_b32 {v(vKY+i)}, {v(vt)}, 7, {v(vKY+i)}")
        a(f"v_add_u32 {v(vRP+i)}, {s(sT0)}, {v(vKY+i)}")
        if i % 4 == 3:
            a(f"s_mov_b64 exec, {s(sVAL if i == 3 else sVAL2,2)}")
            for j in range(i - 3, i + 1):
                a(f"ds_add_rtn_u32 {v(vRK+j)}, {v(vRP+j)}, {v(vOne)}")
            a("s_mov_b64 exec, -1")
    a("s_waitcnt lgkmcnt(0)")
    signal(M_HS1)
    for i in range(8):
        e = vE4 + i // 2
        if i % 2 == 0: a(f"v_lshl_or_b32 {v(vRP+2*i)}, {v(e)}, 16, {v(vS8+i)}")
        else:          a(f"v_and_or_b32 {v(vRP+2*i)}, {v(e)}, {s(sMHI)}, {v(vS8+i)}")
        a(f"v_mov_b32 {v(vRP+2*i+1)}, {v(vD8+i)}")
    a(f"v_lshlrev_b32 {v(vt)}, 2, {v(vLane)}")
    a(f"v_add_u32 {v(vt+1)}, {L_CNTA}, {v(vt)}")
    spin(M_HS1, 4, vt+2)
    a(f"ds_read_b32 {v(vCN)}, {v(vt+1)}")
    a("s_waitcnt lgkmcnt(0)")
    a(f"v_mov_b32 {v(vEX)}, {v(vCN)}")
    scan64(a, vEX)
    a(f"v_sub_u32 {v(vEX)}, {v(vEX)}, {v(vCN)}")
    for i in range(8):
        a(f"ds_bpermute_b32 {v(vD8+i)}, {v(vKY+i)}, {v(vEX)}")
    a(f"v_lshl_or_b32 {v(vCN)}, {v(vCN)}, 16, {v(vEX)}")
    for i in range(8):
        a(f"s_waitcnt lgkmcnt({7-i})")
        a(f"v_add_lshl_u32 {v(vD8+i)}, {v(vD8+i)}, {v(vRK+i)}, 3")
    for i in range(8):
        if i % 4 == 0: a(f"s_mov_b64 exec, {s(sVAL if i == 0 else sVAL2,2)}")
        a(f"ds_write_b64 {v(vD8+i)}, {v(vRP+2*i,2)} offset:{L_STAGE}")
    a("s_mov_b64 exec, -1")
    a("s_waitcnt lgkmcnt(0)")
    signal(M_HS2)
    a("s_waitcnt vmcnt(1)" if not STAMPS else "s_waitcnt vmcnt(0)")
    signal(M_WRDY)
    a(f"v_lshlrev_b32 {v(vt+1)}, 4, v0")
    spin(M_HS2, 4, vt+3)
    for i in range(4):
        a(f"ds_read_b128 {v(vX+4*i,4)}, {v(vt+1)} offset:{L_STAGE + i*4096}")
    a(f"s_mul_i32 {s(sT0)}, s2, {CHB}")
    for i in range(3):
        a(f"s_waitcnt lgkmcnt({3-i})")
        a(f"buffer_store_dwordx4 {v(vX+4*i,4)}, {v(vt+1)}, {s(rREC,4)}, {s(sT0)} offen sc1")
        a(f"s_add_u32 {s(sT0)}, {s(sT0)}, 4096")
    a("s_waitcnt lgkmcnt(0)")
    a(f"s_cmp_lg_u32 {s(sWAVE)}, 0")
    a("s_cbranch_scc1 K_NOLAST")
    a("s_mov_b64 exec, 0xffff")
    a(f"buffer_store_dwordx4 {v(vX+12,4)}, {v(vt+1)}, {s(rREC,4)}, {s(sT0)} offen sc1")
    a("s_mov_b64 exec, -1")
    x_round(0, vACC)
    a("K_NOLAST:")
    stamp(a, 2, vACC, 1)
    a(f"v_mov_b32 {v(vt+2)}, 0")
    a(f"s_mov_b32 {s(sSPIN)}, 0x100000")
    a("K_GOL:")
    a(f"buffer_load_dword {v(vCN+1)}, {v(vt+2)}, {s(rDBG,4)}, 0 offen sc1")
    a("s_waitcnt vmcnt(0)")
    a(f"v_readfirstlane_b32 {s(sTAG)}, {v(vCN+1)}")
    a(f"s_cmp_lg_u32 {s(sTAG)}, 0")
    a("s_cbranch_scc1 K_GOD")
    a(f"s_sub_u32 {s(sSPIN)}, {s(sSPIN)}, 1")
    a("s_cbranch_scc0 K_GOL")
    a("K_GOD:")
    a(f"ds_write_b32 {v(vMISC)}, {v(vCN+1)} offset:{M_TAG}")
    signal(M_HS3, vt+3)
    a(f"v_lshlrev_b32 {v(vt+1)}, 3, {v(vLane)}")
    a(f"s_lshl_b32 {s(sT1)}, s2, 9")
    a("s_waitcnt lgkmcnt(0)")
    a(f"v_readfirstlane_b32 {s(sT0)}, {v(vt+3)}")
    a(f"s_cmp_lg_u32 {s(sT0)}, 3")
    a("s_cbranch_scc1 K_NOFLAGA")
    a(f"buffer_store_dwordx2 {v(vCN,2)}, {v(vt+1)}, {s(rDESC,4)}, {s(sT1)} offen sc1")
    stamp(a, 3, vACC, -1)
    a("K_NOFLAGA:")
    a(f"s_cmp_eq_u32 {s(sWAVE)}, 0")
    a("s_cbranch_scc1 K_GEMM")
    a(f"s_cmp_lg_u32 {s(sWAVE)}, 3")
    a("s_cbranch_scc1 K_RECS")
    spin(M_XL, int(opt("pollat", 8)), vt+1)
    stamp(a, 4, vACC, 3)
    a(f"s_lshr_b32 {s(sT0)}, {s(sBK)}, 1")
    a(f"s_and_b32 {s(sT1)}, {s(sBK)}, 1")
    a(f"s_lshl_b32 {s(sT1)}, {s(sT1)}, 5")
    a(f"s_or_b32 {s(sT0)}, {s(sT0)}, {s(sT1)}")
    a(f"s_lshl_b32 {s(sT0)}, {s(sT0)}, 3")
    a(f"v_lshlrev_b32 {v(vt+1)}, 9, {v(vLane)}")
    a(f"v_add_u32 {v(vt+1)}, {s(sT0)}, {v(vt+1)}")
    sP = 16
    for i in range(4): a(f"s_mov_b64 {s(sP+2*i,2)}, -1")
    tagpoll(vt+1, vX, 2, rDESC, 32768, sP)
    a(f"v_add_u32 {v(vt+1)}, {L_DESC}, {v(vt)}")
    for i in range(4):
        a(f"ds_write_b32 {v(vt+1)}, {v(vX+2*i)} offset:{i*256}")
    a("s_waitcnt lgkmcnt(0)")
    signal(M_DRDY)
    stamp(a, 5, vACC, 3)
    a("s_branch K_RECS")
    a("K_GEMM:")
    vFA = vO
    a(f"v_and_b32 {v(vt)}, 31, {v(vLane)}")
    a(f"v_lshrrev_b32 {v(vt+2)}, 5, {v(vLane)}")
    a(f"v_lshl_add_u32 {v(vt+1)}, {v(vt)}, 7, {s(sXS)}")
    a(f"v_bfe_u32 {v(vt+3)}, {v(vLane)}, 1, 3")
    a(f"v_xor_b32 {v(vt+3)}, {v(vt+3)}, {v(vt+2)}")
    a(f"v_lshlrev_b32 {v(vt+3)}, 4, {v(vt+3)}")
    for t in range(4):
        a(f"v_xor_b32 {v(vFA+t)}, {t*32}, {v(vt+3)}")
        a(f"v_add_u32 {v(vFA+t)}, {v(vFA+t)}, {v(vt+1)}")
    a(f"v_mul_u32_u24 {v(vAUa)}, {AUS}, {v(vt)}")
    a(f"v_lshl_add_u32 {v(vAUa)}, {v(vt+2)}, 4, {v(vAUa)}")
    a(f"v_add_u32 {v(vAUa)}, {s(sXS)}, {v(vAUa)}")
    a(f"v_lshlrev_b32 {v(vTR)}, 3, {v(vt+2)}")
    a(f"v_bfe_u32 {v(vt)}, {v(vLane)}, 2, 2")
    a(f"v_add_u32 {v(vTR)}, {v(vTR)}, {v(vt)}")
    a(f"v_lshlrev_b32 {v(vTR)}, 6, {v(vTR)}")
    a(f"v_bfe_u32 {v(vt)}, {v(vLane)}, 4, 1")
    a(f"v_lshl_add_u32 {v(vTR)}, {v(vt)}, 5, {v(vTR)}")
    a(f"v_and_b32 {v(vt)}, 1, {v(vLane)}")
    a(f"v_lshl_add_u32 {v(vTR)}, {v(vt)}, 4, {v(vTR)}")
    a(f"v_and_b32 {v(vt)}, 2, {v(vLane)}")
    a(f"v_lshl_add_u32 {v(vTR)}, {v(vt)}, 2, {v(vTR)}")
    a(f"v_add_u32 {v(vTR)}, {L_WL}, {v(vTR)}")
    a(f"v_mov_b32 {v(vBIG)}, 0x7f7f7fff")
    a("s_waitcnt vmcnt(0)")
    for t in range(4):
        a(f"ds_read_b128 {v(vX+4*t,4)}, {v(vFA+t)}")
    if not opt("xearly"): spin(M_HS3, int(opt("xat", 4)), vt)
    else: a("s_waitcnt lgkmcnt(0)")
    x_round(1, vACC)
    spin(M_WRDY, 4, vt)
    tr_reads(a, 0, vTR, vWF)
    a("s_waitcnt vmcnt(0)")
    signal(M_XL)
    stamp(a, 6, vACC, 4)
    stamp(a, 7, vACC, 15)
    a("s_setprio 3")
    for t in range(4):
        a(f"ds_read_b128 {v(vX+16+4*t,4)}, {v(vFA+t)}")
    a("s_waitcnt lgkmcnt(0)")
    def packT():
        if opt("exact"):
            pack_chain(a, vACC, vO, vTM, vBIG)
        else:
            for g in range(4): a(f"v_add_u32 {v(vACC+4*g)}, 0x8000, {v(vACC+4*g)}")
            for g in range(4): a(f"v_perm_b32 {v(vO+2*g+1)}, {v(vACC+4*g+3)}, {v(vACC+4*g+2)}, {s(sPERM)}")
            for g in range(4): a(f"v_perm_b32 {v(vO+2*g)}, {v(vACC+4*g+1)}, {v(vACC+4*g)}, {s(sPERM)}")
    def scale():
        for r in range(16): a(f"v_mul_f32 {v(vACC+r)}, {s(sNL2E)}, {v(vACC+r)}")
    for mat in range(2):
        mfma_chain(a, vWF, vX, vACC)
        tr_reads(a, mat + 1, vTR, vWF)
        if mat == 0: scale()
        packT()
        a(f"ds_write_b128 {v(vAUa)}, {v(vO,4)} offset:{mat*64}")
        a(f"ds_write_b128 {v(vAUa)}, {v(vO+4,4)} offset:{mat*64+32}")
        if mat == 0: a("s_waitcnt lgkmcnt(2)")
    a(f"v_lshrrev_b32 {v(vt)}, 3, {v(vLane)}")
    a(f"v_and_b32 {v(vt+1)}, 7, {v(vLane)}")
    a(f"v_lshlrev_b32 {v(vt+1)}, 4, {v(vt+1)}")
    a(f"v_mul_u32_u24 {v(vt+2)}, {AUS}, {v(vt)}")
    a(f"v_add3_u32 {v(vt+2)}, {v(vt+2)}, {v(vt+1)}, {s(sXS)}")
    a(f"v_lshrrev_b32 {v(vt)}, 1, {v(vXA)}")
    a(f"v_add_u32 {v(vt)}, {v(vt)}, {v(vt+1)}")
    a(f"s_brev_b32 {s(sT1)}, 1")
    vPF = vXB
    a(f"s_mul_i32 {s(sT0)}, {s(sBK)}, {NPB}")
    a(f"s_lshl_b32 {s(sT2)}, {s(sTILE)}, 5")
    a(f"s_add_u32 {s(sT0)}, {s(sT0)}, {s(sT2)}")
    a(f"v_add_lshl_u32 {v(vPF)}, {v(vLane)}, {s(sT0)}, 7")
    a(f"s_sub_u32 {s(sT2)}, {NPB-1}, {s(sT2)}")
    a(f"v_sub_u32 {v(vt+3)}, {s(sT2)}, {v(vLane)}")
    a(f"v_and_or_b32 {v(vPF)}, {v(vt+3)}, {s(sT1)}, {v(vPF)}")
    a("s_waitcnt lgkmcnt(0)")
    for i in range(4):
        a(f"ds_read_b128 {v(vO+4*i,4)}, {v(vt+2)} offset:{i*8*AUS}")
    for i in range(4):
        a(f"v_subrev_u32 {v(vt+3)}, {8*i}, {v(vXV)}")
        a(f"v_and_or_b32 {v(vt+1)}, {v(vt+3)}, {s(sT1)}, {v(vt)}")
        a(f"s_waitcnt lgkmcnt({3-i})")
        a(f"buffer_store_dwordx4 {v(vO+4*i,4)}, {v(vt+1)}, {s(rT,4)}, 0 offen offset:{i*1024} sc1")
    stamp(a, 8, vt, 15)
    a("s_setprio 0")
    for mat in (2, 3):
        mfma_chain(a, vWF, vX, vACC)
        if mat == 2:
            tr_reads(a, 3, vTR, vWF)
            scale()
        else:
            a("s_nop 11")
        for d in range(8): a(f"v_cvt_pk_bf16_f32 {v(vO+8*(mat-2)+d)}, {v(vACC+2*d)}, {v(vACC+2*d+1)}")
        a(f"ds_write_b128 {v(vAUa)}, {v(vO+8*(mat-2),4)} offset:{(mat-2)*64}")
        a(f"ds_write_b128 {v(vAUa)}, {v(vO+8*(mat-2)+4,4)} offset:{(mat-2)*64+32}")
        if mat == 2: a("s_waitcnt lgkmcnt(2)")
    a(f"s_mov_b32 {s(sPEND)}, 1")
    a("K_RECS:")
    a("s_setprio 0")
    vDS = vX; vRC = vX + 4; vRC2 = vX + 20; vRK8 = vX + 36; vAD = vX + 44; vI = vX + 52; vRB = vX + 56; vDA = vX + 57; vRB0 = vX + 58; vDA0 = vX + 59
    sM2 = 16
    for d in range(4): a(f"v_and_b32 {v(vWC+4+d)}, {s(sMHI)}, {v(vWC+d)}")
    for d in range(4): a(f"v_lshlrev_b32 {v(vWC+d)}, 16, {v(vWC+d)}")
    for d in range(8): a(f"v_mul_f32 {v(vWC+d)}, {s(sNL2E)}, {v(vWC+d)}")
    a(f"v_lshrrev_b32 {v(vt)}, 4, {v(vLane)}")
    a(f"v_and_b32 {v(vI)}, 15, {v(vLane)}")
    a(f"v_mul_u32_u24 {v(vRB0)}, {CHB}, {v(vt)}")
    a(f"v_lshl_add_u32 {v(vRB0)}, {v(vI)}, 4, {v(vRB0)}")
    a(f"v_lshlrev_b32 {v(vI)}, 1, {v(vI)}")
    a(f"v_add_u32 {v(vI+1)}, 1, {v(vI)}")
    a(f"v_add_u32 {v(vI+2)}, 32, {v(vI)}")
    a(f"v_add_u32 {v(vI+3)}, 33, {v(vI)}")
    a(f"v_lshlrev_b32 {v(vDA0)}, 2, {v(vt)}")
    a(f"v_add_u32 {v(vDA0)}, {L_DESC}, {v(vDA0)}")
    a(f"v_mov_b32 {v(vt+1)}, 8")
    a(f"v_mov_b32 {v(vt+2)}, {STRIDE}")
    a(f"s_mov_b64 {s(sOVF,2)}, 0")
    def report():
        l = a.uid("RP")
        a(f"s_mov_b32 {s(sPEND)}, 0")
        signal(M_GCNT, vt)
        a("s_waitcnt lgkmcnt(0)")
        a(f"v_readfirstlane_b32 {s(sT0)}, {v(vt)}")
        a(f"s_cmp_lg_u32 {s(sT0)}, 12")
        a(f"s_cbranch_scc1 {l}")
        a(f"ds_read_b32 {v(vt)}, {v(vMISC)} offset:{M_TAG}")
        a(f"s_lshl_b32 {s(sT0)}, s2, 7")
        a(f"v_mov_b32 {v(vt+3)}, {s(sT0)}")
        a("s_mov_b64 exec, 1")
        a("s_waitcnt lgkmcnt(0)")
        a(f"buffer_store_dword {v(vt)}, {v(vt+3)}, {s(rFLG,4)}, 0 offen sc1")
        a("s_mov_b64 exec, -1")
        stamp(a, 9, vACC, -1)
        a(f"{l}:")
    if opt("repfirst"):
        a(f"s_cmp_eq_u32 {s(sPEND)}, 0")
        a("s_cbranch_scc1 K_NOREP0")
        a("s_waitcnt vmcnt(0)")
        spin(M_HS3, 4, vt+3)
        report()
        if opt("ownpf"):
            a("s_mov_b32 exec_hi, 0")
            a(f"buffer_load_dword v127, {v(vPF)}, {s(rT,4)}, 0 offen")
            a("s_mov_b64 exec, -1")
            R.hi = 128
        a("K_NOREP0:")
    spin(M_DRDY, 1, vt+3)
    a("K_BATCH:")
    signal(M_BQ, vt)
    a("s_waitcnt lgkmcnt(0)")
    a(f"v_readfirstlane_b32 {s(sK)}, {v(vt)}")
    a(f"s_cmp_ge_u32 {s(sK)}, 16")
    a("s_cbranch_scc1 K_BDONE")
    a(f"s_lshl_b32 {s(sT0)}, {s(sK)}, 6")
    a(f"v_add_u32 {v(vDA)}, {s(sT0)}, {v(vDA0)}")
    a(f"ds_read2_b32 {v(vDS,2)}, {v(vDA)} offset0:0 offset1:4")
    a(f"ds_read2_b32 {v(vDS+2,2)}, {v(vDA)} offset0:8 offset1:12")
    a(f"s_mul_i32 {s(sT0)}, {s(sK)}, {16*CHB}")
    a(f"v_add_u32 {v(vRB)}, {s(sT0)}, {v(vRB0)}")
    a(f"v_mov_b32 {v(vt+3)}, 64")
    a("s_waitcnt lgkmcnt(0)")
    SD = "src0_sel:DWORD src1_sel:WORD_1"
    for it in range(4):
        a(f"v_mad_u32_u16 {v(vAD+it)}, {v(vDS+it)}, {v(vt+1)}, {v(vRB)}")
        a(f"v_cmp_lt_u32_sdwa {s(sM2+4*it,2)}, {v(vI+2)}, {v(vDS+it)} {SD}")
    for it in range(4):
        l = a.uid("S2")
        a(f"s_cmp_eq_u64 {s(sM2+4*it,2)}, 0")
        a(f"s_cbranch_scc1 {l}")
        a(f"s_mov_b32 {s(sT0)}, {it*4*CHB}")
        a(f"buffer_load_dwordx4 {v(vRC2+4*it,4)}, {v(vAD+it)}, {s(rREC,4)}, {s(sT0)} offen offset:256")
        a(f"{l}:")
    for it in range(4):
        a(f"s_mov_b32 {s(sT0)}, {it*4*CHB}")
        a(f"buffer_load_dwordx4 {v(vRC+4*it,4)}, {v(vAD+it)}, {s(rREC,4)}, {s(sT0)} offen")
    for it in range(4):
        a(f"v_cmp_lt_u32_sdwa {s(sMSK+4*it,2)}, {v(vI)}, {v(vDS+it)} {SD}")
        a(f"v_cmp_lt_u32_sdwa {s(sMSK+4*it+2,2)}, {v(vI+1)}, {v(vDS+it)} {SD}")
        a(f"v_cmp_lt_u32_sdwa {s(sM2+4*it+2,2)}, {v(vI+3)}, {v(vDS+it)} {SD}")
        a(f"v_cmp_lt_u32_sdwa vcc, {v(vt+3)}, {v(vDS+it)} {SD}")
        a(f"s_or_b64 {s(sOVF,2)}, {s(sOVF,2)}, vcc")
    a(f"s_cmp_eq_u32 {s(sPEND)}, 0")
    a("s_cbranch_scc1 K_NOREP")
    a("s_waitcnt vmcnt(4)")
    report()
    a("K_NOREP:")
    a("s_waitcnt vmcnt(0)")
    def proc(rc, msk, js):
        a(f"s_mov_b32 {s(sT0)}, {L_CNT}")
        for j in js: a(f"v_lshl_add_u32 {v(vAD+j)}, {v(rc+2*j+1)}, 2, {s(sT0)}")
        for j in js:
            a(f"s_mov_b64 exec, {s(msk+2*j,2)}")
            a(f"ds_add_rtn_u32 {v(vRK8+j)}, {v(vAD+j)}, {v(vOne)}")
        a("s_mov_b64 exec, -1")
        for n, j in enumerate(js):
            a(f"s_waitcnt lgkmcnt({len(js)-1-n})")
            a(f"v_mad_u32_u24 {v(vAD+j)}, {v(rc+2*j+1)}, {v(vt+2)}, {v(vRK8+j)}")
            a(f"v_cmp_gt_u32 vcc, {STRIDE}, {v(vRK8+j)}")
            a(f"v_lshlrev_b32 {v(vAD+j)}, 2, {v(vAD+j)}")
            a(f"s_andn2_b64 {s(sT2,2)}, {s(msk+2*j,2)}, vcc")
            a(f"s_and_b64 {s(msk+2*j,2)}, {s(msk+2*j,2)}, vcc")
            a(f"s_or_b64 {s(sOVF,2)}, {s(sOVF,2)}, {s(sT2,2)}")
        for j in js:
            if opt("fakesrc"): a(f"v_and_b32 {v(rc+2*j)}, {opt('fakesrc')}, {v(rc+2*j)}")
            a(f"s_mov_b64 exec, {s(msk+2*j,2)}")
            a(f"ds_write_b32 {v(vAD+j)}, {v(rc+2*j)} offset:{L_LIST}")
        a("s_mov_b64 exec, -1")
    proc(vRC, sMSK, list(range(8)))
    for it in range(4):
        l = a.uid("P2")
        a(f"s_cmp_eq_u64 {s(sM2+4*it,2)}, 0")
        a(f"s_cbranch_scc1 {l}")
        proc(vRC2, sM2, [2*it, 2*it+1])
        a(f"{l}:")
    a("s_branch K_BATCH")
    a("K_BDONE:")
    a(f"s_cmp_eq_u32 {s(sPEND)}, 0")
    a("s_cbranch_scc1 K_NOREP2")
    a("s_waitcnt vmcnt(0)")
    report()
    a("K_NOREP2:")
    stamp(a, 10, vACC, 2)
    stamp(a, 11, vACC, 8)
    a("s_barrier")
    stamp(a, 12, vACC)
    vDG = vX; vBN = vX + 1; vR2 = vX + 2; vBC = vX + 3; vBE = vX + 4; vPD = vX + 8
    a(f"s_cmp_lg_u32 {s(sWAVE)}, 15")
    a("s_cbranch_scc1 K_NOPI")
    a(f"ds_read_b32 {v(vt)}, {v(vMISC)} offset:{M_TAG}")
    a(f"v_lshlrev_b32 {v(vt+1)}, 7, {v(vLane)}")
    for i in range(4): a(f"s_mov_b64 {s(sP+2*i,2)}, -1")
    tagpoll_issue(vt+1, vPD, 1, rFLG, 8192, sP)
    a("s_waitcnt lgkmcnt(0)")
    a(f"v_readfirstlane_b32 {s(sTAG)}, {v(vt)}")
    a("K_NOPI:")
    a(f"s_movk_i32 {s(sT0)}, {NLOC}")
    a(f"v_cmp_gt_u32 {s(sVAL,2)}, {s(sT0)}, v0")
    a(f"v_lshlrev_b32 {v(vt)}, 2, v0")
    a(f"v_add_u32 {v(vt)}, {L_CNT}, {v(vt)}")
    a(f"s_mov_b64 exec, {s(sVAL,2)}")
    a(f"ds_read_b32 {v(vDG)}, {v(vt)}")
    a("s_waitcnt lgkmcnt(0)")
    a(f"v_min_u32 {v(vDG)}, {STRIDE}, {v(vDG)}")
    a(f"v_sub_u32 {v(vBN)}, 63, {v(vDG)}")
    a(f"v_lshlrev_b32 {v(vBN)}, 2, {v(vBN)}")
    a(f"v_add_u32 {v(vt)}, {L_BINS}, {v(vBN)}")
    a(f"ds_add_rtn_u32 {v(vR2)}, {v(vt)}, {v(vOne)}")
    a("s_mov_b64 exec, -1")
    a("s_waitcnt lgkmcnt(0)")
    a("s_barrier")
    a(f"s_cmp_lg_u32 {s(sWAVE)}, 15")
    a("s_cbranch_scc1 K_NOPOLLB")
    tagpoll(vt+1, vPD, 1, rFLG, 8192, sP, issued=True)
    stamp(a, 13, vACC, 15)
    a("K_NOPOLLB:")
    a(f"s_cmp_ge_u32 {s(sWAVE)}, {(NLOC+63)//64}")
    a("s_cbranch_scc1 K_NOPERM")
    a(f"v_lshlrev_b32 {v(vt)}, 2, {v(vLane)}")
    a(f"v_add_u32 {v(vt)}, {L_BINS}, {v(vt)}")
    a(f"ds_read_b32 {v(vBC)}, {v(vt)}")
    a("s_waitcnt lgkmcnt(0)")
    a(f"v_mov_b32 {v(vBE)}, {v(vBC)}")
    scan64(a, vBE)
    a(f"v_sub_u32 {v(vBE)}, {v(vBE)}, {v(vBC)}")
    a(f"ds_bpermute_b32 {v(vt)}, {v(vBN)}, {v(vBE)}")
    a(f"v_lshl_or_b32 {v(vDG)}, {v(vDG)}, 16, v0")
    a("s_waitcnt lgkmcnt(0)")
    a(f"v_add_lshl_u32 {v(vt)}, {v(vt)}, {v(vR2)}, 2")
    a(f"v_add_u32 {v(vt)}, {L_PERM}, {v(vt)}")
    a(f"s_mov_b64 exec, {s(sVAL,2)}")
    a(f"ds_write_b32 {v(vt)}, {v(vDG)}")
    a("s_mov_b64 exec, -1")
    a("s_waitcnt lgkmcnt(0)")
    a("K_NOPERM:")
    stamp(a, 14, vACC)
    a("s_barrier")
    stamp(a, 15, vACC)
    stamp(a, 13, vACC, 7, True)
    NB = int(opt("nbuf", 3))
    R2 = Regs(m0, 127)
    vDEN = R2.alloc(8); vNUM = R2.alloc(8); vEA = R2.alloc(8)
    vBUF = [R2.alloc(16, 4) for _ in range(NB)]
    vLa = R2.alloc(4); vLb = R2.alloc(4); vUa = R2.alloc(4); vUb = R2.alloc(4)
    vE = [R2.alloc(2) for _ in range(NB)]
    vREC = R2.alloc(2); vADR = vt
    vU = R2.alloc(4, 4); vXS = R2.alloc(4, 4)
    vINFO = vt + 2; vDEG = vt + 3; vLA = R2.alloc(); vOFF = R2.alloc()
    vPB = 0; vAUB = vLane; vOB = 1
    R.hi = max(R.hi, R2.hi)
    sSGN = sBASE; s128 = sVAL; sKG = sVAL + 1
    a(f"s_brev_b32 {s(sSGN)}, 1")
    a(f"s_movk_i32 {s(s128)}, 128")
    a(f"s_mul_i32 {s(sT0)}, {s(sBK)}, {NPB*256}")
    a(f"v_add_u32 {v(vOB)}, {s(sT0)}, {v(vJ16)}")
    a(f"v_lshrrev_b32 {v(vPB)}, 2, {v(vLane)}")
    a(f"v_lshlrev_b32 {v(vPB)}, 2, {v(vPB)}")
    a(f"v_add_u32 {v(vPB)}, {L_PERM}, {v(vPB)}")
    a(f"v_add_u32 {v(vAUB)}, {L_AU}, {v(vJ16)}")
    if PRIO: a("s_setprio 2")

    def G(nb, rec=None):
        B = vBUF[nb]
        rec = vREC if rec is None else rec
        a(f"v_mad_u32_u16 {v(vADR)}, {v(rec)}, {s(s128)}, {v(vJ16)}")
        a(f"v_mad_u32_u16 {v(vADR+1)}, {v(rec+1)}, {s(s128)}, {v(vJ16)}")
        a(f"v_and_b32 {v(vE[nb])}, {s(sMHI)}, {v(rec)}")
        a(f"v_and_b32 {v(vE[nb]+1)}, {s(sMHI)}, {v(rec+1)}")
        a(f"buffer_load_dwordx4 {v(B,4)}, {v(vADR)}, {s(rT,4)}, 0 offen")
        a(f"buffer_load_dwordx4 {v(B+4,4)}, {v(vADR)}, {s(rT,4)}, 0 offen offset:64")
        a(f"buffer_load_dwordx4 {v(B+8,4)}, {v(vADR+1)}, {s(rT,4)}, 0 offen")
        a(f"buffer_load_dwordx4 {v(B+12,4)}, {v(vADR+1)}, {s(rT,4)}, 0 offen offset:64")

    def front(B, L, e, hi):
        sel = "op_sel:[1,0,0] op_sel_hi:[1,1,1]" if hi else "op_sel_hi:[0,1,1]"
        prs = [L, L+2, B, B+2]
        a(f"v_lshlrev_b64 {v(L,2)}, 16, {v(B,2)}")
        a(f"v_lshlrev_b64 {v(L+2,2)}, 16, {v(B+2,2)}")
        for i in (2, 3, 0, 1):
            a(pk("fma", prs[i], v(e,2), v(vWC+2*i,2), v(prs[i],2), sel))
        for i in (2, 3, 0, 1):
            a(f"v_exp_f32 {v(prs[i])}, {v(prs[i])}")
            a(f"v_exp_f32 {v(prs[i]+1)}, {v(prs[i]+1)}")
        return prs
    def front2(prs):
        for i in (2, 3, 0, 1):
            a(pk("fma", prs[i], v(vEA+2*i,2), v(prs[i],2), "1.0", "op_sel_hi:[1,1,0]"))

    def Cpair(nb):
        if opt("novalu"): return
        B = vBUF[nb]
        Ba, Va, Bb, Vb = B, B+4, B+8, B+12
        pa = front(Ba, vLa, vE[nb], False)
        pb = front(Bb, vLb, vE[nb], True)
        a(f"v_lshlrev_b64 {v(vUa,2)}, 16, {v(Va,2)}")
        a(f"v_lshlrev_b64 {v(vUa+2,2)}, 16, {v(Va+2,2)}")
        a(f"v_lshlrev_b64 {v(vUb,2)}, 16, {v(Vb,2)}")
        a(f"v_lshlrev_b64 {v(vUb+2,2)}, 16, {v(Vb+2,2)}")
        front2(pa)
        front2(pb)
        qa = [vUa, vUa+2, Va, Va+2]; qb = [vUb, vUb+2, Vb, Vb+2]
        for i in range(4): a(pk("mul", qa[i], v(qa[i],2), v(pb[i],2)))
        for i in range(4): a(pk("fma", qa[i], v(qb[i],2), v(pa[i],2), v(qa[i],2)))
        for i in range(4): a(pk("mul", qb[i], v(pa[i],2), v(pb[i],2)))
        for i in range(4): a(pk("add", pa[i], v(pa[i],2), v(pb[i],2)))
        for i in range(4):
            a(f"v_rcp_f32 {v(qb[i])}, {v(qb[i])}")
            a(f"v_rcp_f32 {v(qb[i]+1)}, {v(qb[i]+1)}")
        for i in range(4): a(pk("fma", vNUM+2*i, v(qa[i],2), v(qb[i],2), v(vNUM+2*i,2)))
        for i in range(4): a(pk("fma", vDEN+2*i, v(pa[i],2), v(qb[i],2), v(vDEN+2*i,2)))

    def Csingle(nb, hi):
        if opt("novalu"): return
        B = vBUF[nb] + (8 if hi else 0)
        V = B + 4
        p = front(B, vLa, vE[nb], hi)
        a(f"v_lshlrev_b64 {v(vUa,2)}, 16, {v(V,2)}")
        front2(p)
        a(f"v_lshlrev_b64 {v(vUa+2,2)}, 16, {v(V+2,2)}")
        for i in (2, 3, 0, 1):
            a(f"v_rcp_f32 {v(p[i])}, {v(p[i])}")
            a(f"v_rcp_f32 {v(p[i]+1)}, {v(p[i]+1)}")
        q = [vUa, vUa+2, V, V+2]
        for i in (2, 3, 0, 1): a(pk("add", vDEN+2*i, v(vDEN+2*i,2), v(p[i],2)))
        for i in (2, 3, 0, 1): a(pk("fma", vNUM+2*i, v(q[i],2), v(p[i],2), v(vNUM+2*i,2)))

    DEP = NB - 1
    a("K_GROUP:")
    signal(M_Q, vINFO)
    a("s_waitcnt lgkmcnt(0)")
    a(f"v_readfirstlane_b32 {s(sT0)}, {v(vINFO)}")
    a(f"s_cmp_ge_u32 {s(sT0)}, {NGRP}")
    a("s_cbranch_scc1 K_DONE")
    a(f"s_lshl_b32 {s(sT0)}, {s(sT0)}, 6")
    a(f"v_add_u32 {v(vINFO)}, {s(sT0)}, {v(vPB)}")
    a(f"ds_read_b32 {v(vINFO)}, {v(vINFO)}")
    a("s_waitcnt lgkmcnt(0)")
    a(f"v_lshrrev_b32 {v(vDEG)}, 16, {v(vINFO)}")
    a(f"v_and_b32 {v(vINFO)}, 0xffff, {v(vINFO)}")
    a(f"v_mul_u32_u24 {v(vLA)}, {STRIDE*4}, {v(vINFO)}")
    for j in range(DEP):
        a(f"ds_read2_b32 {v(vLa+2*j,2)}, {v(vLA)} offset0:{2*j} offset1:{2*j+1}")
    a(f"ds_read2_b32 {v(vREC,2)}, {v(vLA)} offset0:{2*DEP} offset1:{2*DEP+1}")
    a(f"v_mul_u32_u24 {v(vADR)}, {AUS}, {v(vINFO)}")
    a(f"v_add_u32 {v(vADR)}, {v(vADR)}, {v(vAUB)}")
    a(f"ds_read_b128 {v(vEA,4)}, {v(vADR)}")
    a(f"ds_read_b128 {v(vU,4)}, {v(vADR)} offset:64")
    a(f"v_readlane_b32 {s(sMAX)}, {v(vDEG)}, 0")
    a(f"v_readlane_b32 {s(sMIN)}, {v(vDEG)}, 63")
    a(f"v_lshl_add_u32 {v(vOFF)}, {v(vINFO)}, 8, {v(vOB)}")
    a(f"v_sub_u32 {v(vINFO)}, {NPB-1}, {v(vINFO)}")
    a(f"v_and_or_b32 {v(vOFF)}, {v(vINFO)}, {s(sSGN)}, {v(vOFF)}")
    a(f"buffer_load_dwordx4 {v(vXS,4)}, {v(vOFF)}, {s(rX,4)}, {s(sSL64)} offen")
    for j in range(DEP):
        a(f"s_waitcnt lgkmcnt({DEP - j + 2})")
        G(j, vLa + 2*j)
    a("s_waitcnt lgkmcnt(1)")
    for d in range(4): a(f"v_and_b32 {v(vEA+4+d)}, {s(sMHI)}, {v(vEA+d)}")
    for d in range(4): a(f"v_lshlrev_b32 {v(vEA+d)}, 16, {v(vEA+d)}")
    for d in (4, 5, 6, 7, 0, 1, 2, 3): a(f"v_exp_f32 {v(vEA+d)}, {v(vEA+d)}")
    a(f"v_mov_b32 {v(vDEN)}, {hx(fbits(1e-6))}")
    a(f"v_mov_b32 {v(vDEN+1)}, {v(vDEN)}")
    for d in range(2, 8, 2): a(f"v_mov_b64 {v(vDEN+d,2)}, {v(vDEN,2)}")
    for d in range(0, 8, 2): a(f"v_mov_b64 {v(vNUM+d,2)}, 0")
    a(f"s_mov_b32 {s(sK)}, 0")
    a(f"s_sub_u32 {s(sKG)}, {s(sMAX)}, {2*DEP}")
    a(f"s_cmp_eq_u32 {s(sMAX)}, 0")
    a("s_cbranch_scc1 K_EPI0")
    a("K_LOOP:")
    for cur in range(NB):
        a(f"s_cmp_lt_i32 {s(sK)}, {s(sKG)}")
        a(f"s_cbranch_scc0 K_NOG{cur}")
        a("s_waitcnt lgkmcnt(0)")
        G((cur + DEP) % NB)
        a(f"ds_read2_b32 {v(vREC,2)}, {v(vLA)} offset0:{2*(DEP+1+cur)} offset1:{2*(DEP+1+cur)+1}")
        if cur == NB - 1: a(f"v_add_u32 {v(vLA)}, {8*NB}, {v(vLA)}")
        a(f"s_waitcnt vmcnt({4*DEP})")
        a(f"K_GOT{cur}:")
        a(f"s_add_u32 {s(sT0)}, {s(sK)}, 2")
        a(f"s_cmp_le_u32 {s(sT0)}, {s(sMIN)}")
        a(f"s_cbranch_scc0 K_TAIL{cur}")
        Cpair(cur)
        a(f"K_NEXT{cur}:")
        a(f"s_add_u32 {s(sK)}, {s(sK)}, 2")
        a(f"s_cmp_ge_u32 {s(sK)}, {s(sMAX)}")
        a("s_cbranch_scc1 K_EPI" if cur < NB - 1 else "s_cbranch_scc0 K_LOOP")
    a("K_EPI:")
    a("s_mov_b64 exec, -1")
    a("s_waitcnt lgkmcnt(0)")
    for d in range(8): a(f"v_rcp_f32 {v(vDEN+d)}, {v(vDEN+d)}")
    Uu = vUa; Xu = vLa
    assert vLb == vLa + 4 and vUb == vUa + 4
    for d in range(4):
        a(f"v_lshlrev_b32 {v(Uu+d)}, 16, {v(vU+d)}")
        a(f"v_and_b32 {v(Uu+4+d)}, {s(sMHI)}, {v(vU+d)}")
        a(f"v_lshlrev_b32 {v(Xu+d)}, 16, {v(vXS+d)}")
        a(f"v_and_b32 {v(Xu+4+d)}, {s(sMHI)}, {v(vXS+d)}")
    for i in range(4): a(pk("fma", Uu+2*i, v(vNUM+2*i,2), v(vDEN+2*i,2), v(Uu+2*i,2)))
    for d in range(8): a(f"v_max_f32 {v(Uu+d)}, 0, {v(Uu+d)}")
    for i in range(4): a(pk("add", Uu+2*i, v(Uu+2*i,2), v(Xu+2*i,2)))
    for d in range(4): a(f"v_cvt_pk_bf16_f32 {v(vNUM+d)}, {v(Uu+d)}, {v(Uu+4+d)}")
    a(f"buffer_store_dwordx4 {v(vNUM,4)}, {v(vOFF)}, {s(rA,4)}, {s(sSL64)} offen{OSC}")
    if PRIO: a("s_setprio 0")
    a("s_branch K_GROUP")
    a("K_EPI0:")
    a("s_waitcnt vmcnt(0)")
    a("s_branch K_EPI")
    for cur in range(NB):
        a(f"K_NOG{cur}:")
        if DEP >= 2:
            a(f"s_add_u32 {s(sT0)}, {s(sK)}, 2")
            a(f"s_cmp_lt_u32 {s(sT0)}, {s(sMAX)}")
            a(f"s_cbranch_scc0 K_NOGZ{cur}")
            a("s_waitcnt vmcnt(4)")
            a(f"s_branch K_GOT{cur}")
            a(f"K_NOGZ{cur}:")
        a("s_waitcnt vmcnt(0)")
        a(f"s_branch K_GOT{cur}")
        a(f"K_TAIL{cur}:")
        a(f"v_cmpx_lt_u32 vcc, {s(sK)}, {v(vDEG)}")
        Csingle(cur, False)
        a(f"s_add_u32 {s(sT0)}, {s(sK)}, 1")
        a(f"s_cmp_ge_u32 {s(sT0)}, {s(sMAX)}")
        a("s_cbranch_scc1 K_EPI")
        a(f"v_cmpx_lt_u32 vcc, {s(sT0)}, {v(vDEG)}")
        Csingle(cur, True)
        a(f"s_branch K_NEXT{cur}")
    a("K_DONE:")
    stamp(a, 16, vLa, None)
    stamp(a, 14, vLa, 7, True)
    a("K_END:")
    a("s_endpgm")
    return R.hi

def main():
    a = Asm()
    hdr = open("standalone__edge_featured_mpnn_gatedgcn__graph.s.ref").read().split("\n")
    for l in hdr:
        if l.startswith("; Override"): break
        a.raw(l)
    if ASLIST:
        a.raw(f"; @launch kernel={KNAME} grid=({NWG},1,1) block=(1024,1,1) lds={L_END}")
    else:
        a.raw(f"; @launch grid=({NWG},1,1) block=(1024,1,1) lds={L_END}")
    a.raw('.amdgcn_target "amdgcn-amd-amdhsa--gfx950"')
    a.raw(".text")
    nv = gen(a)
    a.raw('.section .rodata,"a"')
    a.raw(".p2align 6")
    a.raw(f".amdhsa_kernel {KNAME}")
    a.raw(f"  .amdhsa_next_free_vgpr {nv}")
    a.raw(f"  .amdhsa_next_free_sgpr 102")
    a.raw(f"  .amdhsa_accum_offset {(nv+3)//4*4}")
    a.raw(f"  .amdhsa_group_segment_fixed_size 0")
    a.raw(f"  .amdhsa_kernarg_size 96")
    a.raw(f"  .amdhsa_user_sgpr_count 2")
    a.raw(f"  .amdhsa_user_sgpr_kernarg_segment_ptr 1")
    a.raw(f"  .amdhsa_system_sgpr_workgroup_id_x 1")
    a.raw(f".end_amdhsa_kernel")
    out = [x for x in sys.argv[1:] if not x.startswith("--")]
    open(out[0] if out else "out.s", "w").write(a.text())
    print("vgprs", nv, "lds", L_END, file=sys.stderr)

main()
```

```python
import sys, math
from asmlib import *

def opt(name, default=None):
    for x in sys.argv[1:]:
        if x == "--" + name: return True
        if x.startswith("--" + name + "="): return x.split("=", 1)[1]
    return default

KNAME = "standalone__edge_featured_mpnn_gatedgcn__graph_kernel"
N, E, D = 25000, 400000, 128
NWG = 256
CH = 1568
CHB = 8192
CAPR = 1632
LOC0 = CAPR * 4
TS = 25024 * 128
WS_T, WS_REC, WS_DESC, WS_STAMP, WS_FLAG = 0, 0x00D00000, 0x01100000, 0x01200000, 0x01300000
LOG2E = 1.4426950408889634
STRIDE = 41
NLOC = 400
NGRP = NLOC // 16
AUS = 144
NPB = 391
MAGIC = 42909
STAMPS = opt("stamps", False)
OSC = {"plain": "", "sc1": " sc1", "nt": " nt"}[opt("osc", "sc1")]
PRIO = not opt("noprio")
ASLIST = opt("aslist", False)
SLP = int(opt("sleep", 2))

L_LIST = 0
L_STAGE = 0
L_AU = NLOC * STRIDE * 4
L_WL = L_AU + 416 * AUS
L_Z = L_WL + 32768
L_CNT = L_Z
L_BINS = L_CNT + 416 * 4
L_CNTA = L_BINS + 256
L_MISC = L_CNTA + 256
M_Q, M_HS1, M_HS2, M_HS3, M_WRDY, M_XL, M_GCNT, M_DRDY, M_BQ, M_TAG, M_SLOW, M_BAD = range(0, 48, 4)
LIM_A, LIM_B, LIM_E, LIM_V = 24.0, 24.0, 15.0, 2.0**60
L_ZEND = L_MISC + 48
L_PERM = L_ZEND
L_DESC = L_PERM + NLOC * 4
L_END = L_DESC + 1024
assert L_AU % 16 == 0 and L_WL % 16 == 0 and L_END <= 163840, L_END

sWG, sWAVE, sSL, sBK = 2, 3, 4, 5
sT0, sT1, sT2, sT3 = 6, 7, 8, 9
sVAL, sOVF = 10, 12
sK, sMAX = 14, 15
pX, pE, pSRC, pDST, pWA, pWB, pWC, pWU, pWV, pOUT, pDBG, pWS = 16, 18, 20, 22, 24, 26, 28, 30, 32, 34, 36, 38
rX, rW, rT, rREC, rDESC, rA, rB, rC = 40, 44, 48, 52, 56, 60, 64, 68
sMHI, sM7F0, sM7FF, sTINY, sPERM, sNL2E, sMIN, sBASE = 72, 73, 74, 75, 76, 77, 78, 79
sMSK = 80
sVAL2 = 80
sST, rST = 96, 98
sSL64, sSPIN, sTILE, sXS = 0, 1, 100, 101
sTAG = 32
sPEND = 33
rFLG, rDBG = rB, rC

def srd(a, r, p, nbytes, add=None):
    if add is None:
        a(f"s_mov_b32 {s(r)}, {s(p)}")
        a(f"s_and_b32 {s(r+1)}, {s(p+1)}, 0xffff")
    else:
        a(f"s_add_u32 {s(r)}, {s(p)}, {add}")
        a(f"s_addc_u32 {s(r+1)}, {s(p+1)}, 0")
        a(f"s_and_b32 {s(r+1)}, {s(r+1)}, 0xffff")
    a(f"s_mov_b32 {s(r+2)}, {hx(nbytes)}")
    a(f"s_mov_b32 {s(r+3)}, 0x20000")

def stamp(a, idx, vt, wave=0, clk=False):
    if not STAMPS: return
    if opt("clk") and idx in (12, 13, 14) and not clk: return
    if clk and not opt("clk"): return
    l = a.uid("ST")
    if wave is not None and wave >= 0:
        a(f"s_cmp_lg_u32 {s(sWAVE)}, {wave}")
        a(f"s_cbranch_scc1 {l}")
    a(f"s_memrealtime {s(sST,2)}" if not clk else f"s_memtime {s(sST,2)}")
    a(f"s_waitcnt lgkmcnt(0)")
    a(f"s_mov_b64 {s(rST,2)}, exec")
    a(f"s_mov_b64 exec, 1")
    a(f"v_mov_b32 {v(vt)}, {s(sST)}")
    a(f"v_mov_b32 {v(vt+1)}, {s(sST+1)}")
    a(f"s_lshl_b32 {s(sST)}, {s(sWG)}, 8")
    if wave is None:
        a(f"s_lshl_b32 {s(sST+1)}, {s(sWAVE)}, 3")
        a(f"s_add_u32 {s(sST)}, {s(sST)}, {s(sST+1)}")
    a(f"s_add_u32 {s(sST)}, {s(sST)}, {WS_STAMP + idx*8}")
    a(f"v_mov_b32 {v(vt+2)}, {s(sST)}")
    a(f"global_store_dwordx2 {v(vt+2)}, {v(vt,2)}, {s(pWS,2)}")
    a(f"s_mov_b64 exec, {s(rST,2)}")
    a(f"{l}:")

def scan64(a, r):
    for sh in (1, 2, 4, 8):
        a("s_nop 1")
        a(f"v_add_u32_dpp {v(r)}, {v(r)}, {v(r)} row_shr:{sh} row_mask:0xf bank_mask:0xf")
    a("s_nop 1")
    a(f"v_add_u32_dpp {v(r)}, {v(r)}, {v(r)} row_bcast:15 row_mask:0xa bank_mask:0xf")
    a("s_nop 1")
    a(f"v_add_u32_dpp {v(r)}, {v(r)}, {v(r)} row_bcast:31 row_mask:0xc bank_mask:0xf")

def tr_reads(a, mat, vTR, vWF):
    for t in range(8):
        for q in range(2):
            a(f"ds_read_b64_tr_b16 {v(vWF+4*t+2*q,2)}, {v(vTR)} offset:{mat*8192 + t*1024 + q*256}")

def mfma_chain(a, vWF, vX, vACC):
    for t in range(8):
        c = "0" if t == 0 else v(vACC, 16)
        a(f"v_mfma_f32_32x32x16_bf16 {v(vACC,16)}, {v(vWF+4*t,4)}, {v(vX+4*t,4)}, {c}")

def pack_chain(a, vIN, vOUT, vTMP, vBIG):
    G = range(4)
    m = lambda g: vTMP + g
    t = lambda g: vTMP + 4 + g
    sd = "dst_sel:DWORD dst_unused:UNUSED_PAD src0_sel:DWORD"
    for g in G: a(f"v_cvt_pk_bf16_f32 {v(vOUT+2*g)}, {v(vIN+4*g)}, {v(vIN+4*g+1)}")
    for g in G: a(f"v_med3_f32 {v(m(g))}, |{v(vIN+4*g+1)}|, {s(sTINY)}, {v(vBIG)}")
    for g in G: a(f"v_med3_f32 {v(t(g))}, |{v(vIN+4*g+2)}|, {s(sTINY)}, {v(vBIG)}")
    for g in G: a(f"v_add_u32 {v(m(g))}, 0x8000, {v(m(g))}")
    for g in G: a(f"v_add_u32 {v(t(g))}, 0x8000, {v(t(g))}")
    for g in G: a(f"v_sub_u32_sdwa {v(m(g))}, {v(m(g))}, {v(vOUT+2*g)} {sd} src1_sel:WORD_0")
    for g in G: a(f"v_bfi_b32 {v(vOUT+2*g)}, {s(sM7F0)}, {v(m(g))}, {v(vOUT+2*g)}")
    for g in G: a(f"v_med3_f32 {v(m(g))}, |{v(vIN+4*g+3)}|, {s(sTINY)}, {v(vBIG)}")
    for g in G: a(f"v_sub_u32_sdwa {v(t(g))}, {v(t(g))}, {v(vOUT+2*g)} {sd} src1_sel:WORD_1")
    for g in G: a(f"v_add_u32 {v(m(g))}, 0x8000, {v(m(g))}")
    for g in G: a(f"v_bfi_b32 {v(t(g))}, {s(sM7FF)}, {v(t(g))}, {v(vIN+4*g+2)}")
    for g in G: a(f"v_sub_u32_sdwa {v(m(g))}, {v(m(g))}, {v(t(g))} {sd} src1_sel:WORD_1")
    for g in G: a(f"v_perm_b32 {v(t(g))}, {v(vIN+4*g+3)}, {v(t(g))}, {s(sPERM)}")
    for g in G: a(f"v_bfi_b32 {v(vOUT+2*g+1)}, {s(sM7F0)}, {v(m(g))}, {v(t(g))}")

def pk(op, d, a0, b0, c0=None, sel=None):
    ops = f"{v(d,2)}, {a0}, {b0}" + (f", {c0}" if c0 else "")
    return f"v_pk_{op}_f32 {ops}" + (f" {sel}" if sel else "")

def gen(a):
    R = Regs(1, 128)
    vt = R.alloc(4)
    vLane = R.alloc(); vOne = R.alloc(); vJ16 = R.alloc(); vMISC = R.alloc()
    vWC = R.alloc(8)
    m0 = R.mark()
    vAUa = R.alloc(); vTR = R.alloc(); vBIG = R.alloc(); vXA = R.alloc(); vXV = R.alloc(); vXB = R.alloc()
    vO = R.alloc(16, 4); vTM = vO + 8
    vX = R.alloc(32, 4); vWF = R.alloc(32, 4); vACC = R.alloc(16, 4)

    def signal(off, ret=None):
        a("s_mov_b64 exec, 1")
        if ret is None: a(f"ds_add_u32 {v(vMISC)}, {v(vOne)} offset:{off}")
        else: a(f"ds_add_rtn_u32 {v(ret)}, {v(vMISC)}, {v(vOne)} offset:{off}")
        a("s_mov_b64 exec, -1")
    def spin(off, target, vtmp):
        l = a.uid("SP"); d = a.uid("SPD")
        a(f"s_mov_b32 {s(sSPIN)}, 0x400000")
        a(f"{l}:")
        a(f"ds_read_b32 {v(vtmp)}, {v(vMISC)} offset:{off}")
        a("s_waitcnt lgkmcnt(0)")
        a(f"v_readfirstlane_b32 {s(sT0)}, {v(vtmp)}")
        a(f"s_cmp_ge_u32 {s(sT0)}, {target}")
        a(f"s_cbranch_scc1 {d}")
        a("s_sleep 1")
        a(f"s_sub_u32 {s(sSPIN)}, {s(sSPIN)}, 1")
        a(f"s_cbranch_scc0 {l}")
        a(f"{d}:")
    def x_setup():
        a(f"v_lshrrev_b32 {v(vXV)}, 3, {v(vLane)}")
        a(f"v_lshrrev_b32 {v(vXA)}, 4, {v(vLane)}")
        a(f"v_and_b32 {v(vXB)}, 7, {v(vLane)}")
        a(f"v_xor_b32 {v(vXB)}, {v(vXB)}, {v(vXA)}")
        a(f"v_lshlrev_b32 {v(vXB)}, 4, {v(vXB)}")
        a(f"s_lshl_b32 {s(sT0)}, {s(sTILE)}, 5")
        a(f"v_add_u32 {v(vXV)}, {s(sT0)}, {v(vXV)}")
        a(f"s_mul_i32 {s(sT0)}, {s(sBK)}, {NPB*256}")
        a(f"v_lshl_add_u32 {v(vXA)}, {v(vXV)}, 8, {s(sT0)}")
        a(f"v_sub_u32 {v(vXV)}, {NPB-1}, {v(vXV)}")
    def x_round(rnd, vA):
        a(f"s_mov_b32 m0, {s(sXS)}")
        a(f"s_brev_b32 {s(sT1)}, 1")
        for i in range(4):
            a(f"v_xor_b32 {v(vA)}, {(i&1)*64}, {v(vXB)}")
            a(f"v_add_u32 {v(vA+1)}, {i*2048 + rnd*128}, {v(vXA)}")
            a(f"v_add_u32 {v(vA)}, {v(vA)}, {v(vA+1)}")
            a(f"v_subrev_u32 {v(vA+1)}, {8*i}, {v(vXV)}")
            a(f"v_and_or_b32 {v(vA)}, {v(vA+1)}, {s(sT1)}, {v(vA)}")
            a(f"buffer_load_dwordx4 {v(vA)}, {s(rX,4)}, 0 offen lds")
            if i < 3: a(f"s_add_u32 m0, m0, 1024")
    def tagpoll_issue(vA, vD, n, rr, step, sP):
        for i in range(4):
            l = a.uid("PA")
            a(f"s_mov_b64 exec, {s(sP+2*i,2)}")
            a(f"s_cbranch_execz {l}")
            a(f"s_mov_b32 {s(sT0)}, {i*step}")
            a(f"buffer_load_dword{'x2' if n == 2 else ''} {v(vD+n*i,n)}, {v(vA)}, {s(rr,4)}, {s(sT0)} offen sc1")
            a(f"{l}:")
        a("s_mov_b64 exec, -1")
    def tagpoll(vA, vD, n, rr, step, sP, issued=False, vtmp=None):
        l = a.uid("TP"); c = a.uid("TPC"); d = a.uid("TPD")
        a(f"s_mov_b32 {s(sSPIN)}, 0x100000")
        if issued: a(f"s_branch {c}")
        a(f"{l}:")
        tagpoll_issue(vA, vD, n, rr, step, sP)
        a(f"{c}:")
        a("s_waitcnt vmcnt(0)")
        for i in range(4):
            if vtmp is None:
                a(f"v_cmp_ne_u32 {s(sP+2*i,2)}, {s(sTAG)}, {v(vD+n*i+n-1)}")
            else:
                a(f"v_and_b32 {v(vtmp)}, -3, {v(vD+n*i+n-1)}")
                a(f"v_cmp_ne_u32 {s(sP+2*i,2)}, {s(sTAG)}, {v(vtmp)}")
        a(f"s_or_b64 {s(sT2,2)}, {s(sP,2)}, {s(sP+2,2)}")
        a(f"s_or_b64 vcc, {s(sP+4,2)}, {s(sP+6,2)}")
        a(f"s_or_b64 vcc, vcc, {s(sT2,2)}")
        a(f"s_cbranch_vccz {d}")
        a(f"s_sleep {SLP}")
        a(f"s_sub_u32 {s(sSPIN)}, {s(sSPIN)}, 1")
        a(f"s_cbranch_scc0 {l}")
        a(f"{d}:")

    a.raw(f".globl {KNAME}")
    a.raw(".p2align 8")
    a.raw(f".type {KNAME},@function")
    a.raw(f"{KNAME}:")
    a(f"s_cmp_ge_u32 s2, {NWG}")
    a(f"s_cbranch_scc1 K_END")
    a("s_load_dwordx16 s[16:31], s[0:1], 0")
    a("s_load_dwordx8 s[32:39], s[0:1], 64")
    a(f"v_lshrrev_b32 v1, 6, v0")
    a(f"s_and_b32 {s(sSL)}, s2, 3")
    a(f"v_readfirstlane_b32 {s(sWAVE)}, v1")
    a(f"s_lshr_b32 {s(sBK)}, s2, 2")
    a(f"v_and_b32 {v(vLane)}, 63, v0")
    a(f"v_mov_b32 {v(vOne)}, 1")
    a(f"v_mov_b32 {v(vMISC)}, {L_MISC}")
    nz = (L_ZEND - L_Z) // 4
    a(f"v_lshlrev_b32 {v(vt)}, 2, v0")
    a(f"v_add_u32 {v(vt)}, {L_Z}, {v(vt)}")
    a(f"v_mov_b32 {v(vt+1)}, 0")
    a(f"v_cmp_gt_u32 vcc, {nz}, v0")
    a("s_mov_b64 exec, vcc")
    a(f"ds_write_b32 {v(vt)}, {v(vt+1)}")
    a("s_mov_b64 exec, -1")
    a(f"v_and_b32 {v(vJ16)}, 3, v0")
    a(f"v_lshlrev_b32 {v(vJ16)}, 4, {v(vJ16)}")
    a(f"s_sub_u32 {s(sTILE)}, {s(sWAVE)}, 4")
    a(f"s_cselect_b32 {s(sTILE)}, 12, {s(sTILE)}")
    a(f"s_mul_i32 {s(sXS)}, {s(sTILE)}, {32*AUS}")
    a(f"s_add_u32 {s(sXS)}, {s(sXS)}, {L_AU}")
    x_setup()
    a("s_waitcnt lgkmcnt(0)")
    a(f"s_lshl_b32 {s(sSL64)}, {s(sSL)}, 6")
    stamp(a, 0, vACC)
    srd(a, rX, pX, N*256)
    a(f"s_cmp_ge_u32 {s(sWAVE)}, 4")
    a("s_cbranch_scc1 K_G0")
    vD8 = vX; vS8 = vX + 8; vE4 = vX + 16; vRK = vX + 20; vKY = vWF; vRP = vWF + 8; vCN = vWF + 24; vEX = vWF + 26
    a("s_setprio 3")
    a(f"s_or_b32 {s(sT0)}, s2, {s(sWAVE)}")
    a("s_cbranch_scc1 K_NOTAG")
    a(f"s_memrealtime {s(sT2,2)}")
    a("s_waitcnt lgkmcnt(0)")
    a(f"s_lshl_b32 {s(sT2)}, {s(sT2)}, 2")
    a(f"s_or_b32 {s(sT2)}, {s(sT2)}, 1")
    a(f"v_mov_b32 {v(vt)}, {s(sT2)}")
    a("s_mov_b64 exec, 1")
    a(f"global_store_dword {v(vt+1)}, {v(vt)}, {s(pDBG,2)} sc1")
    a("s_mov_b64 exec, -1")
    a("K_NOTAG:")
    a(f"s_cmp_eq_u32 {s(sWAVE)}, 1")
    a(f"s_cselect_b32 {s(rW)}, {s(pWV)}, {s(pWB)}")
    a(f"s_cselect_b32 {s(rW+1)}, {s(pWV+1)}, {s(pWB+1)}")
    a(f"s_cmp_eq_u32 {s(sWAVE)}, 2")
    a(f"s_cselect_b32 {s(rW)}, {s(pWA)}, {s(rW)}")
    a(f"s_cselect_b32 {s(rW+1)}, {s(pWA+1)}, {s(rW+1)}")
    a(f"s_cmp_eq_u32 {s(sWAVE)}, 3")
    a(f"s_cselect_b32 {s(rW)}, {s(pWU)}, {s(rW)}")
    a(f"s_cselect_b32 {s(rW+1)}, {s(pWU+1)}, {s(rW+1)}")
    a(f"s_and_b32 {s(rW+1)}, {s(rW+1)}, 0xffff")
    a(f"s_mov_b32 {s(rW+2)}, {128*256}")
    a(f"s_mov_b32 {s(rW+3)}, 0x20000")
    srd(a, rA, pDST, E*4); srd(a, rB, pSRC, E*4); srd(a, rC, pE, E*2)
    a(f"s_mul_i32 {s(sT0)}, s2, {CH}")
    a(f"v_lshl_add_u32 {v(vt)}, v0, 2, {s(sT0)}")
    a(f"v_add_u32 {v(vt+1)}, {CH//2}, {v(vt)}")
    a(f"s_mov_b32 {s(sT1)}, {E}")
    a(f"v_cmp_gt_u32 vcc, {CH//8}, v0")
    a(f"v_cmp_gt_u32 {s(sVAL,2)}, {s(sT1)}, {v(vt)}")
    a(f"v_cmp_gt_u32 {s(sVAL2,2)}, {s(sT1)}, {v(vt+1)}")
    a(f"v_lshlrev_b32 {v(vt+2)}, 2, {v(vt)}")
    a(f"v_lshlrev_b32 {v(vt+3)}, 1, {v(vt)}")
    a(f"s_and_b64 {s(sVAL,2)}, {s(sVAL,2)}, vcc")
    a(f"s_and_b64 {s(sVAL2,2)}, {s(sVAL2,2)}, vcc")
    a("s_mov_b64 exec, vcc")
    a(f"buffer_load_dwordx4 {v(vD8,4)}, {v(vt+2)}, {s(rA,4)}, 0 offen")
    a(f"buffer_load_dwordx4 {v(vD8+4,4)}, {v(vt+2)}, {s(rA,4)}, 0 offen offset:{CH*2}")
    a(f"buffer_load_dwordx4 {v(vS8,4)}, {v(vt+2)}, {s(rB,4)}, 0 offen")
    a(f"buffer_load_dwordx4 {v(vS8+4,4)}, {v(vt+2)}, {s(rB,4)}, 0 offen offset:{CH*2}")
    a(f"buffer_load_dwordx2 {v(vE4,2)}, {v(vt+3)}, {s(rC,4)}, 0 offen")
    a(f"buffer_load_dwordx2 {v(vE4+2,2)}, {v(vt+3)}, {s(rC,4)}, 0 offen offset:{CH}")
    a("s_mov_b64 exec, -1")
    a(f"v_lshrrev_b32 {v(vt)}, 2, {v(vLane)}")
    a(f"v_lshl_add_u32 {v(vt)}, {v(vt)}, 8, {v(vJ16)}")
    a(f"s_lshl_b32 {s(sT0)}, {s(sWAVE)}, 13")
    a(f"s_add_u32 m0, {s(sT0)}, {L_WL}")
    a(f"s_mov_b32 {s(sT1)}, {s(sSL64)}")
    for i in range(8):
        a(f"buffer_load_dwordx4 {v(vt)}, {s(rW,4)}, {s(sT1)} offen lds")
        if i < 7:
            a(f"s_add_u32 m0, m0, 1024")
            a(f"s_add_u32 {s(sT1)}, {s(sT1)}, 4096")
    a("s_branch K_C0")
    a("K_G0:")
    pass
    a("K_C0:")
    srd(a, rC, pWC, 256)
    a(f"buffer_load_dwordx4 {v(vWC,4)}, {v(vJ16)}, {s(rC,4)}, {s(sSL64)} offen")
    a("s_barrier")
    if True:
        a(f"s_cmp_lt_u32 {s(sWAVE)}, 4")
        a("s_cbranch_scc1 K_C1")
        x_round(0, vACC)
        a("K_C1:")
    a(f"s_mov_b32 {s(sMHI)}, 0xffff0000")
    a(f"s_mov_b32 {s(sM7F0)}, 0x7fff0000")
    a(f"s_mov_b32 {s(sM7FF)}, 0x7fffffff")
    a(f"s_mov_b32 {s(sTINY)}, 0x00800000")
    a(f"s_mov_b32 {s(sPERM)}, 0x07060302")
    a(f"s_mov_b32 {s(sNL2E)}, {hx(fbits(-LOG2E))}")
    a(f"s_mov_b32 {s(sPEND)}, 0")
    a(f"s_mul_i32 {s(sT0)}, {s(sSL)}, {TS}")
    srd(a, rT, pWS, N*128, s(sT0))
    srd(a, rREC, pWS, NWG*CHB, WS_REC)
    srd(a, rDESC, pWS, 131072, WS_DESC)
    srd(a, rA, pOUT, N*256)
    srd(a, rDBG, pDBG, 256)
    srd(a, rFLG, pWS, 32768, WS_FLAG)
    a(f"s_cmp_ge_u32 {s(sWAVE)}, 4")
    a("s_cbranch_scc1 K_GEMM")
    a("s_waitcnt vmcnt(9)")
    stamp(a, 1, vACC, 1)
    a(f"s_mov_b32 {s(sT0)}, {L_CNTA}")
    a(f"s_mov_b32 {s(sT1)}, {-NPB & 0xffffffff}")
    for i in range(8):
        a(f"v_mul_u32_u24 {v(vt)}, {MAGIC}, {v(vD8+i)}")
        a(f"v_lshrrev_b32 {v(vt)}, 24, {v(vt)}")
        a(f"v_mad_i32_i24 {v(vD8+i)}, {v(vt)}, {s(sT1)}, {v(vD8+i)}")
        a(f"v_and_b32 {v(vKY+i)}, 62, {v(vt)}")
        a(f"v_and_b32 {v(vt)}, 1, {v(vt)}")
        a(f"v_lshlrev_b32 {v(vKY+i)}, 1, {v(vKY+i)}")
        a(f"v_lshl_or_b32 {v(vKY+i)}, {v(vt)}, 7, {v(vKY+i)}")
        a(f"v_add_u32 {v(vRP+i)}, {s(sT0)}, {v(vKY+i)}")
        if i % 4 == 3:
            a(f"s_mov_b64 exec, {s(sVAL if i == 3 else sVAL2,2)}")
            for j in range(i - 3, i + 1):
                a(f"ds_add_rtn_u32 {v(vRK+j)}, {v(vRP+j)}, {v(vOne)}")
            a("s_mov_b64 exec, -1")
    a("s_waitcnt lgkmcnt(0)")
    signal(M_HS1)
    for i in range(8):
        e = vE4 + i // 2
        if i % 2 == 0: a(f"v_lshl_or_b32 {v(vRP+i)}, {v(e)}, 16, {v(vS8+i)}")
        else:          a(f"v_and_or_b32 {v(vRP+i)}, {v(e)}, {s(sMHI)}, {v(vS8+i)}")
        a(f"v_and_b32 {v(vt)}, 0x100, {v(vD8+i)}")
        a(f"v_lshl_or_b32 {v(vRP+i)}, {v(vt)}, 7, {v(vRP+i)}")
        a(f"v_mov_b32 {v(vRP+8+i)}, {v(vD8+i)}")
    a(f"v_lshlrev_b32 {v(vt)}, 2, {v(vLane)}")
    a(f"v_add_u32 {v(vt+1)}, {L_CNTA}, {v(vt)}")
    spin(M_HS1, 4, vt+2)
    a(f"ds_read_b32 {v(vCN)}, {v(vt+1)}")
    a("s_waitcnt lgkmcnt(0)")
    a(f"v_add_u32 {v(vEX+1)}, 1, {v(vCN)}")
    a(f"v_and_b32 {v(vEX+1)}, -2, {v(vEX+1)}")
    a(f"v_mov_b32 {v(vEX)}, {v(vEX+1)}")
    scan64(a, vEX)
    a(f"v_sub_u32 {v(vEX)}, {v(vEX)}, {v(vEX+1)}")
    for i in range(8):
        a(f"ds_bpermute_b32 {v(vD8+i)}, {v(vKY+i)}, {v(vEX)}")
    a(f"v_lshl_or_b32 {v(vCN)}, {v(vCN)}, 16, {v(vEX)}")
    for i in range(8):
        a(f"s_waitcnt lgkmcnt({7-i})")
        a(f"v_add_u32 {v(vD8+i)}, {v(vD8+i)}, {v(vRK+i)}")
        a(f"v_lshlrev_b32 {v(vRK+i)}, 2, {v(vD8+i)}")
    for i in range(8):
        if i % 4 == 0: a(f"s_mov_b64 exec, {s(sVAL if i == 0 else sVAL2,2)}")
        a(f"ds_write_b32 {v(vRK+i)}, {v(vRP+i)} offset:{L_STAGE}")
        a(f"ds_write_b8 {v(vD8+i)}, {v(vRP+8+i)} offset:{L_STAGE + LOC0}")
    a("s_mov_b64 exec, -1")
    a("s_waitcnt lgkmcnt(0)")
    signal(M_HS2)
    a("s_waitcnt vmcnt(1)" if not STAMPS else "s_waitcnt vmcnt(0)")
    signal(M_WRDY)
    a(f"v_lshlrev_b32 {v(vt+1)}, 4, v0")
    spin(M_HS2, 4, vt+3)
    for i in range(2):
        a(f"ds_read_b128 {v(vX+4*i,4)}, {v(vt+1)} offset:{L_STAGE + i*4096}")
    a(f"s_lshl_b32 {s(sT0)}, s2, 13")
    a(f"s_add_u32 {s(sT1)}, {s(sT0)}, 4096")
    a("s_waitcnt lgkmcnt(1)")
    a(f"buffer_store_dwordx4 {v(vX,4)}, {v(vt+1)}, {s(rREC,4)}, {s(sT0)} offen sc1")
    a("s_waitcnt lgkmcnt(0)")
    a(f"buffer_store_dwordx4 {v(vX+4,4)}, {v(vt+1)}, {s(rREC,4)}, {s(sT1)} offen sc1")
    a(f"s_cmp_lg_u32 {s(sWAVE)}, 0")
    a("s_cbranch_scc1 K_NOLAST")
    x_round(0, vACC)
    a("K_NOLAST:")
    stamp(a, 2, vACC, 1)
    a(f"v_mov_b32 {v(vt+2)}, 0")
    a(f"s_mov_b32 {s(sSPIN)}, 0x100000")
    a("K_GOL:")
    a(f"buffer_load_dword {v(vCN+1)}, {v(vt+2)}, {s(rDBG,4)}, 0 offen sc1")
    a("s_waitcnt vmcnt(0)")
    a(f"v_readfirstlane_b32 {s(sTAG)}, {v(vCN+1)}")
    a(f"s_cmp_lg_u32 {s(sTAG)}, 0")
    a("s_cbranch_scc1 K_GOD")
    a(f"s_sub_u32 {s(sSPIN)}, {s(sSPIN)}, 1")
    a("s_cbranch_scc0 K_GOL")
    a("K_GOD:")
    a(f"ds_write_b32 {v(vMISC)}, {v(vCN+1)} offset:{M_TAG}")
    signal(M_HS3, vt+3)
    a(f"v_lshlrev_b32 {v(vt+1)}, 3, {v(vLane)}")
    a(f"s_lshl_b32 {s(sT1)}, s2, 9")
    a("s_waitcnt lgkmcnt(0)")
    a(f"v_readfirstlane_b32 {s(sT0)}, {v(vt+3)}")
    a(f"s_cmp_lg_u32 {s(sT0)}, 3")
    a("s_cbranch_scc1 K_NOFLAGA")
    a(f"buffer_store_dwordx2 {v(vCN,2)}, {v(vt+1)}, {s(rDESC,4)}, {s(sT1)} offen sc1")
    stamp(a, 3, vACC, -1)
    a("K_NOFLAGA:")
    a(f"s_cmp_eq_u32 {s(sWAVE)}, 0")
    a("s_cbranch_scc1 K_GEMM")
    a(f"s_cmp_lg_u32 {s(sWAVE)}, 3")
    a("s_cbranch_scc1 K_RECS")
    spin(M_XL, int(opt("pollat", 1)), vt+1)
    stamp(a, 4, vACC, 3)
    a(f"s_lshr_b32 {s(sT0)}, {s(sBK)}, 1")
    a(f"s_and_b32 {s(sT1)}, {s(sBK)}, 1")
    a(f"s_lshl_b32 {s(sT1)}, {s(sT1)}, 5")
    a(f"s_or_b32 {s(sT0)}, {s(sT0)}, {s(sT1)}")
    a(f"s_lshl_b32 {s(sT0)}, {s(sT0)}, 3")
    a(f"v_lshlrev_b32 {v(vt+1)}, 9, {v(vLane)}")
    a(f"v_add_u32 {v(vt+1)}, {s(sT0)}, {v(vt+1)}")
    sP = 16
    for i in range(4): a(f"s_mov_b64 {s(sP+2*i,2)}, -1")
    tagpoll(vt+1, vX, 2, rDESC, 32768, sP)
    a(f"v_add_u32 {v(vt+1)}, {L_DESC}, {v(vt)}")
    for i in range(4):
        a(f"ds_write_b32 {v(vt+1)}, {v(vX+2*i)} offset:{i*256}")
    a("s_waitcnt lgkmcnt(0)")
    signal(M_DRDY)
    stamp(a, 5, vACC, 3)
    a("s_branch K_RECS")
    a("K_GEMM:")
    vFA = vO
    a(f"v_and_b32 {v(vt)}, 31, {v(vLane)}")
    a(f"v_lshrrev_b32 {v(vt+2)}, 5, {v(vLane)}")
    a(f"v_lshl_add_u32 {v(vt+1)}, {v(vt)}, 7, {s(sXS)}")
    a(f"v_bfe_u32 {v(vt+3)}, {v(vLane)}, 1, 3")
    a(f"v_xor_b32 {v(vt+3)}, {v(vt+3)}, {v(vt+2)}")
    a(f"v_lshlrev_b32 {v(vt+3)}, 4, {v(vt+3)}")
    for t in range(4):
        a(f"v_xor_b32 {v(vFA+t)}, {t*32}, {v(vt+3)}")
        a(f"v_add_u32 {v(vFA+t)}, {v(vFA+t)}, {v(vt+1)}")
    a(f"v_mul_u32_u24 {v(vAUa)}, {AUS}, {v(vt)}")
    a(f"v_lshl_add_u32 {v(vAUa)}, {v(vt+2)}, 4, {v(vAUa)}")
    a(f"v_add_u32 {v(vAUa)}, {s(sXS)}, {v(vAUa)}")
    a(f"v_lshlrev_b32 {v(vTR)}, 3, {v(vt+2)}")
    a(f"v_bfe_u32 {v(vt)}, {v(vLane)}, 2, 2")
    a(f"v_add_u32 {v(vTR)}, {v(vTR)}, {v(vt)}")
    a(f"v_lshlrev_b32 {v(vTR)}, 6, {v(vTR)}")
    a(f"v_bfe_u32 {v(vt)}, {v(vLane)}, 4, 1")
    a(f"v_lshl_add_u32 {v(vTR)}, {v(vt)}, 5, {v(vTR)}")
    a(f"v_and_b32 {v(vt)}, 1, {v(vLane)}")
    a(f"v_lshl_add_u32 {v(vTR)}, {v(vt)}, 4, {v(vTR)}")
    a(f"v_and_b32 {v(vt)}, 2, {v(vLane)}")
    a(f"v_lshl_add_u32 {v(vTR)}, {v(vt)}, 2, {v(vTR)}")
    a(f"v_add_u32 {v(vTR)}, {L_WL}, {v(vTR)}")
    a(f"v_mov_b32 {v(vBIG)}, 0x7f7f7fff")
    a("s_waitcnt vmcnt(0)")
    for t in range(4):
        a(f"ds_read_b128 {v(vX+4*t,4)}, {v(vFA+t)}")
    if not opt("xearly"): spin(M_HS3, int(opt("xat", 4)), vt)
    else: a("s_waitcnt lgkmcnt(0)")
    x_round(1, vACC)
    spin(M_WRDY, 4, vt)
    tr_reads(a, 0, vTR, vWF)
    a("s_waitcnt vmcnt(0)")
    signal(M_XL)
    stamp(a, 6, vACC, 4)
    stamp(a, 7, vACC, 15)
    a("s_setprio 3")
    for t in range(4):
        a(f"ds_read_b128 {v(vX+16+4*t,4)}, {v(vFA+t)}")
    a("s_waitcnt lgkmcnt(0)")
    def packT():
        if opt("exact"):
            pack_chain(a, vACC, vO, vTM, vBIG)
        else:
            for g in range(4): a(f"v_add_u32 {v(vACC+4*g)}, 0x8000, {v(vACC+4*g)}")
            for g in range(4): a(f"v_perm_b32 {v(vO+2*g+1)}, {v(vACC+4*g+3)}, {v(vACC+4*g+2)}, {s(sPERM)}")
            for g in range(4): a(f"v_perm_b32 {v(vO+2*g)}, {v(vACC+4*g+1)}, {v(vACC+4*g)}, {s(sPERM)}")
    def scale():
        for r in range(16): a(f"v_mul_f32 {v(vACC+r)}, {s(sNL2E)}, {v(vACC+r)}")
    def rcheck(ab, lim, word):
        l = a.uid("RC")
        m = (lambda r: f"|{v(r)}|") if ab else v
        a(f"v_max3_f32 {v(vt)}, {m(vACC)}, {m(vACC+1)}, {m(vACC+2)}")
        a(f"v_max3_f32 {v(vt+1)}, {m(vACC+3)}, {m(vACC+4)}, {m(vACC+5)}")
        for r in range(6, 14, 4):
            a(f"v_max3_f32 {v(vt)}, {v(vt)}, {m(vACC+r)}, {m(vACC+r+1)}")
            a(f"v_max3_f32 {v(vt+1)}, {v(vt+1)}, {m(vACC+r+2)}, {m(vACC+r+3)}")
        a(f"v_max3_f32 {v(vt)}, {v(vt)}, {m(vACC+14)}, {m(vACC+15)}")
        a(f"v_max_f32 {v(vt)}, {v(vt)}, {v(vt+1)}")
        a(f"v_cmp_lt_f32 vcc, {hx(fbits(lim))}, {v(vt)}")
        a(f"s_cbranch_vccz {l}")
        a(f"ds_write_b32 {v(vMISC)}, {v(vOne)} offset:{word}")
        if word == M_BAD:
            a(f"v_bfrev_b32 {v(vt)}, 1")
            a(f"v_or_b32 {v(vt)}, {v(vt)}, {v(vBIG)}")
            for r in range(16): a(f"v_med3_f32 {v(vACC+r)}, {v(vACC+r)}, {v(vt)}, {v(vBIG)}")
        a("s_waitcnt lgkmcnt(0)")
        a(f"{l}:")
    for mat in range(2):
        mfma_chain(a, vWF, vX, vACC)
        tr_reads(a, mat + 1, vTR, vWF)
        if mat == 0: scale()
        if mat == 0: rcheck(True, LIM_B, M_BAD)
        else: rcheck(True, LIM_V, M_BAD)
        packT()
        a(f"ds_write_b128 {v(vAUa)}, {v(vO,4)} offset:{mat*64}")
        a(f"ds_write_b128 {v(vAUa)}, {v(vO+4,4)} offset:{mat*64+32}")
        if mat == 0: a("s_waitcnt lgkmcnt(2)")
    a(f"v_lshrrev_b32 {v(vt)}, 3, {v(vLane)}")
    a(f"v_and_b32 {v(vt+1)}, 7, {v(vLane)}")
    a(f"v_lshlrev_b32 {v(vt+1)}, 4, {v(vt+1)}")
    a(f"v_mul_u32_u24 {v(vt+2)}, {AUS}, {v(vt)}")
    a(f"v_add3_u32 {v(vt+2)}, {v(vt+2)}, {v(vt+1)}, {s(sXS)}")
    a(f"v_lshrrev_b32 {v(vt)}, 1, {v(vXA)}")
    a(f"v_add_u32 {v(vt)}, {v(vt)}, {v(vt+1)}")
    a(f"s_brev_b32 {s(sT1)}, 1")
    vPF = vXB
    a(f"s_mul_i32 {s(sT0)}, {s(sBK)}, {NPB}")
    a(f"s_lshl_b32 {s(sT2)}, {s(sTILE)}, 5")
    a(f"s_add_u32 {s(sT0)}, {s(sT0)}, {s(sT2)}")
    a(f"v_add_lshl_u32 {v(vPF)}, {v(vLane)}, {s(sT0)}, 7")
    a(f"s_sub_u32 {s(sT2)}, {NPB-1}, {s(sT2)}")
    a(f"v_sub_u32 {v(vt+3)}, {s(sT2)}, {v(vLane)}")
    a(f"v_and_or_b32 {v(vPF)}, {v(vt+3)}, {s(sT1)}, {v(vPF)}")
    a("s_waitcnt lgkmcnt(0)")
    for i in range(4):
        a(f"ds_read_b128 {v(vO+4*i,4)}, {v(vt+2)} offset:{i*8*AUS}")
    for i in range(4):
        a(f"v_subrev_u32 {v(vt+3)}, {8*i}, {v(vXV)}")
        a(f"v_and_or_b32 {v(vt+1)}, {v(vt+3)}, {s(sT1)}, {v(vt)}")
        a(f"s_waitcnt lgkmcnt({3-i})")
        a(f"buffer_store_dwordx4 {v(vO+4*i,4)}, {v(vt+1)}, {s(rT,4)}, 0 offen offset:{i*1024} sc1")
    stamp(a, 8, vt, 15)
    a("s_setprio 0")
    for mat in (2, 3):
        mfma_chain(a, vWF, vX, vACC)
        if mat == 2:
            tr_reads(a, 3, vTR, vWF)
            scale()
            rcheck(True, LIM_A, M_SLOW)
        else:
            a("s_nop 11")
        for d in range(8): a(f"v_cvt_pk_bf16_f32 {v(vO+8*(mat-2)+d)}, {v(vACC+2*d)}, {v(vACC+2*d+1)}")
        a(f"ds_write_b128 {v(vAUa)}, {v(vO+8*(mat-2),4)} offset:{(mat-2)*64}")
        a(f"ds_write_b128 {v(vAUa)}, {v(vO+8*(mat-2)+4,4)} offset:{(mat-2)*64+32}")
        if mat == 2: a("s_waitcnt lgkmcnt(2)")
    a(f"s_mov_b32 {s(sPEND)}, 1")
    a("K_RECS:")
    a("s_setprio 0")
    vDS = vX; vRC = vX + 4; vRC2 = vX + 12; vLB = vX + 20; vLB2 = vX + 24; vLO = vX + 28; vRK8 = vX + 36; vAD = vX + 44; vI = vX + 52; vRB = vX + 56; vDA = vX + 57; vRB0 = vX + 58; vDA0 = vX + 59; vLA0 = vX + 60; vLAb = vX + 61; vEM = vX + 62
    sM2 = 16
    for d in range(4): a(f"v_and_b32 {v(vWC+4+d)}, {s(sMHI)}, {v(vWC+d)}")
    for d in range(4): a(f"v_lshlrev_b32 {v(vWC+d)}, 16, {v(vWC+d)}")
    for d in range(8): a(f"v_mul_f32 {v(vWC+d)}, {s(sNL2E)}, {v(vWC+d)}")
    a(f"v_lshrrev_b32 {v(vt)}, 4, {v(vLane)}")
    a(f"v_and_b32 {v(vI)}, 15, {v(vLane)}")
    a(f"v_lshlrev_b32 {v(vRB0)}, 13, {v(vt)}")
    a(f"v_lshlrev_b32 {v(vI)}, 1, {v(vI)}")
    a(f"v_add_u32 {v(vLA0)}, {v(vRB0)}, {v(vI)}")
    a(f"v_add_u32 {v(vLA0)}, {LOC0}, {v(vLA0)}")
    a(f"v_lshl_add_u32 {v(vRB0)}, {v(vI)}, 2, {v(vRB0)}")
    a(f"v_add_u32 {v(vI+1)}, 1, {v(vI)}")
    a(f"v_add_u32 {v(vI+2)}, 32, {v(vI)}")
    a(f"v_add_u32 {v(vI+3)}, 33, {v(vI)}")
    a(f"v_lshlrev_b32 {v(vDA0)}, 2, {v(vt)}")
    a(f"v_add_u32 {v(vDA0)}, {L_DESC}, {v(vDA0)}")
    a(f"v_mov_b32 {v(vt+1)}, 4")
    a(f"v_mov_b32 {v(vt+2)}, {STRIDE}")
    a(f"s_mov_b64 {s(sOVF,2)}, 0")
    a(f"v_mov_b32 {v(vEM)}, 0")
    def report():
        l = a.uid("RP")
        a(f"s_mov_b32 {s(sPEND)}, 0")
        signal(M_GCNT, vt)
        a("s_waitcnt lgkmcnt(0)")
        a(f"v_readfirstlane_b32 {s(sT0)}, {v(vt)}")
        a(f"s_cmp_lg_u32 {s(sT0)}, 12")
        a(f"s_cbranch_scc1 {l}")
        a(f"ds_read_b32 {v(vt)}, {v(vMISC)} offset:{M_TAG}")
        a(f"ds_read_b32 {v(vEM+1)}, {v(vMISC)} offset:{M_BAD}")
        a(f"s_lshl_b32 {s(sT0)}, s2, 7")
        a(f"v_mov_b32 {v(vt+3)}, {s(sT0)}")
        a("s_mov_b64 exec, 1")
        a("s_waitcnt lgkmcnt(0)")
        a(f"v_lshl_or_b32 {v(vt)}, {v(vEM+1)}, 1, {v(vt)}")
        a(f"buffer_store_dword {v(vt)}, {v(vt+3)}, {s(rFLG,4)}, 0 offen sc1")
        a("s_mov_b64 exec, -1")
        stamp(a, 9, vACC, -1)
        a(f"{l}:")
    if True:
        a(f"s_cmp_eq_u32 {s(sPEND)}, 0")
        a("s_cbranch_scc1 K_NOREP0")
        a("s_waitcnt vmcnt(0)")
        spin(M_HS3, 4, vt+3)
        report()
        if opt("ownpf"):
            a("s_mov_b32 exec_hi, 0")
            a(f"buffer_load_dword v127, {v(vPF)}, {s(rT,4)}, 0 offen")
            a("s_mov_b64 exec, -1")
            R.hi = 128
        a("K_NOREP0:")
    spin(M_DRDY, 1, vt+3)
    a("K_BATCH:")
    signal(M_BQ, vt)
    a("s_waitcnt lgkmcnt(0)")
    a(f"v_readfirstlane_b32 {s(sK)}, {v(vt)}")
    a(f"s_cmp_ge_u32 {s(sK)}, 16")
    a("s_cbranch_scc1 K_BDONE")
    a(f"s_lshl_b32 {s(sT0)}, {s(sK)}, 6")
    a(f"v_add_u32 {v(vDA)}, {s(sT0)}, {v(vDA0)}")
    a(f"ds_read2_b32 {v(vDS,2)}, {v(vDA)} offset0:0 offset1:4")
    a(f"ds_read2_b32 {v(vDS+2,2)}, {v(vDA)} offset0:8 offset1:12")
    a(f"s_mul_i32 {s(sT0)}, {s(sK)}, {16*CHB}")
    a(f"v_add_u32 {v(vRB)}, {s(sT0)}, {v(vRB0)}")
    a(f"v_add_u32 {v(vLAb)}, {s(sT0)}, {v(vLA0)}")
    a(f"v_mov_b32 {v(vt+3)}, 64")
    a("s_waitcnt lgkmcnt(0)")
    SD = "src0_sel:DWORD src1_sel:WORD_1"
    for it in range(4):
        a(f"v_mad_u32_u16 {v(vAD+it)}, {v(vDS+it)}, {v(vt+1)}, {v(vRB)}")
        a(f"v_mad_u32_u16 {v(vAD+4+it)}, {v(vDS+it)}, {v(vOne)}, {v(vLAb)}")
        a(f"v_cmp_lt_u32_sdwa {s(sM2+4*it,2)}, {v(vI+2)}, {v(vDS+it)} {SD}")
    for it in range(4):
        l = a.uid("S2")
        a(f"s_cmp_eq_u64 {s(sM2+4*it,2)}, 0")
        a(f"s_cbranch_scc1 {l}")
        a(f"s_mov_b32 {s(sT0)}, {it*4*CHB}")
        a(f"buffer_load_dwordx2 {v(vRC2+2*it,2)}, {v(vAD+it)}, {s(rREC,4)}, {s(sT0)} offen offset:128")
        a(f"buffer_load_ushort {v(vLB2+it)}, {v(vAD+4+it)}, {s(rREC,4)}, {s(sT0)} offen offset:32")
        a(f"{l}:")
    for it in range(4):
        a(f"s_mov_b32 {s(sT0)}, {it*4*CHB}")
        a(f"buffer_load_dwordx2 {v(vRC+2*it,2)}, {v(vAD+it)}, {s(rREC,4)}, {s(sT0)} offen")
        a(f"buffer_load_ushort {v(vLB+it)}, {v(vAD+4+it)}, {s(rREC,4)}, {s(sT0)} offen")
    for it in range(4):
        a(f"v_cmp_lt_u32_sdwa {s(sMSK+4*it,2)}, {v(vI)}, {v(vDS+it)} {SD}")
        a(f"v_cmp_lt_u32_sdwa {s(sMSK+4*it+2,2)}, {v(vI+1)}, {v(vDS+it)} {SD}")
        a(f"v_cmp_lt_u32_sdwa {s(sM2+4*it+2,2)}, {v(vI+3)}, {v(vDS+it)} {SD}")
        a(f"v_cmp_lt_u32_sdwa vcc, {v(vt+3)}, {v(vDS+it)} {SD}")
        a(f"s_or_b64 {s(sOVF,2)}, {s(sOVF,2)}, vcc")
    a("s_waitcnt vmcnt(0)")
    def proc(rc, lb, msk, js):
        a(f"s_mov_b32 {s(sT0)}, {L_CNT}")
        for j in js:
            a(f"v_bfe_u32 {v(vLO+j)}, {v(lb+j//2)}, {8*(j&1)}, 8")
            a(f"v_bfe_u32 {v(vAD+j)}, {v(rc+j)}, 15, 1")
            a(f"v_lshl_or_b32 {v(vLO+j)}, {v(vAD+j)}, 8, {v(vLO+j)}")
            a(f"v_lshl_add_u32 {v(vAD+j)}, {v(vLO+j)}, 2, {s(sT0)}")
        for j in js:
            a(f"s_mov_b64 exec, {s(msk+2*j,2)}")
            a(f"ds_add_rtn_u32 {v(vRK8+j)}, {v(vAD+j)}, {v(vOne)}")
        a("s_mov_b64 exec, -1")
        for j in js:
            a(f"v_and_b32 {v(rc+j)}, {opt('fakesrc', '0xffff7fff')}, {v(rc+j)}")
        for n, j in enumerate(js):
            a(f"s_waitcnt lgkmcnt({len(js)-1-n})")
            a(f"v_mad_u32_u24 {v(vAD+j)}, {v(vLO+j)}, {v(vt+2)}, {v(vRK8+j)}")
            a(f"v_cmp_gt_u32 vcc, {STRIDE}, {v(vRK8+j)}")
            a(f"v_lshlrev_b32 {v(vAD+j)}, 2, {v(vAD+j)}")
            a(f"s_andn2_b64 {s(sT2,2)}, {s(msk+2*j,2)}, vcc")
            a(f"s_and_b64 {s(msk+2*j,2)}, {s(msk+2*j,2)}, vcc")
            a(f"s_or_b64 {s(sOVF,2)}, {s(sOVF,2)}, {s(sT2,2)}")
        for j in js:
            a(f"s_mov_b64 exec, {s(msk+2*j,2)}")
            a(f"ds_write_b32 {v(vAD+j)}, {v(rc+j)} offset:{L_LIST}")
            a(f"v_max_f32 {v(vEM)}, |{v(rc+j)}|, {v(vEM)}")
        a("s_mov_b64 exec, -1")
    proc(vRC, vLB, sMSK, list(range(8)))
    for it in range(4):
        l = a.uid("P2")
        a(f"s_cmp_eq_u64 {s(sM2+4*it,2)}, 0")
        a(f"s_cbranch_scc1 {l}")
        proc(vRC2, vLB2, sM2, [2*it, 2*it+1])
        a(f"{l}:")
    a("s_branch K_BATCH")
    a("K_BDONE:")
    a(f"v_max3_f32 {v(vt)}, |{v(vWC)}|, |{v(vWC+1)}|, |{v(vWC+2)}|")
    a(f"v_max3_f32 {v(vt)}, {v(vt)}, |{v(vWC+3)}|, |{v(vWC+4)}|")
    a(f"v_max3_f32 {v(vt)}, {v(vt)}, |{v(vWC+5)}|, |{v(vWC+6)}|")
    a(f"v_max_f32 {v(vt)}, |{v(vWC+7)}|, {v(vt)}")
    a("s_nop 1")
    a(f"v_max_f32_dpp {v(vt)}, {v(vt)}, {v(vt)} quad_perm:[1,0,3,2] row_mask:0xf bank_mask:0xf")
    a("s_nop 1")
    a(f"v_max_f32_dpp {v(vt)}, {v(vt)}, {v(vt)} quad_perm:[2,3,0,1] row_mask:0xf bank_mask:0xf")
    a(f"v_mul_f32 {v(vt)}, {v(vt)}, {v(vEM)}")
    a(f"v_cmp_lt_f32 vcc, {hx(fbits(LIM_E))}, {v(vt)}")
    a(f"s_or_b64 vcc, vcc, {s(sOVF,2)}")
    if opt("forceslow"): a("s_mov_b64 vcc, -1")
    a("s_cbranch_vccz K_NOSLOW")
    a(f"ds_write_b32 {v(vMISC)}, {v(vOne)} offset:{M_SLOW}")
    a("s_waitcnt lgkmcnt(0)")
    a("K_NOSLOW:")
    stamp(a, 10, vACC, 2)
    stamp(a, 11, vACC, 8)
    a("s_barrier")
    stamp(a, 12, vACC)
    vDG = vX; vBN = vX + 1; vR2 = vX + 2; vBC = vX + 3; vBE = vX + 4; vPD = vX + 8
    a(f"s_cmp_lg_u32 {s(sWAVE)}, 15")
    a("s_cbranch_scc1 K_NOPI")
    a(f"ds_read_b32 {v(vt)}, {v(vMISC)} offset:{M_TAG}")
    a(f"v_lshlrev_b32 {v(vt+1)}, 7, {v(vLane)}")
    for i in range(4): a(f"s_mov_b64 {s(sP+2*i,2)}, -1")
    tagpoll_issue(vt+1, vPD, 1, rFLG, 8192, sP)
    a("s_waitcnt lgkmcnt(0)")
    a(f"v_readfirstlane_b32 {s(sTAG)}, {v(vt)}")
    a("K_NOPI:")
    a(f"s_movk_i32 {s(sT0)}, {NLOC}")
    a(f"v_cmp_gt_u32 {s(sVAL,2)}, {s(sT0)}, v0")
    a(f"v_lshlrev_b32 {v(vt)}, 2, v0")
    a(f"v_add_u32 {v(vt)}, {L_CNT}, {v(vt)}")
    a(f"s_mov_b64 exec, {s(sVAL,2)}")
    a(f"ds_read_b32 {v(vDG)}, {v(vt)}")
    a("s_waitcnt lgkmcnt(0)")
    a(f"v_min_u32 {v(vDG)}, {STRIDE}, {v(vDG)}")
    a(f"v_sub_u32 {v(vBN)}, 63, {v(vDG)}")
    a(f"v_lshlrev_b32 {v(vBN)}, 2, {v(vBN)}")
    a(f"v_add_u32 {v(vt)}, {L_BINS}, {v(vBN)}")
    a(f"ds_add_rtn_u32 {v(vR2)}, {v(vt)}, {v(vOne)}")
    a("s_mov_b64 exec, -1")
    a("s_waitcnt lgkmcnt(0)")
    a("s_barrier")
    a(f"s_cmp_lg_u32 {s(sWAVE)}, 15")
    a("s_cbranch_scc1 K_NOPOLLB")
    tagpoll(vt+1, vPD, 1, rFLG, 8192, sP, issued=True, vtmp=vt+2)
    a(f"v_or3_b32 {v(vt+2)}, {v(vPD)}, {v(vPD+1)}, {v(vPD+2)}")
    a(f"v_or_b32 {v(vt+2)}, {v(vt+2)}, {v(vPD+3)}")
    a(f"v_and_b32 {v(vt+2)}, 2, {v(vt+2)}")
    a(f"v_cmp_ne_u32 vcc, 0, {v(vt+2)}")
    a("s_cbranch_vccz K_NOPOLLB")
    a(f"ds_write_b32 {v(vMISC)}, {v(vOne)} offset:{M_SLOW}")
    a("s_waitcnt lgkmcnt(0)")
    stamp(a, 13, vACC, 15)
    a("K_NOPOLLB:")
    a(f"s_cmp_ge_u32 {s(sWAVE)}, {(NLOC+63)//64}")
    a("s_cbranch_scc1 K_NOPERM")
    a(f"v_lshlrev_b32 {v(vt)}, 2, {v(vLane)}")
    a(f"v_add_u32 {v(vt)}, {L_BINS}, {v(vt)}")
    a(f"ds_read_b32 {v(vBC)}, {v(vt)}")
    a("s_waitcnt lgkmcnt(0)")
    a(f"v_mov_b32 {v(vBE)}, {v(vBC)}")
    scan64(a, vBE)
    a(f"v_sub_u32 {v(vBE)}, {v(vBE)}, {v(vBC)}")
    a(f"ds_bpermute_b32 {v(vt)}, {v(vBN)}, {v(vBE)}")
    a(f"v_lshl_or_b32 {v(vDG)}, {v(vDG)}, 16, v0")
    a("s_waitcnt lgkmcnt(0)")
    a(f"v_add_lshl_u32 {v(vt)}, {v(vt)}, {v(vR2)}, 2")
    a(f"v_add_u32 {v(vt)}, {L_PERM}, {v(vt)}")
    a(f"s_mov_b64 exec, {s(sVAL,2)}")
    a(f"ds_write_b32 {v(vt)}, {v(vDG)}")
    a("s_mov_b64 exec, -1")
    a("s_waitcnt lgkmcnt(0)")
    a("K_NOPERM:")
    stamp(a, 14, vACC)
    a("s_barrier")
    stamp(a, 15, vACC)
    stamp(a, 13, vACC, 7, True)
    NB = int(opt("nbuf", 3))
    R2 = Regs(m0, 127)
    vDEN = R2.alloc(8); vNUM = R2.alloc(8); vEA = R2.alloc(8)
    vBUF = [R2.alloc(16, 4) for _ in range(NB)]
    vLa = R2.alloc(4); vLb = R2.alloc(4); vUa = R2.alloc(4); vUb = R2.alloc(4)
    vE = [R2.alloc(2) for _ in range(NB)]
    vREC = R2.alloc(2); vADR = vt
    vU = R2.alloc(4, 4); vXS = R2.alloc(4, 4)
    vINFO = vt + 2; vDEG = vt + 3; vLA = R2.alloc(); vOFF = R2.alloc()
    vPB = 0; vAUB = vLane; vOB = 1
    R.hi = max(R.hi, R2.hi)
    sSGN = sBASE; s128 = sVAL; sKG = sVAL + 1
    a(f"s_brev_b32 {s(sSGN)}, 1")
    a(f"s_movk_i32 {s(s128)}, 128")
    a(f"s_mul_i32 {s(sT0)}, {s(sBK)}, {NPB*256}")
    a(f"v_add_u32 {v(vOB)}, {s(sT0)}, {v(vJ16)}")
    a(f"v_lshrrev_b32 {v(vPB)}, 2, {v(vLane)}")
    a(f"v_lshlrev_b32 {v(vPB)}, 2, {v(vPB)}")
    a(f"v_add_u32 {v(vPB)}, {L_PERM}, {v(vPB)}")
    a(f"v_add_u32 {v(vAUB)}, {L_AU}, {v(vJ16)}")
    sSLOW = sOVF
    a(f"ds_read_b32 {v(vINFO)}, {v(vMISC)} offset:{M_SLOW}")
    a("s_waitcnt lgkmcnt(0)")
    a(f"v_readfirstlane_b32 {s(sSLOW)}, {v(vINFO)}")
    a(f"s_cmp_lg_u32 {s(sSLOW)}, 0")
    a("s_cbranch_scc1 K_SLOW")
    if PRIO: a("s_setprio 2")

    def G(nb, rec=None):
        B = vBUF[nb]
        rec = vREC if rec is None else rec
        a(f"v_mad_u32_u16 {v(vADR)}, {v(rec)}, {s(s128)}, {v(vJ16)}")
        a(f"v_mad_u32_u16 {v(vADR+1)}, {v(rec+1)}, {s(s128)}, {v(vJ16)}")
        a(f"v_and_b32 {v(vE[nb])}, {s(sMHI)}, {v(rec)}")
        a(f"v_and_b32 {v(vE[nb]+1)}, {s(sMHI)}, {v(rec+1)}")
        a(f"buffer_load_dwordx4 {v(B,4)}, {v(vADR)}, {s(rT,4)}, 0 offen")
        a(f"buffer_load_dwordx4 {v(B+4,4)}, {v(vADR)}, {s(rT,4)}, 0 offen offset:64")
        a(f"buffer_load_dwordx4 {v(B+8,4)}, {v(vADR+1)}, {s(rT,4)}, 0 offen")
        a(f"buffer_load_dwordx4 {v(B+12,4)}, {v(vADR+1)}, {s(rT,4)}, 0 offen offset:64")

    def front(B, L, e, hi):
        sel = "op_sel:[1,0,0] op_sel_hi:[1,1,1]" if hi else "op_sel_hi:[0,1,1]"
        prs = [L, L+2, B, B+2]
        a(f"v_lshlrev_b64 {v(L,2)}, 16, {v(B,2)}")
        a(f"v_lshlrev_b64 {v(L+2,2)}, 16, {v(B+2,2)}")
        for i in (2, 3, 0, 1):
            a(pk("fma", prs[i], v(e,2), v(vWC+2*i,2), v(prs[i],2), sel))
        for i in (2, 3, 0, 1):
            a(f"v_exp_f32 {v(prs[i])}, {v(prs[i])}")
            a(f"v_exp_f32 {v(prs[i]+1)}, {v(prs[i]+1)}")
        return prs
    def front2(prs):
        for i in (2, 3, 0, 1):
            a(pk("fma", prs[i], v(vEA+2*i,2), v(prs[i],2), "1.0", "op_sel_hi:[1,1,0]"))

    def Cpair(nb):
        if opt("novalu"): return
        B = vBUF[nb]
        Ba, Va, Bb, Vb = B, B+4, B+8, B+12
        pa = front(Ba, vLa, vE[nb], False)
        pb = front(Bb, vLb, vE[nb], True)
        a(f"v_lshlrev_b64 {v(vUa,2)}, 16, {v(Va,2)}")
        a(f"v_lshlrev_b64 {v(vUa+2,2)}, 16, {v(Va+2,2)}")
        a(f"v_lshlrev_b64 {v(vUb,2)}, 16, {v(Vb,2)}")
        a(f"v_lshlrev_b64 {v(vUb+2,2)}, 16, {v(Vb+2,2)}")
        front2(pa)
        front2(pb)
        qa = [vUa, vUa+2, Va, Va+2]; qb = [vUb, vUb+2, Vb, Vb+2]
        for i in range(4): a(pk("mul", qa[i], v(qa[i],2), v(pb[i],2)))
        for i in range(4): a(pk("fma", qa[i], v(qb[i],2), v(pa[i],2), v(qa[i],2)))
        for i in range(4): a(pk("mul", qb[i], v(pa[i],2), v(pb[i],2)))
        for i in range(4): a(pk("add", pa[i], v(pa[i],2), v(pb[i],2)))
        for i in range(4):
            a(f"v_rcp_f32 {v(qb[i])}, {v(qb[i])}")
            a(f"v_rcp_f32 {v(qb[i]+1)}, {v(qb[i]+1)}")
        for i in range(4): a(pk("fma", vNUM+2*i, v(qa[i],2), v(qb[i],2), v(vNUM+2*i,2)))
        for i in range(4): a(pk("fma", vDEN+2*i, v(pa[i],2), v(qb[i],2), v(vDEN+2*i,2)))

    def Csingle(nb, hi):
        if opt("novalu"): return
        B = vBUF[nb] + (8 if hi else 0)
        V = B + 4
        p = front(B, vLa, vE[nb], hi)
        a(f"v_lshlrev_b64 {v(vUa,2)}, 16, {v(V,2)}")
        front2(p)
        a(f"v_lshlrev_b64 {v(vUa+2,2)}, 16, {v(V+2,2)}")
        for i in (2, 3, 0, 1):
            a(f"v_rcp_f32 {v(p[i])}, {v(p[i])}")
            a(f"v_rcp_f32 {v(p[i]+1)}, {v(p[i]+1)}")
        q = [vUa, vUa+2, V, V+2]
        for i in (2, 3, 0, 1): a(pk("add", vDEN+2*i, v(vDEN+2*i,2), v(p[i],2)))
        for i in (2, 3, 0, 1): a(pk("fma", vNUM+2*i, v(q[i],2), v(p[i],2), v(vNUM+2*i,2)))

    DEP = NB - 1
    a("K_GROUP:")
    signal(M_Q, vINFO)
    a("s_waitcnt lgkmcnt(0)")
    a(f"v_readfirstlane_b32 {s(sT0)}, {v(vINFO)}")
    a(f"s_cmp_ge_u32 {s(sT0)}, {NGRP}")
    a("s_cbranch_scc1 K_DONE")
    a(f"s_lshl_b32 {s(sT0)}, {s(sT0)}, 6")
    a(f"v_add_u32 {v(vINFO)}, {s(sT0)}, {v(vPB)}")
    a(f"ds_read_b32 {v(vINFO)}, {v(vINFO)}")
    a("s_waitcnt lgkmcnt(0)")
    a(f"v_lshrrev_b32 {v(vDEG)}, 16, {v(vINFO)}")
    a(f"v_and_b32 {v(vINFO)}, 0xffff, {v(vINFO)}")
    a(f"v_mul_u32_u24 {v(vLA)}, {STRIDE*4}, {v(vINFO)}")
    for j in range(DEP):
        a(f"ds_read2_b32 {v(vLa+2*j,2)}, {v(vLA)} offset0:{2*j} offset1:{2*j+1}")
    a(f"ds_read2_b32 {v(vREC,2)}, {v(vLA)} offset0:{2*DEP} offset1:{2*DEP+1}")
    a(f"v_mul_u32_u24 {v(vADR)}, {AUS}, {v(vINFO)}")
    a(f"v_add_u32 {v(vADR)}, {v(vADR)}, {v(vAUB)}")
    a(f"ds_read_b128 {v(vEA,4)}, {v(vADR)}")
    a(f"ds_read_b128 {v(vU,4)}, {v(vADR)} offset:64")
    a(f"v_readlane_b32 {s(sMAX)}, {v(vDEG)}, 0")
    a(f"v_readlane_b32 {s(sMIN)}, {v(vDEG)}, 63")
    a(f"v_lshl_add_u32 {v(vOFF)}, {v(vINFO)}, 8, {v(vOB)}")
    a(f"v_sub_u32 {v(vINFO)}, {NPB-1}, {v(vINFO)}")
    a(f"v_and_or_b32 {v(vOFF)}, {v(vINFO)}, {s(sSGN)}, {v(vOFF)}")
    a(f"buffer_load_dwordx4 {v(vXS,4)}, {v(vOFF)}, {s(rX,4)}, {s(sSL64)} offen")
    for j in range(DEP):
        a(f"s_waitcnt lgkmcnt({DEP - j + 2})")
        G(j, vLa + 2*j)
    a("s_waitcnt lgkmcnt(1)")
    for d in range(4): a(f"v_and_b32 {v(vEA+4+d)}, {s(sMHI)}, {v(vEA+d)}")
    for d in range(4): a(f"v_lshlrev_b32 {v(vEA+d)}, 16, {v(vEA+d)}")
    for d in (4, 5, 6, 7, 0, 1, 2, 3): a(f"v_exp_f32 {v(vEA+d)}, {v(vEA+d)}")
    a(f"v_mov_b32 {v(vDEN)}, {hx(fbits(1e-6))}")
    a(f"v_mov_b32 {v(vDEN+1)}, {v(vDEN)}")
    for d in range(2, 8, 2): a(f"v_mov_b64 {v(vDEN+d,2)}, {v(vDEN,2)}")
    for d in range(0, 8, 2): a(f"v_mov_b64 {v(vNUM+d,2)}, 0")
    a(f"s_mov_b32 {s(sK)}, 0")
    a(f"s_sub_u32 {s(sKG)}, {s(sMAX)}, {2*DEP}")
    a(f"s_cmp_eq_u32 {s(sMAX)}, 0")
    a("s_cbranch_scc1 K_EPI0")
    a("K_LOOP:")
    for cur in range(NB):
        a(f"s_cmp_lt_i32 {s(sK)}, {s(sKG)}")
        a(f"s_cbranch_scc0 K_NOG{cur}")
        a("s_waitcnt lgkmcnt(0)")
        G((cur + DEP) % NB)
        a(f"ds_read2_b32 {v(vREC,2)}, {v(vLA)} offset0:{2*(DEP+1+cur)} offset1:{2*(DEP+1+cur)+1}")
        if cur == NB - 1: a(f"v_add_u32 {v(vLA)}, {8*NB}, {v(vLA)}")
        a(f"s_waitcnt vmcnt({4*DEP})")
        a(f"K_GOT{cur}:")
        a(f"s_add_u32 {s(sT0)}, {s(sK)}, 2")
        a(f"s_cmp_le_u32 {s(sT0)}, {s(sMIN)}")
        a(f"s_cbranch_scc0 K_TAIL{cur}")
        Cpair(cur)
        a(f"K_NEXT{cur}:")
        a(f"s_add_u32 {s(sK)}, {s(sK)}, 2")
        a(f"s_cmp_ge_u32 {s(sK)}, {s(sMAX)}")
        a("s_cbranch_scc1 K_EPI" if cur < NB - 1 else "s_cbranch_scc0 K_LOOP")
    a("K_EPI:")
    a("s_mov_b64 exec, -1")
    a("s_waitcnt lgkmcnt(0)")
    for d in range(8): a(f"v_rcp_f32 {v(vDEN+d)}, {v(vDEN+d)}")
    Uu = vUa; Xu = vLa
    assert vLb == vLa + 4 and vUb == vUa + 4
    for d in range(4):
        a(f"v_lshlrev_b32 {v(Uu+d)}, 16, {v(vU+d)}")
        a(f"v_and_b32 {v(Uu+4+d)}, {s(sMHI)}, {v(vU+d)}")
        a(f"v_lshlrev_b32 {v(Xu+d)}, 16, {v(vXS+d)}")
        a(f"v_and_b32 {v(Xu+4+d)}, {s(sMHI)}, {v(vXS+d)}")
    for i in range(4): a(pk("fma", Uu+2*i, v(vNUM+2*i,2), v(vDEN+2*i,2), v(Uu+2*i,2)))
    for d in range(8): a(f"v_max_f32 {v(Uu+d)}, 0, {v(Uu+d)}")
    for i in range(4): a(pk("add", Uu+2*i, v(Uu+2*i,2), v(Xu+2*i,2)))
    for d in range(4): a(f"v_cvt_pk_bf16_f32 {v(vNUM+d)}, {v(Uu+d)}, {v(Uu+4+d)}")
    a(f"buffer_store_dwordx4 {v(vNUM,4)}, {v(vOFF)}, {s(rA,4)}, {s(sSL64)} offen{OSC}")
    if PRIO: a("s_setprio 0")
    a(f"s_cmp_eq_u32 {s(sSLOW)}, 0")
    a("s_cbranch_scc1 K_GROUP")
    a("s_branch K_SNEXT")
    a("K_EPI0:")
    a("s_waitcnt vmcnt(0)")
    a("s_branch K_EPI")
    for cur in range(NB):
        a(f"K_NOG{cur}:")
        if DEP >= 2:
            a(f"s_add_u32 {s(sT0)}, {s(sK)}, 2")
            a(f"s_cmp_lt_u32 {s(sT0)}, {s(sMAX)}")
            a(f"s_cbranch_scc0 K_NOGZ{cur}")
            a("s_waitcnt vmcnt(4)")
            a(f"s_branch K_GOT{cur}")
            a(f"K_NOGZ{cur}:")
        a("s_waitcnt vmcnt(0)")
        a(f"s_branch K_GOT{cur}")
        a(f"K_TAIL{cur}:")
        a(f"v_cmpx_lt_u32 vcc, {s(sK)}, {v(vDEG)}")
        Csingle(cur, False)
        a(f"s_add_u32 {s(sT0)}, {s(sK)}, 1")
        a(f"s_cmp_ge_u32 {s(sT0)}, {s(sMAX)}")
        a("s_cbranch_scc1 K_EPI")
        a(f"v_cmpx_lt_u32 vcc, {s(sT0)}, {v(vDEG)}")
        Csingle(cur, True)
        a(f"s_branch K_NEXT{cur}")
    sG, sSEG, sLEN, sBS, sI, sN, sR, sL = 16, 17, 18, 19, 20, 21, 22, 23
    vSR, vSLc, vSI, vSA = vBUF[1], vBUF[1] + 1, vBUF[1] + 2, vBUF[1] + 3
    vMY = vLA
    B = vBUF[0]
    a("K_SLOW:")
    a(f"s_mov_b32 {s(sG)}, {s(sWAVE)}")
    a(f"v_mbcnt_lo_u32_b32 {v(vSI)}, -1, 0")
    a(f"v_mbcnt_hi_u32_b32 {v(vSI)}, -1, {v(vSI)}")
    a("K_SGRP:")
    a(f"s_lshl_b32 {s(sT0)}, {s(sG)}, 4")
    a(f"v_lshrrev_b32 {v(vMY)}, 2, {v(vSI)}")
    a(f"v_add_u32 {v(vMY)}, {s(sT0)}, {v(vMY)}")
    a(f"v_mul_u32_u24 {v(vADR)}, {AUS}, {v(vMY)}")
    a(f"v_add_u32 {v(vADR)}, {v(vADR)}, {v(vAUB)}")
    a(f"ds_read_b128 {v(vEA,4)}, {v(vADR)}")
    a(f"ds_read_b128 {v(vU,4)}, {v(vADR)} offset:64")
    a(f"v_lshl_add_u32 {v(vOFF)}, {v(vMY)}, 8, {v(vOB)}")
    a(f"v_sub_u32 {v(vINFO)}, {NPB-1}, {v(vMY)}")
    a(f"v_and_or_b32 {v(vOFF)}, {v(vINFO)}, {s(sSGN)}, {v(vOFF)}")
    a(f"buffer_load_dwordx4 {v(vXS,4)}, {v(vOFF)}, {s(rX,4)}, {s(sSL64)} offen")
    for d in range(8):
        a(f"v_mov_b32 {v(vDEN+d)}, {hx(fbits(1e-6))}")
        a(f"v_mov_b32 {v(vNUM+d)}, 0")
    a("s_waitcnt lgkmcnt(0)")
    for d in range(4): a(f"v_and_b32 {v(vEA+4+d)}, {s(sMHI)}, {v(vEA+d)}")
    for d in range(4): a(f"v_lshlrev_b32 {v(vEA+d)}, 16, {v(vEA+d)}")
    a(f"s_mov_b32 {s(sSEG)}, 0")
    a("K_SSEG:")
    a(f"s_lshl_b32 {s(sT0)}, {s(sSEG)}, 2")
    a(f"s_add_u32 {s(sT0)}, {s(sT0)}, {L_DESC}")
    a(f"v_mov_b32 {v(vSA)}, {s(sT0)}")
    a(f"ds_read_b32 {v(vSA)}, {v(vSA)}")
    a("s_waitcnt lgkmcnt(0)")
    a(f"v_readfirstlane_b32 {s(sBS)}, {v(vSA)}")
    a(f"s_lshr_b32 {s(sLEN)}, {s(sBS)}, 16")
    a(f"s_and_b32 {s(sBS)}, {s(sBS)}, 0xffff")
    a("K_SBLK:")
    a(f"s_cmp_eq_u32 {s(sLEN)}, 0")
    a("s_cbranch_scc1 K_SSEGN")
    a(f"s_lshl_b32 {s(sT0)}, {s(sSEG)}, 13")
    a(f"v_add_u32 {v(vSA)}, {s(sBS)}, {v(vSI)}")
    a(f"v_lshlrev_b32 {v(vADR)}, 2, {v(vSA)}")
    a(f"v_add_u32 {v(vSA)}, {LOC0}, {v(vSA)}")
    a(f"buffer_load_dword {v(vSR)}, {v(vADR)}, {s(rREC,4)}, {s(sT0)} offen")
    a(f"buffer_load_ubyte {v(vSLc)}, {v(vSA)}, {s(rREC,4)}, {s(sT0)} offen")
    a(f"s_min_u32 {s(sN)}, {s(sLEN)}, 64")
    a(f"s_sub_u32 {s(sLEN)}, {s(sLEN)}, {s(sN)}")
    a(f"s_add_u32 {s(sBS)}, {s(sBS)}, 64")
    a(f"s_mov_b32 {s(sI)}, 0")
    a("s_waitcnt vmcnt(0)")
    a(f"v_bfe_u32 {v(vSA)}, {v(vSR)}, 15, 1")
    a(f"v_lshl_or_b32 {v(vSLc)}, {v(vSA)}, 8, {v(vSLc)}")
    a("s_nop 0")
    a("K_SREC:")
    a(f"v_readlane_b32 {s(sL)}, {v(vSLc)}, {s(sI)}")
    a(f"s_lshr_b32 {s(sT0)}, {s(sL)}, 4")
    a(f"s_cmp_lg_u32 {s(sT0)}, {s(sG)}")
    a("s_cbranch_scc1 K_SRECN")
    a(f"v_readlane_b32 {s(sR)}, {v(vSR)}, {s(sI)}")
    a(f"s_and_b32 {s(sT0)}, {s(sR)}, 0x7fff")
    a(f"s_lshl_b32 {s(sT0)}, {s(sT0)}, 7")
    a(f"s_and_b32 {s(sR)}, {s(sR)}, {s(sMHI)}")
    a(f"v_add_u32 {v(vADR)}, {s(sT0)}, {v(vJ16)}")
    a(f"v_mov_b32 {v(vE[0])}, {s(sR)}")
    a(f"v_cmpx_eq_u32 vcc, {s(sL)}, {v(vMY)}")
    a(f"buffer_load_dwordx4 {v(B,4)}, {v(vADR)}, {s(rT,4)}, 0 offen")
    a(f"buffer_load_dwordx4 {v(B+4,4)}, {v(vADR)}, {s(rT,4)}, 0 offen offset:64")
    a("s_waitcnt vmcnt(0)")
    prs = [vLa, vLa+2, B, B+2]; q = [vUa, vUa+2, B+4, B+6]
    a(f"v_lshlrev_b64 {v(vLa,2)}, 16, {v(B,2)}")
    a(f"v_lshlrev_b64 {v(vLa+2,2)}, 16, {v(B+2,2)}")
    a(f"v_lshlrev_b64 {v(vUa,2)}, 16, {v(B+4,2)}")
    a(f"v_lshlrev_b64 {v(vUa+2,2)}, 16, {v(B+6,2)}")
    for i in range(4): a(pk("add", prs[i], v(prs[i],2), v(vEA+2*i,2)))
    for i in range(4): a(pk("fma", prs[i], v(vE[0],2), v(vWC+2*i,2), v(prs[i],2), "op_sel_hi:[0,1,1]"))
    for i in range(4):
        a(f"v_exp_f32 {v(prs[i])}, {v(prs[i])}")
        a(f"v_exp_f32 {v(prs[i]+1)}, {v(prs[i]+1)}")
    for i in range(4): a(pk("add", prs[i], v(prs[i],2), "1.0", None, "op_sel_hi:[1,0]"))
    for i in range(4):
        a(f"v_rcp_f32 {v(prs[i])}, {v(prs[i])}")
        a(f"v_rcp_f32 {v(prs[i]+1)}, {v(prs[i]+1)}")
    for i in range(4): a(pk("add", vDEN+2*i, v(vDEN+2*i,2), v(prs[i],2)))
    for i in range(4): a(pk("fma", vNUM+2*i, v(q[i],2), v(prs[i],2), v(vNUM+2*i,2)))
    a("s_mov_b64 exec, -1")
    a("K_SRECN:")
    a(f"s_add_u32 {s(sI)}, {s(sI)}, 1")
    a(f"s_cmp_lt_u32 {s(sI)}, {s(sN)}")
    a("s_cbranch_scc1 K_SREC")
    a("s_branch K_SBLK")
    a("K_SSEGN:")
    a(f"s_add_u32 {s(sSEG)}, {s(sSEG)}, 1")
    a(f"s_cmp_lt_u32 {s(sSEG)}, 256")
    a("s_cbranch_scc1 K_SSEG")
    a("s_branch K_EPI0")
    a("K_SNEXT:")
    a(f"s_add_u32 {s(sG)}, {s(sG)}, 16")
    a(f"s_cmp_lt_u32 {s(sG)}, {NGRP}")
    a("s_cbranch_scc1 K_SGRP")
    a("K_DONE:")
    stamp(a, 16, vLa, None)
    stamp(a, 14, vLa, 7, True)
    a("K_END:")
    a("s_endpgm")
    return R.hi

def main():
    a = Asm()
    hdr = open("standalone__edge_featured_mpnn_gatedgcn__graph.s.ref").read().split("\n")
    for l in hdr:
        if l.startswith("; Override"): break
        a.raw(l)
    if ASLIST:
        a.raw(f"; @launch kernel={KNAME} grid=({NWG},1,1) block=(1024,1,1) lds={L_END}")
    else:
        a.raw(f"; @launch grid=({NWG},1,1) block=(1024,1,1) lds={L_END}")
    a.raw('.amdgcn_target "amdgcn-amd-amdhsa--gfx950"')
    a.raw(".text")
    nv = gen(a)
    a.raw('.section .rodata,"a"')
    a.raw(".p2align 6")
    a.raw(f".amdhsa_kernel {KNAME}")
    a.raw(f"  .amdhsa_next_free_vgpr {nv}")
    a.raw(f"  .amdhsa_next_free_sgpr 102")
    a.raw(f"  .amdhsa_accum_offset {(nv+3)//4*4}")
    a.raw(f"  .amdhsa_group_segment_fixed_size 0")
    a.raw(f"  .amdhsa_kernarg_size 96")
    a.raw(f"  .amdhsa_user_sgpr_count 2")
    a.raw(f"  .amdhsa_user_sgpr_kernarg_segment_ptr 1")
    a.raw(f"  .amdhsa_system_sgpr_workgroup_id_x 1")
    a.raw(f".end_amdhsa_kernel")
    out = [x for x in sys.argv[1:] if not x.startswith("--")]
    open(out[0] if out else "out.s", "w").write(a.text())
    print("vgprs", nv, "lds", L_END, file=sys.stderr)

main()
```

```python
import sys, math
from asmlib import *

def opt(name, default=None):
    for x in sys.argv[1:]:
        if x == "--" + name: return True
        if x.startswith("--" + name + "="): return x.split("=", 1)[1]
    return default

KNAME = "standalone__edge_featured_mpnn_gatedgcn__graph_kernel"
N, E, D = 25000, 400000, 128
NWG = 256
CH = 1568
CHB = 8192
CAPR = 1632
LOC0 = CAPR * 4
TS = 25024 * 128
WS_T, WS_REC, WS_DESC, WS_STAMP, WS_FLAG = 0, 0x00D00000, 0x01100000, 0x01200000, 0x01300000
LOG2E = 1.4426950408889634
STRIDE = 41
NLOC = 400
NGRP = NLOC // 16
AUS = 144
NPB = 391
MAGIC = 42909
STAMPS = opt("stamps", False)
OSC = {"plain": "", "sc1": " sc1", "nt": " nt"}[opt("osc", "sc1")]
PRIO = not opt("noprio")
ASLIST = opt("aslist", False)
WSBASE = int(opt("wsbase", 0)) << 20
SLP = int(opt("sleep", 2))
RAWE = not opt("exacte")

L_LIST = 0
L_STAGE = 0
L_AU = NLOC * STRIDE * 4
L_WL = L_AU + 416 * AUS
L_Z = L_WL + 32768
L_CNT = L_Z
L_BINS = L_CNT + 416 * 4
L_CNTA = L_BINS + 256
L_MISC = L_CNTA + 256
M_Q, M_HS1, M_HS2, M_HS3, M_WRDY, M_XL, M_GCNT, M_DRDY, M_BQ, M_TAG, M_SLOW, M_BAD, M_RAW, M_BRDY = range(0, 56, 4)
LIM_A, LIM_B, LIM_E, LIM_V = 19.0, 19.0, 24.5, 2.0**60
L_ZEND = L_MISC + 64
L_PERM = L_ZEND
L_DESC = L_PERM + NLOC * 4
L_END = L_DESC + 1024
assert L_AU % 16 == 0 and L_WL % 16 == 0 and L_END <= 163840, L_END

sWG, sWAVE, sSL, sBK = 2, 3, 4, 5
sT0, sT1, sT2, sT3 = 6, 7, 8, 9
sVAL, sOVF = 10, 12
sK, sMAX = 14, 15
pX, pE, pSRC, pDST, pWA, pWB, pWC, pWU, pWV, pOUT, pDBG, pWS = 16, 18, 20, 22, 24, 26, 28, 30, 32, 34, 36, 38
rX, rW, rT, rREC, rDESC, rA, rB, rC = 40, 44, 48, 52, 56, 60, 64, 68
sMHI, sM7F0, sM7FF, sTINY, sPERM, sNL2E, sMIN, sBASE = 72, 73, 74, 75, 76, 77, 78, 79
sMSK = 80
sVAL2 = 80
sST, rST = 96, 98
sSL64, sSPIN, sTILE, sXS = 0, 1, 100, 101
sTAG = 32
sPEND = 33
rFLG, rDBG = rB, rC

def srd(a, r, p, nbytes, add=None):
    if add is None:
        a(f"s_mov_b32 {s(r)}, {s(p)}")
        a(f"s_and_b32 {s(r+1)}, {s(p+1)}, 0xffff")
    else:
        a(f"s_add_u32 {s(r)}, {s(p)}, {add}")
        a(f"s_addc_u32 {s(r+1)}, {s(p+1)}, 0")
        a(f"s_and_b32 {s(r+1)}, {s(r+1)}, 0xffff")
    a(f"s_mov_b32 {s(r+2)}, {hx(nbytes)}")
    a(f"s_mov_b32 {s(r+3)}, 0x20000")

def stamp(a, idx, vt, wave=0, clk=False):
    if not STAMPS: return
    l = a.uid("ST")
    if wave is not None and wave >= 0:
        a(f"s_cmp_lg_u32 {s(sWAVE)}, {wave}")
        a(f"s_cbranch_scc1 {l}")
    a(f"s_memrealtime {s(sST,2)}" if not clk else f"s_memtime {s(sST,2)}")
    a(f"s_waitcnt lgkmcnt(0)")
    a(f"s_mov_b64 {s(rST,2)}, exec")
    a(f"s_mov_b64 exec, 1")
    a(f"v_mov_b32 {v(vt)}, {s(sST)}")
    a(f"v_mov_b32 {v(vt+1)}, {s(sST+1)}")
    a(f"s_lshl_b32 {s(sST)}, {s(sWG)}, 8")
    if wave is None:
        a(f"s_lshl_b32 {s(sST+1)}, {s(sWAVE)}, 3")
        a(f"s_add_u32 {s(sST)}, {s(sST)}, {s(sST+1)}")
    a(f"s_add_u32 {s(sST)}, {s(sST)}, {WS_STAMP + idx*8 + (0x10000 if clk else 0)}")
    a(f"v_mov_b32 {v(vt+2)}, {s(sST)}")
    a(f"global_store_dwordx2 {v(vt+2)}, {v(vt,2)}, {s(pWS,2)}")
    a(f"s_mov_b64 exec, {s(rST,2)}")
    a(f"{l}:")

def scan64(a, r):
    for sh in (1, 2, 4, 8):
        a("s_nop 1")
        a(f"v_add_u32_dpp {v(r)}, {v(r)}, {v(r)} row_shr:{sh} row_mask:0xf bank_mask:0xf")
    a("s_nop 1")
    a(f"v_add_u32_dpp {v(r)}, {v(r)}, {v(r)} row_bcast:15 row_mask:0xa bank_mask:0xf")
    a("s_nop 1")
    a(f"v_add_u32_dpp {v(r)}, {v(r)}, {v(r)} row_bcast:31 row_mask:0xc bank_mask:0xf")

def tr_reads(a, mat, vTR, vWF):
    for t in range(8):
        for q in range(2):
            a(f"ds_read_b64_tr_b16 {v(vWF+4*t+2*q,2)}, {v(vTR)} offset:{mat*8192 + t*1024 + q*256}")

def mfma_chain(a, vWF, vX, vACC):
    for t in range(8):
        c = "0" if t == 0 else v(vACC, 16)
        a(f"v_mfma_f32_32x32x16_bf16 {v(vACC,16)}, {v(vWF+4*t,4)}, {v(vX+4*t,4)}, {c}")

def pack_chain(a, vIN, vOUT, vTMP, vBIG):
    G = range(4)
    m = lambda g: vTMP + g
    t = lambda g: vTMP + 4 + g
    sd = "dst_sel:DWORD dst_unused:UNUSED_PAD src0_sel:DWORD"
    for g in G: a(f"v_cvt_pk_bf16_f32 {v(vOUT+2*g)}, {v(vIN+4*g)}, {v(vIN+4*g+1)}")
    for g in G: a(f"v_med3_f32 {v(m(g))}, |{v(vIN+4*g+1)}|, {s(sTINY)}, {v(vBIG)}")
    for g in G: a(f"v_med3_f32 {v(t(g))}, |{v(vIN+4*g+2)}|, {s(sTINY)}, {v(vBIG)}")
    for g in G: a(f"v_add_u32 {v(m(g))}, 0x8000, {v(m(g))}")
    for g in G: a(f"v_add_u32 {v(t(g))}, 0x8000, {v(t(g))}")
    for g in G: a(f"v_sub_u32_sdwa {v(m(g))}, {v(m(g))}, {v(vOUT+2*g)} {sd} src1_sel:WORD_0")
    for g in G: a(f"v_bfi_b32 {v(vOUT+2*g)}, {s(sM7F0)}, {v(m(g))}, {v(vOUT+2*g)}")
    for g in G: a(f"v_med3_f32 {v(m(g))}, |{v(vIN+4*g+3)}|, {s(sTINY)}, {v(vBIG)}")
    for g in G: a(f"v_sub_u32_sdwa {v(t(g))}, {v(t(g))}, {v(vOUT+2*g)} {sd} src1_sel:WORD_1")
    for g in G: a(f"v_add_u32 {v(m(g))}, 0x8000, {v(m(g))}")
    for g in G: a(f"v_bfi_b32 {v(t(g))}, {s(sM7FF)}, {v(t(g))}, {v(vIN+4*g+2)}")
    for g in G: a(f"v_sub_u32_sdwa {v(m(g))}, {v(m(g))}, {v(t(g))} {sd} src1_sel:WORD_1")
    for g in G: a(f"v_perm_b32 {v(t(g))}, {v(vIN+4*g+3)}, {v(t(g))}, {s(sPERM)}")
    for g in G: a(f"v_bfi_b32 {v(vOUT+2*g+1)}, {s(sM7F0)}, {v(m(g))}, {v(t(g))}")

def pk(op, d, a0, b0, c0=None, sel=None):
    ops = f"{v(d,2)}, {a0}, {b0}" + (f", {c0}" if c0 else "")
    return f"v_pk_{op}_f32 {ops}" + (f" {sel}" if sel else "")

def gen(a):
    R = Regs(1, 128)
    vt = R.alloc(4)
    vLane = R.alloc(); vOne = R.alloc(); vJ16 = R.alloc(); vMISC = R.alloc()
    vWC = R.alloc(8)
    m0 = R.mark()
    vAUa = R.alloc(); vTR = R.alloc(); vBIG = R.alloc(); vXA = R.alloc(); vXV = R.alloc(); vXB = R.alloc(); vFA = R.alloc(4)
    vO = R.alloc(16, 4); vTM = vO + 8
    vX = R.alloc(32, 4); vWF = R.alloc(32, 4); vACC = R.alloc(16, 4)

    def signal(off, ret=None):
        a("s_mov_b64 exec, 1")
        if ret is None: a(f"ds_add_u32 {v(vMISC)}, {v(vOne)} offset:{off}")
        else: a(f"ds_add_rtn_u32 {v(ret)}, {v(vMISC)}, {v(vOne)} offset:{off}")
        a("s_mov_b64 exec, -1")
    def spin(off, target, vtmp):
        l = a.uid("SP"); d = a.uid("SPD")
        a(f"s_mov_b32 {s(sSPIN)}, 0x400000")
        a(f"{l}:")
        a(f"ds_read_b32 {v(vtmp)}, {v(vMISC)} offset:{off}")
        a("s_waitcnt lgkmcnt(0)")
        a(f"v_readfirstlane_b32 {s(sT0)}, {v(vtmp)}")
        a(f"s_cmp_ge_u32 {s(sT0)}, {target}")
        a(f"s_cbranch_scc1 {d}")
        a("s_sleep 1")
        a(f"s_sub_u32 {s(sSPIN)}, {s(sSPIN)}, 1")
        a(f"s_cbranch_scc0 {l}")
        a(f"{d}:")
    def x_setup():
        a(f"v_lshrrev_b32 {v(vXV)}, 3, {v(vLane)}")
        a(f"v_lshrrev_b32 {v(vXA)}, 4, {v(vLane)}")
        a(f"v_and_b32 {v(vXB)}, 7, {v(vLane)}")
        a(f"v_xor_b32 {v(vXB)}, {v(vXB)}, {v(vXA)}")
        a(f"v_lshlrev_b32 {v(vXB)}, 4, {v(vXB)}")
        a(f"s_lshl_b32 {s(sT0)}, {s(sTILE)}, 5")
        a(f"v_add_u32 {v(vXV)}, {s(sT0)}, {v(vXV)}")
        a(f"s_mul_i32 {s(sT0)}, {s(sBK)}, {NPB*256}")
        a(f"v_lshl_add_u32 {v(vXA)}, {v(vXV)}, 8, {s(sT0)}")
        a(f"v_sub_u32 {v(vXV)}, {NPB-1}, {v(vXV)}")
    def x_round(rnd, vA):
        a(f"s_mov_b32 m0, {s(sXS)}")
        a(f"s_brev_b32 {s(sT1)}, 1")
        for i in range(4):
            a(f"v_xor_b32 {v(vA)}, {(i&1)*64}, {v(vXB)}")
            a(f"v_add_u32 {v(vA+1)}, {i*2048 + rnd*128}, {v(vXA)}")
            a(f"v_add_u32 {v(vA)}, {v(vA)}, {v(vA+1)}")
            a(f"v_subrev_u32 {v(vA+1)}, {8*i}, {v(vXV)}")
            a(f"v_and_or_b32 {v(vA)}, {v(vA+1)}, {s(sT1)}, {v(vA)}")
            a(f"buffer_load_dwordx4 {v(vA)}, {s(rX,4)}, 0 offen lds")
            if i < 3: a(f"s_add_u32 m0, m0, 1024")
    def tagpoll_issue(vA, vD, n, rr, step, sP):
        for i in range(4):
            l = a.uid("PA")
            a(f"s_mov_b64 exec, {s(sP+2*i,2)}")
            a(f"s_cbranch_execz {l}")
            a(f"s_mov_b32 {s(sT0)}, {i*step}")
            a(f"buffer_load_dword{'x2' if n == 2 else ''} {v(vD+n*i,n)}, {v(vA)}, {s(rr,4)}, {s(sT0)} offen sc1")
            a(f"{l}:")
        a("s_mov_b64 exec, -1")
    def tagpoll(vA, vD, n, rr, step, sP, issued=False, vtmp=None):
        l = a.uid("TP"); c = a.uid("TPC"); d = a.uid("TPD")
        a(f"s_mov_b32 {s(sSPIN)}, 0x100000")
        if issued: a(f"s_branch {c}")
        a(f"{l}:")
        tagpoll_issue(vA, vD, n, rr, step, sP)
        a(f"{c}:")
        a("s_waitcnt vmcnt(0)")
        for i in range(4):
            if vtmp is None:
                a(f"v_cmp_ne_u32 {s(sP+2*i,2)}, {s(sTAG)}, {v(vD+n*i+n-1)}")
            else:
                a(f"v_and_b32 {v(vtmp)}, -3, {v(vD+n*i+n-1)}")
                a(f"v_cmp_ne_u32 {s(sP+2*i,2)}, {s(sTAG)}, {v(vtmp)}")
        a(f"s_or_b64 {s(sT2,2)}, {s(sP,2)}, {s(sP+2,2)}")
        a(f"s_or_b64 vcc, {s(sP+4,2)}, {s(sP+6,2)}")
        a(f"s_or_b64 vcc, vcc, {s(sT2,2)}")
        a(f"s_cbranch_vccz {d}")
        a(f"s_sleep {SLP}")
        a(f"s_sub_u32 {s(sSPIN)}, {s(sSPIN)}, 1")
        a(f"s_cbranch_scc0 {l}")
        a(f"{d}:")

    a.raw(f".globl {KNAME}")
    a.raw(".p2align 8")
    a.raw(f".type {KNAME},@function")
    a.raw(f"{KNAME}:")
    a(f"s_cmp_ge_u32 s2, {NWG}")
    a(f"s_cbranch_scc1 K_END")
    a("s_load_dwordx16 s[16:31], s[0:1], 0")
    a("s_load_dwordx8 s[32:39], s[0:1], 64")
    a(f"v_lshrrev_b32 v1, 6, v0")
    a(f"s_and_b32 {s(sSL)}, s2, 3")
    a(f"v_readfirstlane_b32 {s(sWAVE)}, v1")
    a(f"s_lshr_b32 {s(sBK)}, s2, 2")
    a(f"v_and_b32 {v(vLane)}, 63, v0")
    if not opt("nocpf"):
        a(f"s_cmp_lg_u32 {s(sWAVE)}, 15")
        a("s_cbranch_scc1 K_NOCPF")
        a(f"s_getpc_b64 {s(sT2,2)}")
        a("K_PC:")
        a(f"s_mov_b32 {s(sT0)}, K_END-K_PC")
        a(f"v_lshlrev_b32 v127, 7, {v(vLane)}")
        a(f"global_load_dword v126, v127, {s(sT2,2)}")
        a(f"v_add_u32 v127, 0x2000, v127")
        a(f"v_cmp_gt_u32 vcc, {s(sT0)}, v127")
        a("s_mov_b64 exec, vcc")
        a(f"global_load_dword v126, v127, {s(sT2,2)}")
        a("s_mov_b64 exec, -1")
        a("K_NOCPF:")
        R.hi = 128
    a(f"v_mov_b32 {v(vOne)}, 1")
    a(f"v_mov_b32 {v(vMISC)}, {L_MISC}")
    nz = (L_ZEND - L_Z) // 4
    a(f"v_lshlrev_b32 {v(vt)}, 2, v0")
    a(f"v_add_u32 {v(vt)}, {L_Z}, {v(vt)}")
    a(f"v_mov_b32 {v(vt+1)}, 0")
    a(f"v_cmp_gt_u32 vcc, {nz}, v0")
    a("s_mov_b64 exec, vcc")
    a(f"ds_write_b32 {v(vt)}, {v(vt+1)}")
    a("s_mov_b64 exec, -1")
    a(f"v_and_b32 {v(vJ16)}, 3, v0")
    a(f"v_lshlrev_b32 {v(vJ16)}, 4, {v(vJ16)}")
    a(f"s_sub_u32 {s(sTILE)}, {s(sWAVE)}, 4")
    a(f"s_cselect_b32 {s(sTILE)}, 12, {s(sTILE)}")
    a(f"s_mul_i32 {s(sXS)}, {s(sTILE)}, {32*AUS}")
    a(f"s_add_u32 {s(sXS)}, {s(sXS)}, {L_AU}")
    x_setup()
    a("s_waitcnt lgkmcnt(0)")
    if WSBASE:
        a(f"s_add_u32 {s(pWS)}, {s(pWS)}, {WSBASE}")
        a(f"s_addc_u32 {s(pWS+1)}, {s(pWS+1)}, 0")
    a(f"s_lshl_b32 {s(sSL64)}, {s(sSL)}, 6")
    stamp(a, 0, vACC)
    srd(a, rX, pX, N*256)
    a(f"s_cmp_ge_u32 {s(sWAVE)}, 4")
    a("s_cbranch_scc1 K_G0")
    vD8 = vX; vS8 = vX + 8; vE4 = vX + 16; vRK = vX + 20; vKY = vWF; vRP = vWF + 8; vCN = vWF + 24; vEX = vWF + 26
    a("s_setprio 3")
    a(f"s_or_b32 {s(sT0)}, s2, {s(sWAVE)}")
    a("s_cbranch_scc1 K_NOTAG")
    a(f"s_memrealtime {s(sT2,2)}")
    a("s_waitcnt lgkmcnt(0)")
    a(f"s_lshl_b32 {s(sT2)}, {s(sT2)}, 2")
    a(f"s_or_b32 {s(sT2)}, {s(sT2)}, 1")
    a(f"v_mov_b32 {v(vt)}, {s(sT2)}")
    a("s_mov_b64 exec, 1")
    a(f"global_store_dword {v(vt+1)}, {v(vt)}, {s(pDBG,2)} sc1")
    a("s_mov_b64 exec, -1")
    a("K_NOTAG:")
    a(f"s_cmp_eq_u32 {s(sWAVE)}, 1")
    a(f"s_cselect_b32 {s(rW)}, {s(pWV)}, {s(pWB)}")
    a(f"s_cselect_b32 {s(rW+1)}, {s(pWV+1)}, {s(pWB+1)}")
    a(f"s_cmp_eq_u32 {s(sWAVE)}, 2")
    a(f"s_cselect_b32 {s(rW)}, {s(pWA)}, {s(rW)}")
    a(f"s_cselect_b32 {s(rW+1)}, {s(pWA+1)}, {s(rW+1)}")
    a(f"s_cmp_eq_u32 {s(sWAVE)}, 3")
    a(f"s_cselect_b32 {s(rW)}, {s(pWU)}, {s(rW)}")
    a(f"s_cselect_b32 {s(rW+1)}, {s(pWU+1)}, {s(rW+1)}")
    a(f"s_and_b32 {s(rW+1)}, {s(rW+1)}, 0xffff")
    a(f"s_mov_b32 {s(rW+2)}, {128*256}")
    a(f"s_mov_b32 {s(rW+3)}, 0x20000")
    srd(a, rA, pDST, E*4); srd(a, rB, pSRC, E*4); srd(a, rC, pE, E*2)
    a(f"s_mul_i32 {s(sT0)}, s2, {CH}")
    a(f"v_lshl_add_u32 {v(vt)}, v0, 2, {s(sT0)}")
    a(f"v_add_u32 {v(vt+1)}, {CH//2}, {v(vt)}")
    a(f"s_mov_b32 {s(sT1)}, {E}")
    a(f"v_cmp_gt_u32 vcc, {CH//8}, v0")
    a(f"v_cmp_gt_u32 {s(sVAL,2)}, {s(sT1)}, {v(vt)}")
    a(f"v_cmp_gt_u32 {s(sVAL2,2)}, {s(sT1)}, {v(vt+1)}")
    a(f"v_lshlrev_b32 {v(vt+2)}, 2, {v(vt)}")
    a(f"v_lshlrev_b32 {v(vt+3)}, 1, {v(vt)}")
    a(f"s_and_b64 {s(sVAL,2)}, {s(sVAL,2)}, vcc")
    a(f"s_and_b64 {s(sVAL2,2)}, {s(sVAL2,2)}, vcc")
    a("s_mov_b64 exec, vcc")
    a(f"buffer_load_dwordx4 {v(vD8,4)}, {v(vt+2)}, {s(rA,4)}, 0 offen")
    a(f"buffer_load_dwordx4 {v(vD8+4,4)}, {v(vt+2)}, {s(rA,4)}, 0 offen offset:{CH*2}")
    a(f"buffer_load_dwordx4 {v(vS8,4)}, {v(vt+2)}, {s(rB,4)}, 0 offen")
    a(f"buffer_load_dwordx4 {v(vS8+4,4)}, {v(vt+2)}, {s(rB,4)}, 0 offen offset:{CH*2}")
    a(f"buffer_load_dwordx2 {v(vE4,2)}, {v(vt+3)}, {s(rC,4)}, 0 offen")
    a(f"buffer_load_dwordx2 {v(vE4+2,2)}, {v(vt+3)}, {s(rC,4)}, 0 offen offset:{CH}")
    a("s_mov_b64 exec, -1")
    a(f"v_lshrrev_b32 {v(vt)}, 2, {v(vLane)}")
    a(f"v_lshl_add_u32 {v(vt)}, {v(vt)}, 8, {v(vJ16)}")
    a(f"s_lshl_b32 {s(sT0)}, {s(sWAVE)}, 13")
    a(f"s_add_u32 m0, {s(sT0)}, {L_WL}")
    a(f"s_mov_b32 {s(sT1)}, {s(sSL64)}")
    for i in range(8):
        a(f"buffer_load_dwordx4 {v(vt)}, {s(rW,4)}, {s(sT1)} offen lds")
        if i < 7:
            a(f"s_add_u32 m0, m0, 1024")
            a(f"s_add_u32 {s(sT1)}, {s(sT1)}, 4096")
    a("s_branch K_C0")
    a("K_G0:")
    pass
    a("K_C0:")
    srd(a, rC, pWC, 256)
    a(f"buffer_load_dwordx4 {v(vWC,4)}, {v(vJ16)}, {s(rC,4)}, {s(sSL64)} offen")
    a("s_barrier")
    if True:
        a(f"s_cmp_lt_u32 {s(sWAVE)}, 4")
        a("s_cbranch_scc1 K_C1")
        x_round(0, vACC)
        a("K_C1:")
    a(f"s_mov_b32 {s(sMHI)}, 0xffff0000")
    a(f"s_mov_b32 {s(sM7F0)}, 0x7fff0000")
    a(f"s_mov_b32 {s(sM7FF)}, 0x7fffffff")
    a(f"s_mov_b32 {s(sTINY)}, 0x00800000")
    a(f"s_mov_b32 {s(sPERM)}, 0x07060302")
    a(f"s_mov_b32 {s(sNL2E)}, {hx(fbits(-LOG2E))}")
    a(f"s_mov_b32 {s(sPEND)}, 0")
    a(f"s_mul_i32 {s(sT0)}, {s(sSL)}, {TS}")
    srd(a, rT, pWS, N*128, s(sT0))
    srd(a, rREC, pWS, NWG*CHB, WS_REC)
    srd(a, rDESC, pWS, 131072, WS_DESC)
    srd(a, rA, pOUT, N*256)
    srd(a, rDBG, pDBG, 256)
    srd(a, rFLG, pWS, 32768, WS_FLAG)
    a(f"s_cmp_ge_u32 {s(sWAVE)}, 4")
    a("s_cbranch_scc1 K_GEMM")
    a("s_waitcnt vmcnt(9)")
    stamp(a, 1, vACC, 1)
    a(f"s_mov_b32 {s(sT0)}, {L_CNTA}")
    a(f"s_mov_b32 {s(sT1)}, {-NPB & 0xffffffff}")
    for i in range(8):
        a(f"v_mul_u32_u24 {v(vt)}, {MAGIC}, {v(vD8+i)}")
        a(f"v_lshrrev_b32 {v(vt)}, 24, {v(vt)}")
        a(f"v_mad_i32_i24 {v(vD8+i)}, {v(vt)}, {s(sT1)}, {v(vD8+i)}")
        a(f"v_and_b32 {v(vKY+i)}, 62, {v(vt)}")
        a(f"v_and_b32 {v(vt)}, 1, {v(vt)}")
        a(f"v_lshlrev_b32 {v(vKY+i)}, 1, {v(vKY+i)}")
        a(f"v_lshl_or_b32 {v(vKY+i)}, {v(vt)}, 7, {v(vKY+i)}")
        a(f"v_add_u32 {v(vRP+i)}, {s(sT0)}, {v(vKY+i)}")
        if i % 4 == 3:
            a(f"s_mov_b64 exec, {s(sVAL if i == 3 else sVAL2,2)}")
            for j in range(i - 3, i + 1):
                a(f"ds_add_rtn_u32 {v(vRK+j)}, {v(vRP+j)}, {v(vOne)}")
            a("s_mov_b64 exec, -1")
    a("s_waitcnt lgkmcnt(0)")
    signal(M_HS1)
    for i in range(8):
        e = vE4 + i // 2
        if i % 2 == 0: a(f"v_lshl_or_b32 {v(vRP+i)}, {v(e)}, 16, {v(vS8+i)}")
        else:          a(f"v_and_or_b32 {v(vRP+i)}, {v(e)}, {s(sMHI)}, {v(vS8+i)}")
        a(f"v_and_b32 {v(vt)}, 0x100, {v(vD8+i)}")
        a(f"v_lshl_or_b32 {v(vRP+i)}, {v(vt)}, 7, {v(vRP+i)}")
        a(f"v_mov_b32 {v(vRP+8+i)}, {v(vD8+i)}")
    a(f"v_lshlrev_b32 {v(vt)}, 2, {v(vLane)}")
    a(f"v_add_u32 {v(vt+1)}, {L_CNTA}, {v(vt)}")
    spin(M_HS1, 4, vt+2)
    a(f"ds_read_b32 {v(vCN)}, {v(vt+1)}")
    a("s_waitcnt lgkmcnt(0)")
    a(f"v_add_u32 {v(vEX+1)}, 1, {v(vCN)}")
    a(f"v_and_b32 {v(vEX+1)}, -2, {v(vEX+1)}")
    a(f"v_mov_b32 {v(vEX)}, {v(vEX+1)}")
    scan64(a, vEX)
    a(f"v_sub_u32 {v(vEX)}, {v(vEX)}, {v(vEX+1)}")
    for i in range(8):
        a(f"ds_bpermute_b32 {v(vD8+i)}, {v(vKY+i)}, {v(vEX)}")
    a(f"v_lshl_or_b32 {v(vCN)}, {v(vCN)}, 16, {v(vEX)}")
    for i in range(8):
        a(f"s_waitcnt lgkmcnt({7-i})")
        a(f"v_add_u32 {v(vD8+i)}, {v(vD8+i)}, {v(vRK+i)}")
        a(f"v_lshlrev_b32 {v(vRK+i)}, 2, {v(vD8+i)}")
    for i in range(8):
        if i % 4 == 0: a(f"s_mov_b64 exec, {s(sVAL if i == 0 else sVAL2,2)}")
        a(f"ds_write_b32 {v(vRK+i)}, {v(vRP+i)} offset:{L_STAGE}")
        a(f"ds_write_b8 {v(vD8+i)}, {v(vRP+8+i)} offset:{L_STAGE + LOC0}")
    a("s_mov_b64 exec, -1")
    a("s_waitcnt lgkmcnt(0)")
    signal(M_HS2)
    a("s_waitcnt vmcnt(1)" if not STAMPS else "s_waitcnt vmcnt(0)")
    signal(M_WRDY)
    a(f"v_lshlrev_b32 {v(vt+1)}, 4, v0")
    spin(M_HS2, 4, vt+3)
    for i in range(2):
        a(f"ds_read_b128 {v(vX+4*i,4)}, {v(vt+1)} offset:{L_STAGE + i*4096}")
    a(f"s_lshl_b32 {s(sT0)}, s2, 13")
    a(f"s_add_u32 {s(sT1)}, {s(sT0)}, 4096")
    a("s_waitcnt lgkmcnt(1)")
    a(f"buffer_store_dwordx4 {v(vX,4)}, {v(vt+1)}, {s(rREC,4)}, {s(sT0)} offen sc1")
    a("s_waitcnt lgkmcnt(0)")
    a(f"buffer_store_dwordx4 {v(vX+4,4)}, {v(vt+1)}, {s(rREC,4)}, {s(sT1)} offen sc1")
    a(f"s_cmp_lg_u32 {s(sWAVE)}, 0")
    a("s_cbranch_scc1 K_NOLAST")
    x_round(0, vACC)
    a("K_NOLAST:")
    stamp(a, 2, vACC, 1)
    a(f"v_mov_b32 {v(vt+2)}, 0")
    a(f"s_mov_b32 {s(sSPIN)}, 0x100000")
    a("K_GOL:")
    a(f"buffer_load_dword {v(vCN+1)}, {v(vt+2)}, {s(rDBG,4)}, 0 offen sc1")
    a("s_waitcnt vmcnt(0)")
    a(f"v_readfirstlane_b32 {s(sTAG)}, {v(vCN+1)}")
    a(f"s_cmp_lg_u32 {s(sTAG)}, 0")
    a("s_cbranch_scc1 K_GOD")
    a(f"s_sub_u32 {s(sSPIN)}, {s(sSPIN)}, 1")
    a("s_cbranch_scc0 K_GOL")
    a("K_GOD:")
    a(f"ds_write_b32 {v(vMISC)}, {v(vCN+1)} offset:{M_TAG}")
    signal(M_HS3, vt+3)
    a(f"v_lshlrev_b32 {v(vt+1)}, 3, {v(vLane)}")
    a(f"s_lshl_b32 {s(sT1)}, s2, 9")
    a("s_waitcnt lgkmcnt(0)")
    a(f"v_readfirstlane_b32 {s(sT0)}, {v(vt+3)}")
    a(f"s_cmp_lg_u32 {s(sT0)}, 3")
    a("s_cbranch_scc1 K_NOFLAGA")
    a(f"buffer_store_dwordx2 {v(vCN,2)}, {v(vt+1)}, {s(rDESC,4)}, {s(sT1)} offen sc1")
    stamp(a, 3, vACC, -1)
    a("K_NOFLAGA:")
    a(f"s_cmp_eq_u32 {s(sWAVE)}, 0")
    a("s_cbranch_scc1 K_GEMM")
    a(f"s_cmp_lg_u32 {s(sWAVE)}, 3")
    a("s_cbranch_scc1 K_RECS")
    spin(M_XL, int(opt("pollat", 12)), vt+1)
    stamp(a, 4, vACC, 3)
    a(f"s_lshr_b32 {s(sT0)}, {s(sBK)}, 1")
    a(f"s_and_b32 {s(sT1)}, {s(sBK)}, 1")
    a(f"s_lshl_b32 {s(sT1)}, {s(sT1)}, 5")
    a(f"s_or_b32 {s(sT0)}, {s(sT0)}, {s(sT1)}")
    a(f"s_lshl_b32 {s(sT0)}, {s(sT0)}, 3")
    a(f"v_lshlrev_b32 {v(vt+1)}, 9, {v(vLane)}")
    a(f"v_add_u32 {v(vt+1)}, {s(sT0)}, {v(vt+1)}")
    sP = 16
    for i in range(4): a(f"s_mov_b64 {s(sP+2*i,2)}, -1")
    tagpoll(vt+1, vX, 2, rDESC, 32768, sP)
    a(f"v_add_u32 {v(vt+1)}, {L_DESC}, {v(vt)}")
    for i in range(4):
        a(f"ds_write_b32 {v(vt+1)}, {v(vX+2*i)} offset:{i*256}")
    a("s_waitcnt lgkmcnt(0)")
    signal(M_DRDY)
    stamp(a, 5, vACC, 3)
    a("s_branch K_RECS")
    a("K_GEMM:")
    a(f"v_and_b32 {v(vt)}, 31, {v(vLane)}")
    a(f"v_lshrrev_b32 {v(vt+2)}, 5, {v(vLane)}")
    a(f"v_lshl_add_u32 {v(vt+1)}, {v(vt)}, 7, {s(sXS)}")
    a(f"v_bfe_u32 {v(vt+3)}, {v(vLane)}, 1, 3")
    a(f"v_xor_b32 {v(vt+3)}, {v(vt+3)}, {v(vt+2)}")
    a(f"v_lshlrev_b32 {v(vt+3)}, 4, {v(vt+3)}")
    for t in range(4):
        a(f"v_xor_b32 {v(vFA+t)}, {t*32}, {v(vt+3)}")
        a(f"v_add_u32 {v(vFA+t)}, {v(vFA+t)}, {v(vt+1)}")
    a(f"v_mul_u32_u24 {v(vAUa)}, {AUS}, {v(vt)}")
    a(f"v_lshl_add_u32 {v(vAUa)}, {v(vt+2)}, 4, {v(vAUa)}")
    a(f"v_add_u32 {v(vAUa)}, {s(sXS)}, {v(vAUa)}")
    a(f"v_lshlrev_b32 {v(vTR)}, 3, {v(vt+2)}")
    a(f"v_bfe_u32 {v(vt)}, {v(vLane)}, 2, 2")
    a(f"v_add_u32 {v(vTR)}, {v(vTR)}, {v(vt)}")
    a(f"v_lshlrev_b32 {v(vTR)}, 6, {v(vTR)}")
    a(f"v_bfe_u32 {v(vt)}, {v(vLane)}, 4, 1")
    a(f"v_lshl_add_u32 {v(vTR)}, {v(vt)}, 5, {v(vTR)}")
    a(f"v_and_b32 {v(vt)}, 1, {v(vLane)}")
    a(f"v_lshl_add_u32 {v(vTR)}, {v(vt)}, 4, {v(vTR)}")
    a(f"v_and_b32 {v(vt)}, 2, {v(vLane)}")
    a(f"v_lshl_add_u32 {v(vTR)}, {v(vt)}, 2, {v(vTR)}")
    a(f"v_add_u32 {v(vTR)}, {L_WL}, {v(vTR)}")
    a(f"v_mov_b32 {v(vBIG)}, 0x7f7f7fff")
    a("s_waitcnt vmcnt(0)")
    for t in range(4):
        a(f"ds_read_b128 {v(vX+4*t,4)}, {v(vFA+t)}")
    if opt("xgate"): spin(M_HS3, 4, vt)
    else: a("s_waitcnt lgkmcnt(0)")
    x_round(1, vACC)
    def tr_half(hf):
        for mat in range(2):
            for t in range(4):
                for q in range(2):
                    a(f"ds_read_b64_tr_b16 {v(vWF+16*mat+4*t+2*q,2)}, {v(vTR)} offset:{mat*8192 + (4*hf+t)*1024 + q*256}")
    def mfma_half(hf):
        for t in range(4):
            for mat, acc in ((0, vACC), (1, vO)):
                c = "0" if (hf == 0 and t == 0) else v(acc, 16)
                a(f"v_mfma_f32_32x32x16_bf16 {v(acc,16)}, {v(vWF+16*mat+4*t,4)}, {v(vX+16*hf+4*t,4)}, {c}")
    spin(M_WRDY, 4, vt)
    tr_half(0)
    a("s_waitcnt lgkmcnt(0)")
    mfma_half(0)
    tr_half(1)
    a("s_waitcnt vmcnt(0)")
    signal(M_XL)
    stamp(a, 6, vt, 4)
    stamp(a, 7, vt, 15)
    a("s_setprio 3")
    for t in range(4):
        a(f"ds_read_b128 {v(vX+16+4*t,4)}, {v(vFA+t)}")
    a("s_waitcnt lgkmcnt(0)")
    mfma_half(1)
    tr_reads(a, 2, vTR, vWF)
    def packT(A):
        for g in range(4): a(f"v_add_u32 {v(A+4*g)}, 0x8000, {v(A+4*g)}")
        for g in range(4):
            a(f"v_perm_b32 {v(A+2*g)}, {v(A+4*g+1)}, {v(A+4*g)}, {s(sPERM)}")
            a(f"v_perm_b32 {v(A+2*g+1)}, {v(A+4*g+3)}, {v(A+4*g+2)}, {s(sPERM)}")
    def scale():
        for r in range(16): a(f"v_mul_f32 {v(vACC+r)}, {s(sNL2E)}, {v(vACC+r)}")
    def rcheck(ab, lim, word, skip=None, vACC=vACC):
        l = a.uid("RC")
        m = (lambda r: f"|{v(r)}|") if ab else v
        a(f"v_max3_f32 {v(vt)}, {m(vACC)}, {m(vACC+1)}, {m(vACC+2)}")
        a(f"v_max3_f32 {v(vt+1)}, {m(vACC+3)}, {m(vACC+4)}, {m(vACC+5)}")
        for r in range(6, 14, 4):
            a(f"v_max3_f32 {v(vt)}, {v(vt)}, {m(vACC+r)}, {m(vACC+r+1)}")
            a(f"v_max3_f32 {v(vt+1)}, {v(vt+1)}, {m(vACC+r+2)}, {m(vACC+r+3)}")
        a(f"v_max3_f32 {v(vt)}, {v(vt)}, {m(vACC+14)}, {m(vACC+15)}")
        a(f"v_max_f32 {v(vt)}, {v(vt)}, {v(vt+1)}")
        a(f"v_cmp_lt_f32 vcc, {hx(fbits(lim))}, {v(vt)}")
        a(f"s_cbranch_vccz {l}")
        a(f"ds_write_b32 {v(vMISC)}, {v(vOne)} offset:{word}")
        if skip:
            a(f"s_lshl_b32 {s(sT0)}, 1, {s(sTILE)}")
            a(f"v_mov_b32 {v(vt)}, {s(sT0)}")
            a(f"ds_or_b32 {v(vMISC)}, {v(vt)} offset:{M_RAW}")
        if True:
            a(f"v_bfrev_b32 {v(vt)}, 1")
            a(f"v_or_b32 {v(vt)}, {v(vt)}, {v(vBIG)}")
            for r in range(16): a(f"v_med3_f32 {v(vACC+r)}, {v(vACC+r)}, {v(vt)}, {v(vBIG)}")
        a("s_waitcnt lgkmcnt(0)")
        if skip: a(f"s_branch {skip}")
        a(f"{l}:")
    scale()
    rcheck(True, LIM_B, M_BAD)
    packT(vACC)
    a(f"ds_write_b128 {v(vAUa)}, {v(vACC,4)}")
    a(f"ds_write_b128 {v(vAUa)}, {v(vACC+4,4)} offset:32")
    rcheck(True, LIM_V, M_BAD, None, vO)
    packT(vO)
    a(f"ds_write_b128 {v(vAUa)}, {v(vO,4)} offset:64")
    a(f"ds_write_b128 {v(vAUa)}, {v(vO+4,4)} offset:96")
    a(f"v_lshrrev_b32 {v(vt)}, 3, {v(vLane)}")
    a(f"v_and_b32 {v(vt+1)}, 7, {v(vLane)}")
    a(f"v_lshlrev_b32 {v(vt+1)}, 4, {v(vt+1)}")
    a(f"v_mul_u32_u24 {v(vt+2)}, {AUS}, {v(vt)}")
    a(f"v_add3_u32 {v(vt+2)}, {v(vt+2)}, {v(vt+1)}, {s(sXS)}")
    a(f"v_lshrrev_b32 {v(vt)}, 1, {v(vXA)}")
    a(f"v_add_u32 {v(vt)}, {v(vt)}, {v(vt+1)}")
    a(f"s_brev_b32 {s(sT1)}, 1")
    a("s_waitcnt lgkmcnt(0)")
    for i in range(4):
        a(f"ds_read_b128 {v(vO+4*i,4)}, {v(vt+2)} offset:{i*8*AUS}")
    for i in range(4):
        a(f"v_subrev_u32 {v(vt+3)}, {8*i}, {v(vXV)}")
        a(f"v_and_or_b32 {v(vt+1)}, {v(vt+3)}, {s(sT1)}, {v(vt)}")
        a(f"s_waitcnt lgkmcnt({3-i})")
        a(f"buffer_store_dwordx4 {v(vO+4*i,4)}, {v(vt+1)}, {s(rT,4)}, 0 offen offset:{i*1024} sc1")
    stamp(a, 8, vt, 15)
    a("s_setprio 0")
    for mat in (2, 3):
        mfma_chain(a, vWF, vX, vACC if mat == 2 else vO)
        if mat == 2:
            tr_reads(a, 3, vTR, vWF)
            scale()
            rcheck(True, LIM_A, M_SLOW, "K_RAWA")
            for r in range(16): a(f"v_exp_f32 {v(vACC+r)}, {v(vACC+r)}")
            a("K_RAWA:")
        else:
            a("s_nop 11")
        A = vACC if mat == 2 else vO
        if mat == 2: packT(vACC)
        else:
            for d in range(8): a(f"v_cvt_pk_bf16_f32 {v(vO+d)}, {v(vO+2*d)}, {v(vO+2*d+1)}")
        a(f"ds_write_b128 {v(vAUa)}, {v(A,4)} offset:{(mat-2)*64}")
        a(f"ds_write_b128 {v(vAUa)}, {v(A+4,4)} offset:{(mat-2)*64+32}")
        if mat == 2: a("s_waitcnt lgkmcnt(2)")
    a(f"s_mov_b32 {s(sPEND)}, 1")
    a("K_RECS:")
    a("s_setprio 0")
    vDS = vX; vRC = vX + 4; vRC2 = vX + 12; vLB = vX + 20; vLB2 = vX + 24; vLO = vX + 28; vRK8 = vX + 36; vAD = vX + 44; vI = vX + 52; vRB = vX + 56; vDA = vX + 57; vRB0 = vX + 58; vDA0 = vX + 59; vLA0 = vX + 60; vLAb = vX + 61; vEM = vX + 62
    sM2 = 16
    for d in range(4): a(f"v_and_b32 {v(vWC+4+d)}, {s(sMHI)}, {v(vWC+d)}")
    for d in range(4): a(f"v_lshlrev_b32 {v(vWC+d)}, 16, {v(vWC+d)}")
    for d in range(8): a(f"v_mul_f32 {v(vWC+d)}, {hx(fbits(-LOG2E*(1-1.0e-3))) if RAWE else s(sNL2E)}, {v(vWC+d)}")
    a(f"v_lshrrev_b32 {v(vt)}, 4, {v(vLane)}")
    a(f"v_and_b32 {v(vI)}, 15, {v(vLane)}")
    a(f"v_lshlrev_b32 {v(vRB0)}, 13, {v(vt)}")
    a(f"v_lshlrev_b32 {v(vI)}, 1, {v(vI)}")
    a(f"v_add_u32 {v(vLA0)}, {v(vRB0)}, {v(vI)}")
    a(f"v_add_u32 {v(vLA0)}, {LOC0}, {v(vLA0)}")
    a(f"v_lshl_add_u32 {v(vRB0)}, {v(vI)}, 2, {v(vRB0)}")
    a(f"v_add_u32 {v(vI+1)}, 1, {v(vI)}")
    a(f"v_add_u32 {v(vI+2)}, 32, {v(vI)}")
    a(f"v_add_u32 {v(vI+3)}, 33, {v(vI)}")
    a(f"v_lshlrev_b32 {v(vDA0)}, 2, {v(vt)}")
    a(f"v_add_u32 {v(vDA0)}, {L_DESC}, {v(vDA0)}")
    a(f"v_mov_b32 {v(vt+1)}, 4")
    a(f"v_mov_b32 {v(vt+2)}, {STRIDE}")
    a(f"s_mov_b64 {s(sOVF,2)}, 0")
    a(f"v_mov_b32 {v(vEM)}, 0")
    def report():
        l = a.uid("RP")
        a(f"s_mov_b32 {s(sPEND)}, 0")
        signal(M_GCNT, vt)
        a("s_waitcnt lgkmcnt(0)")
        a(f"v_readfirstlane_b32 {s(sT0)}, {v(vt)}")
        a(f"s_cmp_lg_u32 {s(sT0)}, 12")
        a(f"s_cbranch_scc1 {l}")
        a(f"ds_read_b32 {v(vt)}, {v(vMISC)} offset:{M_TAG}")
        a(f"ds_read_b32 {v(vEM+1)}, {v(vMISC)} offset:{M_BAD}")
        a(f"s_lshl_b32 {s(sT0)}, s2, 7")
        a(f"v_mov_b32 {v(vt+3)}, {s(sT0)}")
        a("s_mov_b64 exec, 1")
        a("s_waitcnt lgkmcnt(0)")
        a(f"v_lshl_or_b32 {v(vt)}, {v(vEM+1)}, 1, {v(vt)}")
        a(f"buffer_store_dword {v(vt)}, {v(vt+3)}, {s(rFLG,4)}, 0 offen sc1")
        a("s_mov_b64 exec, -1")
        stamp(a, 9, vACC, -1)
        a(f"{l}:")
    if True:
        a(f"s_cmp_eq_u32 {s(sPEND)}, 0")
        a("s_cbranch_scc1 K_NOREP0")
        a("s_waitcnt vmcnt(0)")
        spin(M_HS3, 4, vt+3)
        report()
        a("K_NOREP0:")
    spin(M_DRDY, 1, vt+3)
    a("K_BATCH:")
    signal(M_BQ, vt)
    a("s_waitcnt lgkmcnt(0)")
    a(f"v_readfirstlane_b32 {s(sK)}, {v(vt)}")
    a(f"s_cmp_ge_u32 {s(sK)}, 16")
    a("s_cbranch_scc1 K_BDONE")
    a(f"s_lshl_b32 {s(sT0)}, {s(sK)}, 6")
    a(f"v_add_u32 {v(vDA)}, {s(sT0)}, {v(vDA0)}")
    a(f"ds_read2_b32 {v(vDS,2)}, {v(vDA)} offset0:0 offset1:4")
    a(f"ds_read2_b32 {v(vDS+2,2)}, {v(vDA)} offset0:8 offset1:12")
    a(f"s_mul_i32 {s(sT0)}, {s(sK)}, {16*CHB}")
    a(f"v_add_u32 {v(vRB)}, {s(sT0)}, {v(vRB0)}")
    a(f"v_add_u32 {v(vLAb)}, {s(sT0)}, {v(vLA0)}")
    a(f"v_mov_b32 {v(vt+3)}, 64")
    a("s_waitcnt lgkmcnt(0)")
    SD = "src0_sel:DWORD src1_sel:WORD_1"
    for it in range(4):
        a(f"v_mad_u32_u16 {v(vAD+it)}, {v(vDS+it)}, {v(vt+1)}, {v(vRB)}")
        a(f"v_mad_u32_u16 {v(vAD+4+it)}, {v(vDS+it)}, {v(vOne)}, {v(vLAb)}")
        a(f"v_cmp_lt_u32_sdwa {s(sM2+4*it,2)}, {v(vI+2)}, {v(vDS+it)} {SD}")
    for it in range(4):
        l = a.uid("S2")
        a(f"s_cmp_eq_u64 {s(sM2+4*it,2)}, 0")
        a(f"s_cbranch_scc1 {l}")
        a(f"s_mov_b32 {s(sT0)}, {it*4*CHB}")
        a(f"buffer_load_dwordx2 {v(vRC2+2*it,2)}, {v(vAD+it)}, {s(rREC,4)}, {s(sT0)} offen offset:128")
        a(f"buffer_load_ushort {v(vLB2+it)}, {v(vAD+4+it)}, {s(rREC,4)}, {s(sT0)} offen offset:32")
        a(f"{l}:")
    for it in range(4):
        a(f"s_mov_b32 {s(sT0)}, {it*4*CHB}")
        a(f"buffer_load_dwordx2 {v(vRC+2*it,2)}, {v(vAD+it)}, {s(rREC,4)}, {s(sT0)} offen")
        a(f"buffer_load_ushort {v(vLB+it)}, {v(vAD+4+it)}, {s(rREC,4)}, {s(sT0)} offen")
    for it in range(4):
        a(f"v_cmp_lt_u32_sdwa {s(sMSK+4*it,2)}, {v(vI)}, {v(vDS+it)} {SD}")
        a(f"v_cmp_lt_u32_sdwa {s(sMSK+4*it+2,2)}, {v(vI+1)}, {v(vDS+it)} {SD}")
        a(f"v_cmp_lt_u32_sdwa {s(sM2+4*it+2,2)}, {v(vI+3)}, {v(vDS+it)} {SD}")
        a(f"v_cmp_lt_u32_sdwa vcc, {v(vt+3)}, {v(vDS+it)} {SD}")
        a(f"s_or_b64 {s(sOVF,2)}, {s(sOVF,2)}, vcc")
    a("s_waitcnt vmcnt(0)")
    def proc(rc, lb, msk, js):
        a(f"s_mov_b32 {s(sT0)}, {L_CNT}")
        for j in js:
            a(f"v_bfe_u32 {v(vLO+j)}, {v(lb+j//2)}, {8*(j&1)}, 8")
            a(f"v_bfe_u32 {v(vAD+j)}, {v(rc+j)}, 15, 1")
            a(f"v_lshl_or_b32 {v(vLO+j)}, {v(vAD+j)}, 8, {v(vLO+j)}")
            a(f"v_lshl_add_u32 {v(vAD+j)}, {v(vLO+j)}, 2, {s(sT0)}")
        for j in js:
            a(f"s_mov_b64 exec, {s(msk+2*j,2)}")
            a(f"ds_add_rtn_u32 {v(vRK8+j)}, {v(vAD+j)}, {v(vOne)}")
        a("s_mov_b64 exec, -1")
        for j in js:
            a(f"v_and_b32 {v(rc+j)}, {opt('fakesrc', '0xffff7fff')}, {v(rc+j)}")
        for n, j in enumerate(js):
            a(f"s_waitcnt lgkmcnt({len(js)-1-n})")
            a(f"v_mad_u32_u24 {v(vAD+j)}, {v(vLO+j)}, {v(vt+2)}, {v(vRK8+j)}")
            a(f"v_cmp_gt_u32 vcc, {STRIDE}, {v(vRK8+j)}")
            a(f"v_lshlrev_b32 {v(vAD+j)}, 2, {v(vAD+j)}")
            a(f"s_andn2_b64 {s(sT2,2)}, {s(msk+2*j,2)}, vcc")
            a(f"s_and_b64 {s(msk+2*j,2)}, {s(msk+2*j,2)}, vcc")
            a(f"s_or_b64 {s(sOVF,2)}, {s(sOVF,2)}, {s(sT2,2)}")
        for j in js:
            a(f"s_mov_b64 exec, {s(msk+2*j,2)}")
            a(f"ds_write_b32 {v(vAD+j)}, {v(rc+j)} offset:{L_LIST}")
            a(f"v_max_f32 {v(vEM)}, |{v(rc+j)}|, {v(vEM)}")
        a("s_mov_b64 exec, -1")
    proc(vRC, vLB, sMSK, list(range(8)))
    for it in range(4):
        l = a.uid("P2")
        a(f"s_cmp_eq_u64 {s(sM2+4*it,2)}, 0")
        a(f"s_cbranch_scc1 {l}")
        proc(vRC2, vLB2, sM2, [2*it, 2*it+1])
        a(f"{l}:")
    a("s_branch K_BATCH")
    a("K_BDONE:")
    a(f"v_max3_f32 {v(vt)}, |{v(vWC)}|, |{v(vWC+1)}|, |{v(vWC+2)}|")
    a(f"v_max3_f32 {v(vt)}, {v(vt)}, |{v(vWC+3)}|, |{v(vWC+4)}|")
    a(f"v_max3_f32 {v(vt)}, {v(vt)}, |{v(vWC+5)}|, |{v(vWC+6)}|")
    a(f"v_max_f32 {v(vt)}, |{v(vWC+7)}|, {v(vt)}")
    a("s_nop 1")
    a(f"v_max_f32_dpp {v(vt)}, {v(vt)}, {v(vt)} quad_perm:[1,0,3,2] row_mask:0xf bank_mask:0xf")
    a("s_nop 1")
    a(f"v_max_f32_dpp {v(vt)}, {v(vt)}, {v(vt)} quad_perm:[2,3,0,1] row_mask:0xf bank_mask:0xf")
    a(f"v_mul_f32 {v(vt)}, {v(vt)}, {v(vEM)}")
    a(f"v_cmp_lt_f32 vcc, {hx(fbits(LIM_E))}, {v(vt)}")
    a(f"s_or_b64 vcc, vcc, {s(sOVF,2)}")
    if opt("forceslow"): a("s_mov_b64 vcc, -1")
    a("s_cbranch_vccz K_NOSLOW")
    a(f"ds_write_b32 {v(vMISC)}, {v(vOne)} offset:{M_SLOW}")
    a("s_waitcnt lgkmcnt(0)")
    a("K_NOSLOW:")
    stamp(a, 10, vACC, 2)
    stamp(a, 11, vACC, 8)
    a("s_barrier")
    stamp(a, 12, vACC)
    vDG = vX; vBN = vX + 1; vR2 = vX + 2; vBC = vX + 3; vBE = vX + 4; vPD = vX + 8
    a(f"s_cmp_lg_u32 {s(sWAVE)}, 15")
    a("s_cbranch_scc1 K_NOPI")
    a(f"ds_read_b32 {v(vt)}, {v(vMISC)} offset:{M_TAG}")
    a(f"v_lshlrev_b32 {v(vt+1)}, 7, {v(vLane)}")
    for i in range(4): a(f"s_mov_b64 {s(sP+2*i,2)}, -1")
    tagpoll_issue(vt+1, vPD, 1, rFLG, 8192, sP)
    a("s_waitcnt lgkmcnt(0)")
    a(f"v_readfirstlane_b32 {s(sTAG)}, {v(vt)}")
    a("K_NOPI:")
    a(f"s_movk_i32 {s(sT0)}, {NLOC}")
    a(f"v_cmp_gt_u32 {s(sVAL,2)}, {s(sT0)}, v0")
    a(f"v_lshlrev_b32 {v(vt)}, 2, v0")
    a(f"v_add_u32 {v(vt)}, {L_CNT}, {v(vt)}")
    a(f"s_mov_b64 exec, {s(sVAL,2)}")
    a(f"ds_read_b32 {v(vDG)}, {v(vt)}")
    a("s_waitcnt lgkmcnt(0)")
    a(f"v_min_u32 {v(vDG)}, {STRIDE}, {v(vDG)}")
    a(f"v_sub_u32 {v(vBN)}, 63, {v(vDG)}")
    a(f"v_lshlrev_b32 {v(vBN)}, 2, {v(vBN)}")
    a(f"v_add_u32 {v(vt)}, {L_BINS}, {v(vBN)}")
    a(f"ds_add_rtn_u32 {v(vR2)}, {v(vt)}, {v(vOne)}")
    a("s_mov_b64 exec, -1")
    a("s_waitcnt lgkmcnt(0)")
    a("s_barrier")
    a(f"s_cmp_lg_u32 {s(sWAVE)}, 15")
    a("s_cbranch_scc1 K_NOPOLLB")
    tagpoll(vt+1, vPD, 1, rFLG, 8192, sP, issued=True, vtmp=vt+2)
    a(f"v_or3_b32 {v(vt+2)}, {v(vPD)}, {v(vPD+1)}, {v(vPD+2)}")
    a(f"v_or_b32 {v(vt+2)}, {v(vt+2)}, {v(vPD+3)}")
    a(f"v_and_b32 {v(vt+2)}, 2, {v(vt+2)}")
    a(f"v_cmp_ne_u32 vcc, 0, {v(vt+2)}")
    a("s_cbranch_vccz K_NOPOLLB")
    a(f"ds_write_b32 {v(vMISC)}, {v(vOne)} offset:{M_SLOW}")
    a("s_waitcnt lgkmcnt(0)")
    stamp(a, 13, vACC, 15)
    a("K_NOPOLLB:")
    a(f"s_cmp_ge_u32 {s(sWAVE)}, {(NLOC+63)//64}")
    a("s_cbranch_scc1 K_NOPERM")
    a(f"v_lshlrev_b32 {v(vt)}, 2, {v(vLane)}")
    a(f"v_add_u32 {v(vt)}, {L_BINS}, {v(vt)}")
    a(f"ds_read_b32 {v(vBC)}, {v(vt)}")
    a("s_waitcnt lgkmcnt(0)")
    a(f"v_mov_b32 {v(vBE)}, {v(vBC)}")
    scan64(a, vBE)
    a(f"v_sub_u32 {v(vBE)}, {v(vBE)}, {v(vBC)}")
    a(f"ds_bpermute_b32 {v(vt)}, {v(vBN)}, {v(vBE)}")
    a(f"v_lshl_or_b32 {v(vDG)}, {v(vDG)}, 16, v0")
    a("s_waitcnt lgkmcnt(0)")
    a(f"v_add_lshl_u32 {v(vt)}, {v(vt)}, {v(vR2)}, 2")
    a(f"v_add_u32 {v(vt)}, {L_PERM}, {v(vt)}")
    a(f"s_mov_b64 exec, {s(sVAL,2)}")
    a(f"ds_write_b32 {v(vt)}, {v(vDG)}")
    a("s_mov_b64 exec, -1")
    a("s_waitcnt lgkmcnt(0)")
    a("K_NOPERM:")
    stamp(a, 14, vACC)
    a("s_barrier")
    stamp(a, 15, vACC)
    stamp(a, 15, vACC, 0, True)
    NB = int(opt("nbuf", 3))
    R2 = Regs(m0, 126)
    vDEN = R2.alloc(8); vNUM = R2.alloc(8); vEA = R2.alloc(8)
    vBUF = [R2.alloc(16, 4) for _ in range(NB)]
    vLa = R2.alloc(4); vLb = R2.alloc(4); vUa = R2.alloc(4); vUb = R2.alloc(4)
    vE = [R2.alloc(2) for _ in range(NB)]
    vREC = R2.alloc(2); vADR = vt
    vU = R2.alloc(4, 4); vXS = R2.alloc(4, 4)
    vINFO = vt + 2; vDEG = vt + 3; vLA = R2.alloc(); vOFF = R2.alloc()
    vPB = 0; vAUB = vLane; vOB = 1
    R.hi = max(R.hi, R2.hi)
    sSGN = sBASE; s128 = sVAL; sKG = sVAL + 1
    a(f"s_brev_b32 {s(sSGN)}, 1")
    a(f"s_movk_i32 {s(s128)}, 128")
    a(f"s_mul_i32 {s(sT0)}, {s(sBK)}, {NPB*256}")
    a(f"v_add_u32 {v(vOB)}, {s(sT0)}, {v(vJ16)}")
    a(f"v_lshrrev_b32 {v(vPB)}, 2, {v(vLane)}")
    a(f"v_lshlrev_b32 {v(vPB)}, 2, {v(vPB)}")
    a(f"v_add_u32 {v(vPB)}, {L_PERM}, {v(vPB)}")
    a(f"v_add_u32 {v(vAUB)}, {L_AU}, {v(vJ16)}")
    sSLOW = sOVF
    a(f"ds_read_b32 {v(vINFO)}, {v(vMISC)} offset:{M_SLOW}")
    a("s_waitcnt lgkmcnt(0)")
    a(f"v_readfirstlane_b32 {s(sSLOW)}, {v(vINFO)}")
    a(f"s_cmp_lg_u32 {s(sSLOW)}, 0")
    a("s_cbranch_scc1 K_SLOW")
    if PRIO: a("s_setprio 3" if (not opt("prio1")) else "s_setprio 2")

    def G(nb, rec=None):
        B = vBUF[nb]
        rec = vREC if rec is None else rec
        a(f"v_mad_u32_u16 {v(vADR)}, {v(rec)}, {s(s128)}, {v(vJ16)}")
        a(f"v_mad_u32_u16 {v(vADR+1)}, {v(rec+1)}, {s(s128)}, {v(vJ16)}")
        if not RAWE:
            a(f"v_and_b32 {v(vE[nb])}, {s(sMHI)}, {v(rec)}")
            a(f"v_and_b32 {v(vE[nb]+1)}, {s(sMHI)}, {v(rec+1)}")
        a(f"buffer_load_dwordx4 {v(B,4)}, {v(vADR)}, {s(rT,4)}, 0 offen")
        a(f"buffer_load_dwordx4 {v(B+4,4)}, {v(vADR)}, {s(rT,4)}, 0 offen offset:64")
        a(f"buffer_load_dwordx4 {v(B+8,4)}, {v(vADR+1)}, {s(rT,4)}, 0 offen")
        a(f"buffer_load_dwordx4 {v(B+12,4)}, {v(vADR+1)}, {s(rT,4)}, 0 offen offset:64")

    def front(B, L, e, hi):
        sel = "op_sel:[1,0,0] op_sel_hi:[1,1,1]" if hi else "op_sel_hi:[0,1,1]"
        prs = [L, L+2, B, B+2]
        a(f"v_lshlrev_b64 {v(L,2)}, 16, {v(B,2)}")
        a(f"v_lshlrev_b64 {v(L+2,2)}, 16, {v(B+2,2)}")
        for i in (2, 3, 0, 1):
            a(pk("fma", prs[i], v(e,2), v(vWC+2*i,2), v(prs[i],2), sel))
        for i in (2, 3, 0, 1):
            a(f"v_exp_f32 {v(prs[i])}, {v(prs[i])}")
            a(f"v_exp_f32 {v(prs[i]+1)}, {v(prs[i]+1)}")
        return prs
    def front2(prs):
        for i in (2, 3, 0, 1):
            a(pk("fma", prs[i], v(vEA+2*i,2), v(prs[i],2), "1.0", "op_sel_hi:[1,1,0]"))

    def Cpair(nb):
        if opt("novalu"): return
        B = vBUF[nb]
        Ba, Va, Bb, Vb = B, B+4, B+8, B+12
        pa = front(Ba, vLa, vE[nb], False)
        pb = front(Bb, vLb, vE[nb], True)
        a(f"v_lshlrev_b64 {v(vUa,2)}, 16, {v(Va,2)}")
        a(f"v_lshlrev_b64 {v(vUa+2,2)}, 16, {v(Va+2,2)}")
        a(f"v_lshlrev_b64 {v(vUb,2)}, 16, {v(Vb,2)}")
        a(f"v_lshlrev_b64 {v(vUb+2,2)}, 16, {v(Vb+2,2)}")
        front2(pa)
        front2(pb)
        qa = [vUa, vUa+2, Va, Va+2]; qb = [vUb, vUb+2, Vb, Vb+2]
        for i in range(4): a(pk("mul", qa[i], v(qa[i],2), v(pb[i],2)))
        for i in range(4): a(pk("fma", qa[i], v(qb[i],2), v(pa[i],2), v(qa[i],2)))
        for i in range(4): a(pk("mul", qb[i], v(pa[i],2), v(pb[i],2)))
        for i in range(4): a(pk("add", pa[i], v(pa[i],2), v(pb[i],2)))
        for i in range(4):
            a(f"v_rcp_f32 {v(qb[i])}, {v(qb[i])}")
            a(f"v_rcp_f32 {v(qb[i]+1)}, {v(qb[i]+1)}")
        for i in range(4): a(pk("fma", vNUM+2*i, v(qa[i],2), v(qb[i],2), v(vNUM+2*i,2)))
        for i in range(4): a(pk("fma", vDEN+2*i, v(pa[i],2), v(qb[i],2), v(vDEN+2*i,2)))

    def Csingle(nb, hi):
        if opt("novalu"): return
        B = vBUF[nb] + (8 if hi else 0)
        V = B + 4
        p = front(B, vLa, vE[nb], hi)
        a(f"v_lshlrev_b64 {v(vUa,2)}, 16, {v(V,2)}")
        front2(p)
        a(f"v_lshlrev_b64 {v(vUa+2,2)}, 16, {v(V+2,2)}")
        for i in (2, 3, 0, 1):
            a(f"v_rcp_f32 {v(p[i])}, {v(p[i])}")
            a(f"v_rcp_f32 {v(p[i]+1)}, {v(p[i]+1)}")
        q = [vUa, vUa+2, V, V+2]
        for i in (2, 3, 0, 1): a(pk("add", vDEN+2*i, v(vDEN+2*i,2), v(p[i],2)))
        for i in (2, 3, 0, 1): a(pk("fma", vNUM+2*i, v(q[i],2), v(p[i],2), v(vNUM+2*i,2)))

    DEP = NB - 1 if not RAWE else NB - 2
    a("K_GROUP:")
    signal(M_Q, vINFO)
    a("s_waitcnt lgkmcnt(0)")
    a(f"v_readfirstlane_b32 {s(sT0)}, {v(vINFO)}")
    a(f"s_cmp_ge_u32 {s(sT0)}, {NGRP}")
    a("s_cbranch_scc1 K_DONE")
    a(f"s_lshl_b32 {s(sT0)}, {s(sT0)}, 6")
    a(f"v_add_u32 {v(vINFO)}, {s(sT0)}, {v(vPB)}")
    a(f"ds_read_b32 {v(vINFO)}, {v(vINFO)}")
    a("s_waitcnt lgkmcnt(0)")
    a(f"v_lshrrev_b32 {v(vDEG)}, 16, {v(vINFO)}")
    a(f"v_and_b32 {v(vINFO)}, 0xffff, {v(vINFO)}")
    a(f"v_mul_u32_u24 {v(vLA)}, {STRIDE*4}, {v(vINFO)}")
    for j in range(DEP):
        a(f"ds_read2_b32 {v(vE[j] if RAWE else vLa+2*j,2)}, {v(vLA)} offset0:{2*j} offset1:{2*j+1}")
    a(f"ds_read2_b32 {v(vE[DEP] if RAWE else vREC,2)}, {v(vLA)} offset0:{2*DEP} offset1:{2*DEP+1}")
    a(f"v_mul_u32_u24 {v(vADR)}, {AUS}, {v(vINFO)}")
    a(f"v_add_u32 {v(vADR)}, {v(vADR)}, {v(vAUB)}")
    a(f"ds_read_b128 {v(vEA+4,4)}, {v(vADR)}")
    a(f"ds_read_b128 {v(vU,4)}, {v(vADR)} offset:64")
    a(f"v_readlane_b32 {s(sMAX)}, {v(vDEG)}, 0")
    a(f"v_readlane_b32 {s(sMIN)}, {v(vDEG)}, 63")
    a(f"v_lshl_add_u32 {v(vOFF)}, {v(vINFO)}, 8, {v(vOB)}")
    a(f"v_sub_u32 {v(vINFO)}, {NPB-1}, {v(vINFO)}")
    a(f"v_and_or_b32 {v(vOFF)}, {v(vINFO)}, {s(sSGN)}, {v(vOFF)}")
    a(f"buffer_load_dwordx4 {v(vXS,4)}, {v(vOFF)}, {s(rX,4)}, {s(sSL64)} offen")
    for j in range(DEP):
        a(f"s_waitcnt lgkmcnt({DEP - j + 2})")
        G(j, vE[j] if RAWE else vLa + 2*j)
    a("s_waitcnt lgkmcnt(1)")
    a(f"v_lshlrev_b64 {v(vEA,2)}, 16, {v(vEA+4,2)}")
    a(f"v_lshlrev_b64 {v(vEA+2,2)}, 16, {v(vEA+6,2)}")
    a(f"v_mov_b32 {v(vDEN)}, {hx(fbits(1e-6))}")
    a(f"v_mov_b32 {v(vDEN+1)}, {v(vDEN)}")
    for d in range(2, 8, 2): a(f"v_mov_b64 {v(vDEN+d,2)}, {v(vDEN,2)}")
    for d in range(0, 8, 2): a(f"v_mov_b64 {v(vNUM+d,2)}, 0")
    a(f"s_mov_b32 {s(sK)}, 0")
    a(f"s_sub_u32 {s(sKG)}, {s(sMAX)}, {2*DEP}")
    sKP = 24
    if (not opt("prio1")): a(f"s_sub_u32 {s(sKP)}, {s(sMAX)}, {opt('p2a', 6)}")
    a(f"s_cmp_eq_u32 {s(sMAX)}, 0")
    a("s_cbranch_scc1 K_EPI0")
    a("K_LOOP:")
    for cur in range(NB):
        if (not opt("prio1")):
            a(f"s_cmp_ge_i32 {s(sK)}, {s(sKP)}")
            a(f"s_cbranch_scc1 K_PRI{cur}")
            a(f"K_PRB{cur}:")
        a(f"s_cmp_lt_i32 {s(sK)}, {s(sKG)}")
        a(f"s_cbranch_scc0 K_NOG{cur}")
        a("s_waitcnt lgkmcnt(0)")
        G((cur + DEP) % NB, vE[(cur + DEP) % NB] if RAWE else None)
        a(f"ds_read2_b32 {v(vE[(cur + DEP + 1) % NB] if RAWE else vREC,2)}, {v(vLA)} offset0:{2*(DEP+1+cur)} offset1:{2*(DEP+1+cur)+1}")
        if cur == NB - 1: a(f"v_add_u32 {v(vLA)}, {8*NB}, {v(vLA)}")
        a(f"s_waitcnt vmcnt({4*DEP})")
        a(f"K_GOT{cur}:")
        a(f"s_add_u32 {s(sT0)}, {s(sK)}, 2")
        a(f"s_cmp_le_u32 {s(sT0)}, {s(sMIN)}")
        a(f"s_cbranch_scc0 K_TAIL{cur}")
        Cpair(cur)
        a(f"K_NEXT{cur}:")
        a(f"s_add_u32 {s(sK)}, {s(sK)}, 2")
        a(f"s_cmp_ge_u32 {s(sK)}, {s(sMAX)}")
        a("s_cbranch_scc1 K_EPI" if cur < NB - 1 else "s_cbranch_scc0 K_LOOP")
    a("K_EPI:")
    a("s_mov_b64 exec, -1")
    a("s_waitcnt lgkmcnt(0)")
    for d in range(8): a(f"v_rcp_f32 {v(vDEN+d)}, {v(vDEN+d)}")
    Xu = vLa
    assert vLb == vLa + 4
    Up = [vUa, vUa+2, vU, vU+2]
    for d in range(4):
        a(f"v_lshlrev_b32 {v(vUa+d)}, 16, {v(vU+d)}")
        a(f"v_and_b32 {v(vU+d)}, {s(sMHI)}, {v(vU+d)}")
        a(f"v_lshlrev_b32 {v(Xu+d)}, 16, {v(vXS+d)}")
        a(f"v_and_b32 {v(Xu+4+d)}, {s(sMHI)}, {v(vXS+d)}")
    for i in range(4): a(pk("fma", Up[i], v(vNUM+2*i,2), v(vDEN+2*i,2), v(Up[i],2)))
    for i in range(4):
        a(f"v_max_f32 {v(Up[i])}, 0, {v(Up[i])}")
        a(f"v_max_f32 {v(Up[i]+1)}, 0, {v(Up[i]+1)}")
    for i in range(4): a(pk("add", Up[i], v(Up[i],2), v(Xu+2*i,2)))
    for d in range(4): a(f"v_cvt_pk_bf16_f32 {v(vNUM+d)}, {v(vUa+d)}, {v(vU+d)}")
    a(f"buffer_store_dwordx4 {v(vNUM,4)}, {v(vOFF)}, {s(rA,4)}, {s(sSL64)} offen{OSC}")
    if PRIO: a("s_setprio 2" if (not opt("prio1")) else "s_setprio 0")
    a(f"s_cmp_eq_u32 {s(sSLOW)}, 0")
    a("s_cbranch_scc1 K_GROUP")
    a("s_branch K_SNEXT")
    a("K_EPI0:")
    a("s_waitcnt vmcnt(0)")
    a("s_branch K_EPI")
    for cur in range(NB):
        if (not opt("prio1")):
            a(f"K_PRI{cur}:")
            a(f"ds_read_b32 {v(vLb)}, {v(vMISC)} offset:{M_Q}")
            a(f"s_sub_u32 {s(sT1)}, {s(sMAX)}, {s(sK)}")
            a("s_waitcnt lgkmcnt(0)")
            a(f"v_readfirstlane_b32 {s(sT0)}, {v(vLb)}")
            a(f"s_cmp_lt_u32 {s(sT0)}, {NGRP}")
            a(f"s_cbranch_scc1 K_PRB{cur}")
            a("s_setprio 1")
            a(f"s_cmp_gt_u32 {s(sT1)}, {opt('p2b', 2)}")
            a(f"s_cbranch_scc1 K_PRB{cur}")
            a("s_setprio 0")
            a(f"s_branch K_PRB{cur}")
        a(f"K_NOG{cur}:")
        if DEP >= 2:
            a(f"s_add_u32 {s(sT0)}, {s(sK)}, 2")
            a(f"s_cmp_lt_u32 {s(sT0)}, {s(sMAX)}")
            a(f"s_cbranch_scc0 K_NOGZ{cur}")
            a("s_waitcnt vmcnt(4)")
            a(f"s_branch K_GOT{cur}")
            a(f"K_NOGZ{cur}:")
        a("s_waitcnt vmcnt(0)")
        a(f"s_branch K_GOT{cur}")
        a(f"K_TAIL{cur}:")
        a(f"v_cmpx_lt_u32 vcc, {s(sK)}, {v(vDEG)}")
        Csingle(cur, False)
        a(f"s_add_u32 {s(sT0)}, {s(sK)}, 1")
        a(f"s_cmp_ge_u32 {s(sT0)}, {s(sMAX)}")
        a("s_cbranch_scc1 K_EPI")
        a(f"v_cmpx_lt_u32 vcc, {s(sT0)}, {v(vDEG)}")
        Csingle(cur, True)
        a(f"s_branch K_NEXT{cur}")
    sG, sSEG, sLEN, sBS, sI, sN, sR, sL = 16, 17, 18, 19, 20, 21, 22, 23
    vSR, vSLc, vSI, vSA = vBUF[1], vBUF[1] + 1, vBUF[1] + 2, vBUF[1] + 3
    vMY = vLA
    B = vBUF[0]
    a("K_SLOW:")
    a(f"s_mov_b32 {s(sG)}, {s(sWAVE)}")
    a(f"v_mbcnt_lo_u32_b32 {v(vSI)}, -1, 0")
    a(f"v_mbcnt_hi_u32_b32 {v(vSI)}, -1, {v(vSI)}")
    a("K_SGRP:")
    a(f"s_lshl_b32 {s(sT0)}, {s(sG)}, 4")
    a(f"v_lshrrev_b32 {v(vMY)}, 2, {v(vSI)}")
    a(f"v_add_u32 {v(vMY)}, {s(sT0)}, {v(vMY)}")
    a(f"v_mul_u32_u24 {v(vADR)}, {AUS}, {v(vMY)}")
    a(f"v_add_u32 {v(vADR)}, {v(vADR)}, {v(vAUB)}")
    a(f"ds_read_b128 {v(vEA+4,4)}, {v(vADR)}")
    a(f"ds_read_b128 {v(vU,4)}, {v(vADR)} offset:64")
    a(f"ds_read_b32 {v(vSA)}, {v(vMISC)} offset:{M_RAW}")
    a(f"v_lshl_add_u32 {v(vOFF)}, {v(vMY)}, 8, {v(vOB)}")
    a(f"v_sub_u32 {v(vINFO)}, {NPB-1}, {v(vMY)}")
    a(f"v_and_or_b32 {v(vOFF)}, {v(vINFO)}, {s(sSGN)}, {v(vOFF)}")
    a(f"buffer_load_dwordx4 {v(vXS,4)}, {v(vOFF)}, {s(rX,4)}, {s(sSL64)} offen")
    for d in range(8):
        a(f"v_mov_b32 {v(vDEN+d)}, {hx(fbits(1e-6))}")
        a(f"v_mov_b32 {v(vNUM+d)}, 0")
    a("s_waitcnt lgkmcnt(0)")
    a(f"v_readfirstlane_b32 {s(sT0)}, {v(vSA)}")
    a(f"v_lshlrev_b64 {v(vEA,2)}, 16, {v(vEA+4,2)}")
    a(f"v_lshlrev_b64 {v(vEA+2,2)}, 16, {v(vEA+6,2)}")
    a(f"s_lshr_b32 {s(sT1)}, {s(sG)}, 1")
    a(f"s_bitcmp1_b32 {s(sT0)}, {s(sT1)}")
    a("s_cbranch_scc1 K_SRAW")
    for d in range(8): a(f"v_log_f32 {v(vEA+d)}, {v(vEA+d)}")
    a("K_SRAW:")
    a(f"s_mov_b32 {s(sSEG)}, 0")
    a("K_SSEG:")
    a(f"s_lshl_b32 {s(sT0)}, {s(sSEG)}, 2")
    a(f"s_add_u32 {s(sT0)}, {s(sT0)}, {L_DESC}")
    a(f"v_mov_b32 {v(vSA)}, {s(sT0)}")
    a(f"ds_read_b32 {v(vSA)}, {v(vSA)}")
    a("s_waitcnt lgkmcnt(0)")
    a(f"v_readfirstlane_b32 {s(sBS)}, {v(vSA)}")
    a(f"s_lshr_b32 {s(sLEN)}, {s(sBS)}, 16")
    a(f"s_and_b32 {s(sBS)}, {s(sBS)}, 0xffff")
    a("K_SBLK:")
    a(f"s_cmp_eq_u32 {s(sLEN)}, 0")
    a("s_cbranch_scc1 K_SSEGN")
    a(f"s_lshl_b32 {s(sT0)}, {s(sSEG)}, 13")
    a(f"v_add_u32 {v(vSA)}, {s(sBS)}, {v(vSI)}")
    a(f"v_lshlrev_b32 {v(vADR)}, 2, {v(vSA)}")
    a(f"v_add_u32 {v(vSA)}, {LOC0}, {v(vSA)}")
    a(f"buffer_load_dword {v(vSR)}, {v(vADR)}, {s(rREC,4)}, {s(sT0)} offen")
    a(f"buffer_load_ubyte {v(vSLc)}, {v(vSA)}, {s(rREC,4)}, {s(sT0)} offen")
    a(f"s_min_u32 {s(sN)}, {s(sLEN)}, 64")
    a(f"s_sub_u32 {s(sLEN)}, {s(sLEN)}, {s(sN)}")
    a(f"s_add_u32 {s(sBS)}, {s(sBS)}, 64")
    a(f"s_mov_b32 {s(sI)}, 0")
    a("s_waitcnt vmcnt(0)")
    a(f"v_bfe_u32 {v(vSA)}, {v(vSR)}, 15, 1")
    a(f"v_lshl_or_b32 {v(vSLc)}, {v(vSA)}, 8, {v(vSLc)}")
    a("s_nop 0")
    a("K_SREC:")
    a(f"v_readlane_b32 {s(sL)}, {v(vSLc)}, {s(sI)}")
    a(f"s_lshr_b32 {s(sT0)}, {s(sL)}, 4")
    a(f"s_cmp_lg_u32 {s(sT0)}, {s(sG)}")
    a("s_cbranch_scc1 K_SRECN")
    a(f"v_readlane_b32 {s(sR)}, {v(vSR)}, {s(sI)}")
    a(f"s_and_b32 {s(sT0)}, {s(sR)}, 0x7fff")
    a(f"s_lshl_b32 {s(sT0)}, {s(sT0)}, 7")
    a(f"s_and_b32 {s(sR)}, {s(sR)}, {s(sMHI) if not RAWE else '0xffff7fff'}")
    a(f"v_add_u32 {v(vADR)}, {s(sT0)}, {v(vJ16)}")
    a(f"v_mov_b32 {v(vE[0])}, {s(sR)}")
    a(f"v_cmpx_eq_u32 vcc, {s(sL)}, {v(vMY)}")
    a(f"buffer_load_dwordx4 {v(B,4)}, {v(vADR)}, {s(rT,4)}, 0 offen")
    a(f"buffer_load_dwordx4 {v(B+4,4)}, {v(vADR)}, {s(rT,4)}, 0 offen offset:64")
    a("s_waitcnt vmcnt(0)")
    prs = [vLa, vLa+2, B, B+2]; q = [vUa, vUa+2, B+4, B+6]
    a(f"v_lshlrev_b64 {v(vLa,2)}, 16, {v(B,2)}")
    a(f"v_lshlrev_b64 {v(vLa+2,2)}, 16, {v(B+2,2)}")
    a(f"v_lshlrev_b64 {v(vUa,2)}, 16, {v(B+4,2)}")
    a(f"v_lshlrev_b64 {v(vUa+2,2)}, 16, {v(B+6,2)}")
    for i in range(4): a(pk("add", prs[i], v(prs[i],2), v(vEA+2*i,2)))
    for i in range(4): a(pk("fma", prs[i], v(vE[0],2), v(vWC+2*i,2), v(prs[i],2), "op_sel_hi:[0,1,1]"))
    for i in range(4):
        a(f"v_exp_f32 {v(prs[i])}, {v(prs[i])}")
        a(f"v_exp_f32 {v(prs[i]+1)}, {v(prs[i]+1)}")
    for i in range(4): a(pk("add", prs[i], v(prs[i],2), "1.0", None, "op_sel_hi:[1,0]"))
    for i in range(4):
        a(f"v_rcp_f32 {v(prs[i])}, {v(prs[i])}")
        a(f"v_rcp_f32 {v(prs[i]+1)}, {v(prs[i]+1)}")
    for i in range(4): a(pk("add", vDEN+2*i, v(vDEN+2*i,2), v(prs[i],2)))
    for i in range(4): a(pk("fma", vNUM+2*i, v(q[i],2), v(prs[i],2), v(vNUM+2*i,2)))
    a("s_mov_b64 exec, -1")
    a("K_SRECN:")
    a(f"s_add_u32 {s(sI)}, {s(sI)}, 1")
    a(f"s_cmp_lt_u32 {s(sI)}, {s(sN)}")
    a("s_cbranch_scc1 K_SREC")
    a("s_branch K_SBLK")
    a("K_SSEGN:")
    a(f"s_add_u32 {s(sSEG)}, {s(sSEG)}, 1")
    a(f"s_cmp_lt_u32 {s(sSEG)}, 256")
    a("s_cbranch_scc1 K_SSEG")
    a("s_branch K_EPI0")
    a("K_SNEXT:")
    a(f"s_add_u32 {s(sG)}, {s(sG)}, 16")
    a(f"s_cmp_lt_u32 {s(sG)}, {NGRP}")
    a("s_cbranch_scc1 K_SGRP")
    a("K_DONE:")
    stamp(a, 16, vLa, None)
    stamp(a, 16, vLa, None, True)
    a("K_END:")
    a("s_endpgm")
    return R.hi

def main():
    a = Asm()
    hdr = open("standalone__edge_featured_mpnn_gatedgcn__graph.s.ref").read().split("\n")
    for l in hdr:
        if l.startswith("; Override"): break
        a.raw(l)
    if ASLIST:
        a.raw(f"; @launch kernel={KNAME} grid=({NWG},1,1) block=(1024,1,1) lds={L_END}")
    else:
        a.raw(f"; @launch grid=({NWG},1,1) block=(1024,1,1) lds={L_END}")
    a.raw('.amdgcn_target "amdgcn-amd-amdhsa--gfx950"')
    a.raw(".text")
    nv = gen(a)
    a.raw('.section .rodata,"a"')
    a.raw(".p2align 6")
    a.raw(f".amdhsa_kernel {KNAME}")
    a.raw(f"  .amdhsa_next_free_vgpr {nv}")
    a.raw(f"  .amdhsa_next_free_sgpr 102")
    a.raw(f"  .amdhsa_accum_offset {(nv+3)//4*4}")
    a.raw(f"  .amdhsa_group_segment_fixed_size 0")
    a.raw(f"  .amdhsa_kernarg_size 96")
    a.raw(f"  .amdhsa_user_sgpr_count 2")
    a.raw(f"  .amdhsa_user_sgpr_kernarg_segment_ptr 1")
    a.raw(f"  .amdhsa_system_sgpr_workgroup_id_x 1")
    a.raw(f".end_amdhsa_kernel")
    out = [x for x in sys.argv[1:] if not x.startswith("--")]
    open(out[0] if out else "out.s", "w").write(a.text())
    print("vgprs", nv, "lds", L_END, file=sys.stderr)

main()
```

```python
import sys, math
from asmlib import *

def opt(name, default=None):
    for x in sys.argv[1:]:
        if x == "--" + name: return True
        if x.startswith("--" + name + "="): return x.split("=", 1)[1]
    return default

KNAME = "standalone__edge_featured_mpnn_gatedgcn__graph_kernel"
N, E, D = 25000, 400000, 128
NWG = 256
CH = 1568
CHB = 8192
CAPR = 1632
LOC0 = CAPR * 4
TS = 25024 * 128
WS_T, WS_REC, WS_DESC, WS_STAMP, WS_FLAG = 0, 0x00D00000, 0x01100000, 0x01200000, 0x01300000
LOG2E = 1.4426950408889634
STRIDE = 41
NLOC = 400
NGRP = NLOC // 16
AUS = 144
NPB = 391
MAGIC = 42909
STAMPS = opt("stamps", False)
OSC = {"plain": "", "sc1": " sc1", "nt": " nt"}[opt("osc", "sc1")]
PRIO = not opt("noprio")
ASLIST = opt("aslist", False)
WSBASE = int(opt("wsbase", 0)) << 20
XNT = " nt" if opt("xnt") else " sc1" if opt("xsc1") else ""
RNT = " nt" if opt("rnt") else ""
SLP = int(opt("sleep", 2))
RAWE = not opt("exacte")

L_LIST = 0
L_STAGE = 0
L_AU = NLOC * STRIDE * 4
L_WL = L_AU + 416 * AUS
L_Z = L_WL + 32768
L_CNT = L_Z
L_BINS = L_CNT + 416 * 4
L_CNTA = L_BINS + 256
L_MISC = L_CNTA + 256
M_Q, M_HS1, M_HS2, M_HS3, M_WRDY, M_XL, M_GCNT, M_DRDY, M_BQ, M_TAG, M_SLOW, M_BAD, M_RAW, M_BRDY = range(0, 56, 4)
LIM_A, LIM_B, LIM_E, LIM_V = 19.0, 19.0, 24.5, 2.0**60
L_ZEND = L_MISC + 64
L_PERM = L_ZEND
L_DESC = L_PERM + NLOC * 4
L_END = L_DESC + 1024
assert L_AU % 16 == 0 and L_WL % 16 == 0 and L_END <= 163840, L_END

sWG, sWAVE, sSL, sBK = 2, 3, 4, 5
sT0, sT1, sT2, sT3 = 6, 7, 8, 9
sVAL, sOVF = 10, 12
sK, sMAX = 14, 15
pX, pE, pSRC, pDST, pWA, pWB, pWC, pWU, pWV, pOUT, pDBG, pWS = 16, 18, 20, 22, 24, 26, 28, 30, 32, 34, 36, 38
rX, rW, rT, rREC, rDESC, rA, rB, rC = 40, 44, 48, 52, 56, 60, 64, 68
sMHI, sM7F0, sM7FF, sTINY, sPERM, sNL2E, sMIN, sBASE = 72, 73, 74, 75, 76, 77, 78, 79
sMSK = 80
sVAL2 = 80
sST, rST = 96, 98
sSL64, sSPIN, sTILE, sXS = 0, 1, 100, 101
sTAG = 32
sPEND = 33
rFLG, rDBG = rB, rC

def srd(a, r, p, nbytes, add=None):
    if add is None:
        a(f"s_mov_b32 {s(r)}, {s(p)}")
        a(f"s_and_b32 {s(r+1)}, {s(p+1)}, 0xffff")
    else:
        a(f"s_add_u32 {s(r)}, {s(p)}, {add}")
        a(f"s_addc_u32 {s(r+1)}, {s(p+1)}, 0")
        a(f"s_and_b32 {s(r+1)}, {s(r+1)}, 0xffff")
    a(f"s_mov_b32 {s(r+2)}, {hx(nbytes)}")
    a(f"s_mov_b32 {s(r+3)}, 0x20000")

def stamp(a, idx, vt, wave=0, clk=False):
    if not STAMPS: return
    l = a.uid("ST")
    if wave is not None and wave >= 0:
        a(f"s_cmp_lg_u32 {s(sWAVE)}, {wave}")
        a(f"s_cbranch_scc1 {l}")
    a(f"s_memrealtime {s(sST,2)}" if not clk else f"s_memtime {s(sST,2)}")
    a(f"s_waitcnt lgkmcnt(0)")
    a(f"s_mov_b64 {s(rST,2)}, exec")
    a(f"s_mov_b64 exec, 1")
    a(f"v_mov_b32 {v(vt)}, {s(sST)}")
    a(f"v_mov_b32 {v(vt+1)}, {s(sST+1)}")
    a(f"s_lshl_b32 {s(sST)}, {s(sWG)}, 8")
    if wave is None:
        a(f"s_lshl_b32 {s(sST+1)}, {s(sWAVE)}, 3")
        a(f"s_add_u32 {s(sST)}, {s(sST)}, {s(sST+1)}")
    a(f"s_add_u32 {s(sST)}, {s(sST)}, {WS_STAMP + idx*8 + (0x10000 if clk else 0)}")
    a(f"v_mov_b32 {v(vt+2)}, {s(sST)}")
    a(f"global_store_dwordx2 {v(vt+2)}, {v(vt,2)}, {s(pWS,2)}")
    a(f"s_mov_b64 exec, {s(rST,2)}")
    a(f"{l}:")

def scan64(a, r):
    for sh in (1, 2, 4, 8):
        a("s_nop 1")
        a(f"v_add_u32_dpp {v(r)}, {v(r)}, {v(r)} row_shr:{sh} row_mask:0xf bank_mask:0xf")
    a("s_nop 1")
    a(f"v_add_u32_dpp {v(r)}, {v(r)}, {v(r)} row_bcast:15 row_mask:0xa bank_mask:0xf")
    a("s_nop 1")
    a(f"v_add_u32_dpp {v(r)}, {v(r)}, {v(r)} row_bcast:31 row_mask:0xc bank_mask:0xf")

def tr_reads(a, mat, vTR, vWF):
    for t in range(8):
        for q in range(2):
            a(f"ds_read_b64_tr_b16 {v(vWF+4*t+2*q,2)}, {v(vTR)} offset:{mat*8192 + t*1024 + q*256}")

def mfma_chain(a, vWF, vX, vACC):
    for t in range(8):
        c = "0" if t == 0 else v(vACC, 16)
        a(f"v_mfma_f32_32x32x16_bf16 {v(vACC,16)}, {v(vWF+4*t,4)}, {v(vX+4*t,4)}, {c}")

def pack_chain(a, vIN, vOUT, vTMP, vBIG):
    G = range(4)
    m = lambda g: vTMP + g
    t = lambda g: vTMP + 4 + g
    sd = "dst_sel:DWORD dst_unused:UNUSED_PAD src0_sel:DWORD"
    for g in G: a(f"v_cvt_pk_bf16_f32 {v(vOUT+2*g)}, {v(vIN+4*g)}, {v(vIN+4*g+1)}")
    for g in G: a(f"v_med3_f32 {v(m(g))}, |{v(vIN+4*g+1)}|, {s(sTINY)}, {v(vBIG)}")
    for g in G: a(f"v_med3_f32 {v(t(g))}, |{v(vIN+4*g+2)}|, {s(sTINY)}, {v(vBIG)}")
    for g in G: a(f"v_add_u32 {v(m(g))}, 0x8000, {v(m(g))}")
    for g in G: a(f"v_add_u32 {v(t(g))}, 0x8000, {v(t(g))}")
    for g in G: a(f"v_sub_u32_sdwa {v(m(g))}, {v(m(g))}, {v(vOUT+2*g)} {sd} src1_sel:WORD_0")
    for g in G: a(f"v_bfi_b32 {v(vOUT+2*g)}, {s(sM7F0)}, {v(m(g))}, {v(vOUT+2*g)}")
    for g in G: a(f"v_med3_f32 {v(m(g))}, |{v(vIN+4*g+3)}|, {s(sTINY)}, {v(vBIG)}")
    for g in G: a(f"v_sub_u32_sdwa {v(t(g))}, {v(t(g))}, {v(vOUT+2*g)} {sd} src1_sel:WORD_1")
    for g in G: a(f"v_add_u32 {v(m(g))}, 0x8000, {v(m(g))}")
    for g in G: a(f"v_bfi_b32 {v(t(g))}, {s(sM7FF)}, {v(t(g))}, {v(vIN+4*g+2)}")
    for g in G: a(f"v_sub_u32_sdwa {v(m(g))}, {v(m(g))}, {v(t(g))} {sd} src1_sel:WORD_1")
    for g in G: a(f"v_perm_b32 {v(t(g))}, {v(vIN+4*g+3)}, {v(t(g))}, {s(sPERM)}")
    for g in G: a(f"v_bfi_b32 {v(vOUT+2*g+1)}, {s(sM7F0)}, {v(m(g))}, {v(t(g))}")

def pk(op, d, a0, b0, c0=None, sel=None):
    ops = f"{v(d,2)}, {a0}, {b0}" + (f", {c0}" if c0 else "")
    return f"v_pk_{op}_f32 {ops}" + (f" {sel}" if sel else "")

def gen(a):
    R = Regs(1, 128)
    vt = R.alloc(4)
    vLane = R.alloc(); vOne = R.alloc(); vJ16 = R.alloc(); vMISC = R.alloc()
    vWC = R.alloc(8)
    m0 = R.mark()
    vAUa = R.alloc(); vTR = R.alloc(); vBIG = R.alloc(); vXA = R.alloc(); vXV = R.alloc(); vXB = R.alloc(); vFA = R.alloc(4)
    vO = R.alloc(16, 4); vTM = vO + 8
    vX = R.alloc(32, 4); vWF = R.alloc(32, 4); vACC = R.alloc(16, 4)

    def signal(off, ret=None):
        a("s_mov_b64 exec, 1")
        if ret is None: a(f"ds_add_u32 {v(vMISC)}, {v(vOne)} offset:{off}")
        else: a(f"ds_add_rtn_u32 {v(ret)}, {v(vMISC)}, {v(vOne)} offset:{off}")
        a("s_mov_b64 exec, -1")
    def spin(off, target, vtmp):
        l = a.uid("SP"); d = a.uid("SPD")
        a(f"s_mov_b32 {s(sSPIN)}, 0x400000")
        a(f"{l}:")
        a(f"ds_read_b32 {v(vtmp)}, {v(vMISC)} offset:{off}")
        a("s_waitcnt lgkmcnt(0)")
        a(f"v_readfirstlane_b32 {s(sT0)}, {v(vtmp)}")
        a(f"s_cmp_ge_u32 {s(sT0)}, {target}")
        a(f"s_cbranch_scc1 {d}")
        a("s_sleep 1")
        a(f"s_sub_u32 {s(sSPIN)}, {s(sSPIN)}, 1")
        a(f"s_cbranch_scc0 {l}")
        a(f"{d}:")
    def x_setup():
        a(f"v_lshrrev_b32 {v(vXV)}, 3, {v(vLane)}")
        a(f"v_lshrrev_b32 {v(vXA)}, 4, {v(vLane)}")
        a(f"v_and_b32 {v(vXB)}, 7, {v(vLane)}")
        a(f"v_xor_b32 {v(vXB)}, {v(vXB)}, {v(vXA)}")
        a(f"v_lshlrev_b32 {v(vXB)}, 4, {v(vXB)}")
        a(f"s_lshl_b32 {s(sT0)}, {s(sTILE)}, 5")
        a(f"v_add_u32 {v(vXV)}, {s(sT0)}, {v(vXV)}")
        a(f"s_mul_i32 {s(sT0)}, {s(sBK)}, {NPB*256}")
        a(f"v_lshl_add_u32 {v(vXA)}, {v(vXV)}, 8, {s(sT0)}")
        a(f"v_sub_u32 {v(vXV)}, {NPB-1}, {v(vXV)}")
    def x_round(rnd, vA):
        a(f"s_mov_b32 m0, {s(sXS)}")
        a(f"s_brev_b32 {s(sT1)}, 1")
        for i in range(4):
            a(f"v_xor_b32 {v(vA)}, {(i&1)*64}, {v(vXB)}")
            a(f"v_add_u32 {v(vA+1)}, {i*2048 + rnd*128}, {v(vXA)}")
            a(f"v_add_u32 {v(vA)}, {v(vA)}, {v(vA+1)}")
            a(f"v_subrev_u32 {v(vA+1)}, {8*i}, {v(vXV)}")
            a(f"v_and_or_b32 {v(vA)}, {v(vA+1)}, {s(sT1)}, {v(vA)}")
            a(f"buffer_load_dwordx4 {v(vA)}, {s(rX,4)}, 0 offen{XNT} lds")
            if i < 3: a(f"s_add_u32 m0, m0, 1024")
    def tagpoll_issue(vA, vD, n, rr, step, sP):
        for i in range(4):
            l = a.uid("PA")
            a(f"s_mov_b64 exec, {s(sP+2*i,2)}")
            a(f"s_cbranch_execz {l}")
            a(f"s_mov_b32 {s(sT0)}, {i*step}")
            a(f"buffer_load_dword{'x2' if n == 2 else ''} {v(vD+n*i,n)}, {v(vA)}, {s(rr,4)}, {s(sT0)} offen sc1")
            a(f"{l}:")
        a("s_mov_b64 exec, -1")
    def tagpoll(vA, vD, n, rr, step, sP, issued=False, vtmp=None):
        l = a.uid("TP"); c = a.uid("TPC"); d = a.uid("TPD")
        a(f"s_mov_b32 {s(sSPIN)}, 0x100000")
        if issued: a(f"s_branch {c}")
        a(f"{l}:")
        tagpoll_issue(vA, vD, n, rr, step, sP)
        a(f"{c}:")
        a("s_waitcnt vmcnt(0)")
        for i in range(4):
            if vtmp is None:
                a(f"v_cmp_ne_u32 {s(sP+2*i,2)}, {s(sTAG)}, {v(vD+n*i+n-1)}")
            else:
                a(f"v_and_b32 {v(vtmp)}, -3, {v(vD+n*i+n-1)}")
                a(f"v_cmp_ne_u32 {s(sP+2*i,2)}, {s(sTAG)}, {v(vtmp)}")
        a(f"s_or_b64 {s(sT2,2)}, {s(sP,2)}, {s(sP+2,2)}")
        a(f"s_or_b64 vcc, {s(sP+4,2)}, {s(sP+6,2)}")
        a(f"s_or_b64 vcc, vcc, {s(sT2,2)}")
        a(f"s_cbranch_vccz {d}")
        a(f"s_sleep {SLP}")
        a(f"s_sub_u32 {s(sSPIN)}, {s(sSPIN)}, 1")
        a(f"s_cbranch_scc0 {l}")
        a(f"{d}:")

    a.raw(f".globl {KNAME}")
    a.raw(".p2align 8")
    a.raw(f".type {KNAME},@function")
    a.raw(f"{KNAME}:")
    a(f"s_cmp_ge_u32 s2, {NWG}")
    a(f"s_cbranch_scc1 K_END")
    a("s_load_dwordx16 s[16:31], s[0:1], 0")
    a("s_load_dwordx8 s[32:39], s[0:1], 64")
    a(f"v_lshrrev_b32 v1, 6, v0")
    a(f"s_and_b32 {s(sSL)}, s2, 3")
    a(f"v_readfirstlane_b32 {s(sWAVE)}, v1")
    a(f"s_lshr_b32 {s(sBK)}, s2, 2")
    a(f"v_and_b32 {v(vLane)}, 63, v0")
    if not opt("nocpf"):
        a(f"s_cmp_lg_u32 {s(sWAVE)}, 15")
        a("s_cbranch_scc1 K_NOCPF")
        a(f"s_getpc_b64 {s(sT2,2)}")
        a("K_PC:")
        a(f"s_mov_b32 {s(sT0)}, K_END-K_PC")
        a(f"v_lshlrev_b32 v127, 7, {v(vLane)}")
        a(f"global_load_dword v126, v127, {s(sT2,2)}")
        a(f"v_add_u32 v127, 0x2000, v127")
        a(f"v_cmp_gt_u32 vcc, {s(sT0)}, v127")
        a("s_mov_b64 exec, vcc")
        a(f"global_load_dword v126, v127, {s(sT2,2)}")
        a("s_mov_b64 exec, -1")
        a("K_NOCPF:")
        R.hi = 128
    a(f"v_mov_b32 {v(vOne)}, 1")
    a(f"v_mov_b32 {v(vMISC)}, {L_MISC}")
    nz = (L_ZEND - L_Z) // 4
    a(f"v_lshlrev_b32 {v(vt)}, 2, v0")
    a(f"v_add_u32 {v(vt)}, {L_Z}, {v(vt)}")
    a(f"v_mov_b32 {v(vt+1)}, 0")
    a(f"v_cmp_gt_u32 vcc, {nz}, v0")
    a("s_mov_b64 exec, vcc")
    a(f"ds_write_b32 {v(vt)}, {v(vt+1)}")
    a("s_mov_b64 exec, -1")
    a(f"v_and_b32 {v(vJ16)}, 3, v0")
    a(f"v_lshlrev_b32 {v(vJ16)}, 4, {v(vJ16)}")
    a(f"s_sub_u32 {s(sTILE)}, {s(sWAVE)}, 4")
    a(f"s_cselect_b32 {s(sTILE)}, 12, {s(sTILE)}")
    a(f"s_mul_i32 {s(sXS)}, {s(sTILE)}, {32*AUS}")
    a(f"s_add_u32 {s(sXS)}, {s(sXS)}, {L_AU}")
    x_setup()
    a("s_waitcnt lgkmcnt(0)")
    if WSBASE:
        a(f"s_add_u32 {s(pWS)}, {s(pWS)}, {WSBASE}")
        a(f"s_addc_u32 {s(pWS+1)}, {s(pWS+1)}, 0")
    a(f"s_lshl_b32 {s(sSL64)}, {s(sSL)}, 6")
    stamp(a, 0, vACC)
    srd(a, rX, pX, N*256)
    a(f"s_cmp_ge_u32 {s(sWAVE)}, 4")
    a("s_cbranch_scc1 K_G0")
    vD8 = vX; vS8 = vX + 8; vE4 = vX + 16; vRK = vX + 20; vKY = vWF; vRP = vWF + 8; vCN = vWF + 24; vEX = vWF + 26
    a("s_setprio 3")
    a(f"s_or_b32 {s(sT0)}, s2, {s(sWAVE)}")
    a("s_cbranch_scc1 K_NOTAG")
    a(f"s_memrealtime {s(sT2,2)}")
    a("s_waitcnt lgkmcnt(0)")
    a(f"s_lshl_b32 {s(sT2)}, {s(sT2)}, 2")
    a(f"s_or_b32 {s(sT2)}, {s(sT2)}, 1")
    a(f"v_mov_b32 {v(vt)}, {s(sT2)}")
    a("s_mov_b64 exec, 1")
    a(f"global_store_dword {v(vt+1)}, {v(vt)}, {s(pDBG,2)} sc1")
    a("s_mov_b64 exec, -1")
    a("K_NOTAG:")
    a(f"s_cmp_eq_u32 {s(sWAVE)}, 1")
    a(f"s_cselect_b32 {s(rW)}, {s(pWV)}, {s(pWB)}")
    a(f"s_cselect_b32 {s(rW+1)}, {s(pWV+1)}, {s(pWB+1)}")
    a(f"s_cmp_eq_u32 {s(sWAVE)}, 2")
    a(f"s_cselect_b32 {s(rW)}, {s(pWA)}, {s(rW)}")
    a(f"s_cselect_b32 {s(rW+1)}, {s(pWA+1)}, {s(rW+1)}")
    a(f"s_cmp_eq_u32 {s(sWAVE)}, 3")
    a(f"s_cselect_b32 {s(rW)}, {s(pWU)}, {s(rW)}")
    a(f"s_cselect_b32 {s(rW+1)}, {s(pWU+1)}, {s(rW+1)}")
    a(f"s_and_b32 {s(rW+1)}, {s(rW+1)}, 0xffff")
    a(f"s_mov_b32 {s(rW+2)}, {128*256}")
    a(f"s_mov_b32 {s(rW+3)}, 0x20000")
    srd(a, rA, pDST, E*4); srd(a, rB, pSRC, E*4); srd(a, rC, pE, E*2)
    a(f"s_mul_i32 {s(sT0)}, s2, {CH}")
    a(f"v_lshl_add_u32 {v(vt)}, v0, 2, {s(sT0)}")
    a(f"v_add_u32 {v(vt+1)}, {CH//2}, {v(vt)}")
    a(f"s_mov_b32 {s(sT1)}, {E}")
    a(f"v_cmp_gt_u32 vcc, {CH//8}, v0")
    a(f"v_cmp_gt_u32 {s(sVAL,2)}, {s(sT1)}, {v(vt)}")
    a(f"v_cmp_gt_u32 {s(sVAL2,2)}, {s(sT1)}, {v(vt+1)}")
    a(f"v_lshlrev_b32 {v(vt+2)}, 2, {v(vt)}")
    a(f"v_lshlrev_b32 {v(vt+3)}, 1, {v(vt)}")
    a(f"s_and_b64 {s(sVAL,2)}, {s(sVAL,2)}, vcc")
    a(f"s_and_b64 {s(sVAL2,2)}, {s(sVAL2,2)}, vcc")
    a("s_mov_b64 exec, vcc")
    a(f"buffer_load_dwordx4 {v(vD8,4)}, {v(vt+2)}, {s(rA,4)}, 0 offen")
    a(f"buffer_load_dwordx4 {v(vD8+4,4)}, {v(vt+2)}, {s(rA,4)}, 0 offen offset:{CH*2}")
    a(f"buffer_load_dwordx4 {v(vS8,4)}, {v(vt+2)}, {s(rB,4)}, 0 offen")
    a(f"buffer_load_dwordx4 {v(vS8+4,4)}, {v(vt+2)}, {s(rB,4)}, 0 offen offset:{CH*2}")
    a(f"buffer_load_dwordx2 {v(vE4,2)}, {v(vt+3)}, {s(rC,4)}, 0 offen")
    a(f"buffer_load_dwordx2 {v(vE4+2,2)}, {v(vt+3)}, {s(rC,4)}, 0 offen offset:{CH}")
    a("s_mov_b64 exec, -1")
    a(f"v_lshrrev_b32 {v(vt)}, 2, {v(vLane)}")
    a(f"v_lshl_add_u32 {v(vt)}, {v(vt)}, 8, {v(vJ16)}")
    a(f"s_lshl_b32 {s(sT0)}, {s(sWAVE)}, 13")
    a(f"s_add_u32 m0, {s(sT0)}, {L_WL}")
    a(f"s_mov_b32 {s(sT1)}, {s(sSL64)}")
    for i in range(8):
        a(f"buffer_load_dwordx4 {v(vt)}, {s(rW,4)}, {s(sT1)} offen lds")
        if i < 7:
            a(f"s_add_u32 m0, m0, 1024")
            a(f"s_add_u32 {s(sT1)}, {s(sT1)}, 4096")
    a("s_branch K_C0")
    a("K_G0:")
    if opt("xpre"): x_round(0, vACC)
    a("K_C0:")
    srd(a, rC, pWC, 256)
    a(f"buffer_load_dwordx4 {v(vWC,4)}, {v(vJ16)}, {s(rC,4)}, {s(sSL64)} offen")
    a("s_barrier")
    if not opt("xpre"):
        a(f"s_cmp_lt_u32 {s(sWAVE)}, 4")
        a("s_cbranch_scc1 K_C1")
        x_round(0, vACC)
        a("K_C1:")
    a(f"s_mov_b32 {s(sMHI)}, 0xffff0000")
    a(f"s_mov_b32 {s(sM7F0)}, 0x7fff0000")
    a(f"s_mov_b32 {s(sM7FF)}, 0x7fffffff")
    a(f"s_mov_b32 {s(sTINY)}, 0x00800000")
    a(f"s_mov_b32 {s(sPERM)}, 0x07060302")
    a(f"s_mov_b32 {s(sNL2E)}, {hx(fbits(-LOG2E))}")
    a(f"s_mov_b32 {s(sPEND)}, 0")
    a(f"s_mul_i32 {s(sT0)}, {s(sSL)}, {TS}")
    srd(a, rT, pWS, N*128, s(sT0))
    srd(a, rREC, pWS, NWG*CHB, WS_REC)
    srd(a, rDESC, pWS, 131072, WS_DESC)
    srd(a, rA, pOUT, N*256)
    srd(a, rDBG, pDBG, 256)
    srd(a, rFLG, pWS, 32768, WS_FLAG)
    a(f"s_cmp_ge_u32 {s(sWAVE)}, 4")
    a("s_cbranch_scc1 K_GEMM")
    a("s_waitcnt vmcnt(9)")
    stamp(a, 1, vACC, 1)
    a(f"s_mov_b32 {s(sT0)}, {L_CNTA}")
    a(f"s_mov_b32 {s(sT1)}, {-NPB & 0xffffffff}")
    for i in range(8):
        a(f"v_mul_u32_u24 {v(vt)}, {MAGIC}, {v(vD8+i)}")
        a(f"v_lshrrev_b32 {v(vt)}, 24, {v(vt)}")
        a(f"v_mad_i32_i24 {v(vD8+i)}, {v(vt)}, {s(sT1)}, {v(vD8+i)}")
        a(f"v_and_b32 {v(vKY+i)}, 62, {v(vt)}")
        a(f"v_and_b32 {v(vt)}, 1, {v(vt)}")
        a(f"v_lshlrev_b32 {v(vKY+i)}, 1, {v(vKY+i)}")
        a(f"v_lshl_or_b32 {v(vKY+i)}, {v(vt)}, 7, {v(vKY+i)}")
        a(f"v_add_u32 {v(vRP+i)}, {s(sT0)}, {v(vKY+i)}")
        if i % 4 == 3:
            a(f"s_mov_b64 exec, {s(sVAL if i == 3 else sVAL2,2)}")
            for j in range(i - 3, i + 1):
                a(f"ds_add_rtn_u32 {v(vRK+j)}, {v(vRP+j)}, {v(vOne)}")
            a("s_mov_b64 exec, -1")
    a("s_waitcnt lgkmcnt(0)")
    signal(M_HS1)
    for i in range(8):
        e = vE4 + i // 2
        if i % 2 == 0: a(f"v_lshl_or_b32 {v(vRP+i)}, {v(e)}, 16, {v(vS8+i)}")
        else:          a(f"v_and_or_b32 {v(vRP+i)}, {v(e)}, {s(sMHI)}, {v(vS8+i)}")
        a(f"v_and_b32 {v(vt)}, 0x100, {v(vD8+i)}")
        a(f"v_lshl_or_b32 {v(vRP+i)}, {v(vt)}, 7, {v(vRP+i)}")
        a(f"v_mov_b32 {v(vRP+8+i)}, {v(vD8+i)}")
    a(f"v_lshlrev_b32 {v(vt)}, 2, {v(vLane)}")
    a(f"v_add_u32 {v(vt+1)}, {L_CNTA}, {v(vt)}")
    spin(M_HS1, 4, vt+2)
    a(f"ds_read_b32 {v(vCN)}, {v(vt+1)}")
    a("s_waitcnt lgkmcnt(0)")
    a(f"v_add_u32 {v(vEX+1)}, 1, {v(vCN)}")
    a(f"v_and_b32 {v(vEX+1)}, -2, {v(vEX+1)}")
    a(f"v_mov_b32 {v(vEX)}, {v(vEX+1)}")
    scan64(a, vEX)
    a(f"v_sub_u32 {v(vEX)}, {v(vEX)}, {v(vEX+1)}")
    for i in range(8):
        a(f"ds_bpermute_b32 {v(vD8+i)}, {v(vKY+i)}, {v(vEX)}")
    a(f"v_lshl_or_b32 {v(vCN)}, {v(vCN)}, 16, {v(vEX)}")
    for i in range(8):
        a(f"s_waitcnt lgkmcnt({7-i})")
        a(f"v_add_u32 {v(vD8+i)}, {v(vD8+i)}, {v(vRK+i)}")
        a(f"v_lshlrev_b32 {v(vRK+i)}, 2, {v(vD8+i)}")
    for i in range(8):
        if i % 4 == 0: a(f"s_mov_b64 exec, {s(sVAL if i == 0 else sVAL2,2)}")
        a(f"ds_write_b32 {v(vRK+i)}, {v(vRP+i)} offset:{L_STAGE}")
        a(f"ds_write_b8 {v(vD8+i)}, {v(vRP+8+i)} offset:{L_STAGE + LOC0}")
    a("s_mov_b64 exec, -1")
    a("s_waitcnt lgkmcnt(0)")
    signal(M_HS2)
    a("s_waitcnt vmcnt(1)" if not STAMPS else "s_waitcnt vmcnt(0)")
    signal(M_WRDY)
    a(f"v_lshlrev_b32 {v(vt+1)}, 4, v0")
    spin(M_HS2, 4, vt+3)
    for i in range(2):
        a(f"ds_read_b128 {v(vX+4*i,4)}, {v(vt+1)} offset:{L_STAGE + i*4096}")
    a(f"s_lshl_b32 {s(sT0)}, s2, 13")
    a(f"s_add_u32 {s(sT1)}, {s(sT0)}, 4096")
    a("s_waitcnt lgkmcnt(1)")
    a(f"buffer_store_dwordx4 {v(vX,4)}, {v(vt+1)}, {s(rREC,4)}, {s(sT0)} offen sc1")
    a("s_waitcnt lgkmcnt(0)")
    a(f"buffer_store_dwordx4 {v(vX+4,4)}, {v(vt+1)}, {s(rREC,4)}, {s(sT1)} offen sc1")
    a(f"s_cmp_lg_u32 {s(sWAVE)}, 0")
    a("s_cbranch_scc1 K_NOLAST")
    x_round(0, vACC)
    a("K_NOLAST:")
    stamp(a, 2, vACC, 1)
    a(f"v_mov_b32 {v(vt+2)}, 0")
    a(f"s_mov_b32 {s(sSPIN)}, 0x100000")
    a("K_GOL:")
    a(f"buffer_load_dword {v(vCN+1)}, {v(vt+2)}, {s(rDBG,4)}, 0 offen sc1")
    a("s_waitcnt vmcnt(0)")
    a(f"v_readfirstlane_b32 {s(sTAG)}, {v(vCN+1)}")
    a(f"s_cmp_lg_u32 {s(sTAG)}, 0")
    a("s_cbranch_scc1 K_GOD")
    a(f"s_sub_u32 {s(sSPIN)}, {s(sSPIN)}, 1")
    a("s_cbranch_scc0 K_GOL")
    a("K_GOD:")
    a(f"ds_write_b32 {v(vMISC)}, {v(vCN+1)} offset:{M_TAG}")
    signal(M_HS3, vt+3)
    a(f"v_lshlrev_b32 {v(vt+1)}, 3, {v(vLane)}")
    a(f"s_lshl_b32 {s(sT1)}, s2, 9")
    a("s_waitcnt lgkmcnt(0)")
    a(f"v_readfirstlane_b32 {s(sT0)}, {v(vt+3)}")
    a(f"s_cmp_lg_u32 {s(sT0)}, 3")
    a("s_cbranch_scc1 K_NOFLAGA")
    a(f"buffer_store_dwordx2 {v(vCN,2)}, {v(vt+1)}, {s(rDESC,4)}, {s(sT1)} offen sc1")
    stamp(a, 3, vACC, -1)
    a("K_NOFLAGA:")
    a(f"s_cmp_eq_u32 {s(sWAVE)}, 0")
    a("s_cbranch_scc1 K_GEMM")
    a(f"s_cmp_lg_u32 {s(sWAVE)}, 3")
    a("s_cbranch_scc1 K_RECS")
    spin(M_XL, int(opt("pollat", 12)), vt+1)
    stamp(a, 4, vACC, 3)
    a(f"s_lshr_b32 {s(sT0)}, {s(sBK)}, 1")
    a(f"s_and_b32 {s(sT1)}, {s(sBK)}, 1")
    a(f"s_lshl_b32 {s(sT1)}, {s(sT1)}, 5")
    a(f"s_or_b32 {s(sT0)}, {s(sT0)}, {s(sT1)}")
    a(f"s_lshl_b32 {s(sT0)}, {s(sT0)}, 3")
    a(f"v_lshlrev_b32 {v(vt+1)}, 9, {v(vLane)}")
    a(f"v_add_u32 {v(vt+1)}, {s(sT0)}, {v(vt+1)}")
    sP = 16
    for i in range(4): a(f"s_mov_b64 {s(sP+2*i,2)}, -1")
    tagpoll(vt+1, vX, 2, rDESC, 32768, sP)
    a(f"v_add_u32 {v(vt+1)}, {L_DESC}, {v(vt)}")
    for i in range(4):
        a(f"ds_write_b32 {v(vt+1)}, {v(vX+2*i)} offset:{i*256}")
    a("s_waitcnt lgkmcnt(0)")
    signal(M_DRDY)
    stamp(a, 5, vACC, 3)
    a("s_branch K_RECS")
    a("K_GEMM:")
    a(f"v_and_b32 {v(vt)}, 31, {v(vLane)}")
    a(f"v_lshrrev_b32 {v(vt+2)}, 5, {v(vLane)}")
    a(f"v_lshl_add_u32 {v(vt+1)}, {v(vt)}, 7, {s(sXS)}")
    a(f"v_bfe_u32 {v(vt+3)}, {v(vLane)}, 1, 3")
    a(f"v_xor_b32 {v(vt+3)}, {v(vt+3)}, {v(vt+2)}")
    a(f"v_lshlrev_b32 {v(vt+3)}, 4, {v(vt+3)}")
    for t in range(4):
        a(f"v_xor_b32 {v(vFA+t)}, {t*32}, {v(vt+3)}")
        a(f"v_add_u32 {v(vFA+t)}, {v(vFA+t)}, {v(vt+1)}")
    a(f"v_mul_u32_u24 {v(vAUa)}, {AUS}, {v(vt)}")
    a(f"v_lshl_add_u32 {v(vAUa)}, {v(vt+2)}, 4, {v(vAUa)}")
    a(f"v_add_u32 {v(vAUa)}, {s(sXS)}, {v(vAUa)}")
    a(f"v_lshlrev_b32 {v(vTR)}, 3, {v(vt+2)}")
    a(f"v_bfe_u32 {v(vt)}, {v(vLane)}, 2, 2")
    a(f"v_add_u32 {v(vTR)}, {v(vTR)}, {v(vt)}")
    a(f"v_lshlrev_b32 {v(vTR)}, 6, {v(vTR)}")
    a(f"v_bfe_u32 {v(vt)}, {v(vLane)}, 4, 1")
    a(f"v_lshl_add_u32 {v(vTR)}, {v(vt)}, 5, {v(vTR)}")
    a(f"v_and_b32 {v(vt)}, 1, {v(vLane)}")
    a(f"v_lshl_add_u32 {v(vTR)}, {v(vt)}, 4, {v(vTR)}")
    a(f"v_and_b32 {v(vt)}, 2, {v(vLane)}")
    a(f"v_lshl_add_u32 {v(vTR)}, {v(vt)}, 2, {v(vTR)}")
    a(f"v_add_u32 {v(vTR)}, {L_WL}, {v(vTR)}")
    a(f"v_mov_b32 {v(vBIG)}, 0x7f7f7fff")
    a("s_waitcnt vmcnt(0)")
    for t in range(4):
        a(f"ds_read_b128 {v(vX+4*t,4)}, {v(vFA+t)}")
    if opt("xgate"): spin(M_HS3, 4, vt)
    else: a("s_waitcnt lgkmcnt(0)")
    x_round(1, vACC)
    def tr_half(hf):
        for mat in range(2):
            for t in range(4):
                for q in range(2):
                    a(f"ds_read_b64_tr_b16 {v(vWF+16*mat+4*t+2*q,2)}, {v(vTR)} offset:{mat*8192 + (4*hf+t)*1024 + q*256}")
    def mfma_half(hf):
        for t in range(4):
            for mat, acc in ((0, vACC), (1, vO)):
                c = "0" if (hf == 0 and t == 0) else v(acc, 16)
                a(f"v_mfma_f32_32x32x16_bf16 {v(acc,16)}, {v(vWF+16*mat+4*t,4)}, {v(vX+16*hf+4*t,4)}, {c}")
    spin(M_WRDY, 4, vt)
    tr_half(0)
    a("s_waitcnt lgkmcnt(0)")
    mfma_half(0)
    tr_half(1)
    a("s_waitcnt vmcnt(0)")
    signal(M_XL)
    stamp(a, 6, vt, 4)
    stamp(a, 7, vt, 15)
    a("s_setprio 3")
    for t in range(4):
        a(f"ds_read_b128 {v(vX+16+4*t,4)}, {v(vFA+t)}")
    a("s_waitcnt lgkmcnt(0)")
    mfma_half(1)
    tr_reads(a, 2, vTR, vWF)
    def packT(A):
        for g in range(4): a(f"v_add_u32 {v(A+4*g)}, 0x8000, {v(A+4*g)}")
        for g in range(4):
            a(f"v_perm_b32 {v(A+2*g)}, {v(A+4*g+1)}, {v(A+4*g)}, {s(sPERM)}")
            a(f"v_perm_b32 {v(A+2*g+1)}, {v(A+4*g+3)}, {v(A+4*g+2)}, {s(sPERM)}")
    def scale():
        for r in range(16): a(f"v_mul_f32 {v(vACC+r)}, {s(sNL2E)}, {v(vACC+r)}")
    def rcheck(ab, lim, word, skip=None, vACC=vACC):
        l = a.uid("RC")
        m = (lambda r: f"|{v(r)}|") if ab else v
        a(f"v_max3_f32 {v(vt)}, {m(vACC)}, {m(vACC+1)}, {m(vACC+2)}")
        a(f"v_max3_f32 {v(vt+1)}, {m(vACC+3)}, {m(vACC+4)}, {m(vACC+5)}")
        for r in range(6, 14, 4):
            a(f"v_max3_f32 {v(vt)}, {v(vt)}, {m(vACC+r)}, {m(vACC+r+1)}")
            a(f"v_max3_f32 {v(vt+1)}, {v(vt+1)}, {m(vACC+r+2)}, {m(vACC+r+3)}")
        a(f"v_max3_f32 {v(vt)}, {v(vt)}, {m(vACC+14)}, {m(vACC+15)}")
        a(f"v_max_f32 {v(vt)}, {v(vt)}, {v(vt+1)}")
        a(f"v_cmp_lt_f32 vcc, {hx(fbits(lim))}, {v(vt)}")
        a(f"s_cbranch_vccz {l}")
        a(f"ds_write_b32 {v(vMISC)}, {v(vOne)} offset:{word}")
        if skip:
            a(f"s_lshl_b32 {s(sT0)}, 1, {s(sTILE)}")
            a(f"v_mov_b32 {v(vt)}, {s(sT0)}")
            a(f"ds_or_b32 {v(vMISC)}, {v(vt)} offset:{M_RAW}")
        if True:
            a(f"v_bfrev_b32 {v(vt)}, 1")
            a(f"v_or_b32 {v(vt)}, {v(vt)}, {v(vBIG)}")
            for r in range(16): a(f"v_med3_f32 {v(vACC+r)}, {v(vACC+r)}, {v(vt)}, {v(vBIG)}")
        a("s_waitcnt lgkmcnt(0)")
        if skip: a(f"s_branch {skip}")
        a(f"{l}:")
    scale()
    rcheck(True, LIM_B, M_BAD)
    packT(vACC)
    a(f"ds_write_b128 {v(vAUa)}, {v(vACC,4)}")
    a(f"ds_write_b128 {v(vAUa)}, {v(vACC+4,4)} offset:32")
    rcheck(True, LIM_V, M_BAD, None, vO)
    packT(vO)
    a(f"ds_write_b128 {v(vAUa)}, {v(vO,4)} offset:64")
    a(f"ds_write_b128 {v(vAUa)}, {v(vO+4,4)} offset:96")
    a(f"v_lshrrev_b32 {v(vt)}, 3, {v(vLane)}")
    a(f"v_and_b32 {v(vt+1)}, 7, {v(vLane)}")
    a(f"v_lshlrev_b32 {v(vt+1)}, 4, {v(vt+1)}")
    a(f"v_mul_u32_u24 {v(vt+2)}, {AUS}, {v(vt)}")
    a(f"v_add3_u32 {v(vt+2)}, {v(vt+2)}, {v(vt+1)}, {s(sXS)}")
    a(f"v_lshrrev_b32 {v(vt)}, 1, {v(vXA)}")
    a(f"v_add_u32 {v(vt)}, {v(vt)}, {v(vt+1)}")
    a(f"s_brev_b32 {s(sT1)}, 1")
    a("s_waitcnt lgkmcnt(0)")
    for i in range(4):
        a(f"ds_read_b128 {v(vO+4*i,4)}, {v(vt+2)} offset:{i*8*AUS}")
    for i in range(4):
        a(f"v_subrev_u32 {v(vt+3)}, {8*i}, {v(vXV)}")
        a(f"v_and_or_b32 {v(vt+1)}, {v(vt+3)}, {s(sT1)}, {v(vt)}")
        a(f"s_waitcnt lgkmcnt({3-i})")
        a(f"buffer_store_dwordx4 {v(vO+4*i,4)}, {v(vt+1)}, {s(rT,4)}, 0 offen offset:{i*1024} sc1")
    stamp(a, 8, vt, 15)
    stamp(a, 13, vt, int(opt("stw", 0)))
    a("s_setprio 0")
    for mat in (2, 3):
        mfma_chain(a, vWF, vX, vACC if mat == 2 else vO)
        if mat == 2:
            tr_reads(a, 3, vTR, vWF)
            scale()
            rcheck(True, LIM_A, M_SLOW, "K_RAWA")
            for r in range(16): a(f"v_exp_f32 {v(vACC+r)}, {v(vACC+r)}")
            a("K_RAWA:")
        else:
            a("s_nop 11")
        A = vACC if mat == 2 else vO
        if mat == 2: packT(vACC)
        else:
            for d in range(8): a(f"v_cvt_pk_bf16_f32 {v(vO+d)}, {v(vO+2*d)}, {v(vO+2*d+1)}")
        a(f"ds_write_b128 {v(vAUa)}, {v(A,4)} offset:{(mat-2)*64}")
        a(f"ds_write_b128 {v(vAUa)}, {v(A+4,4)} offset:{(mat-2)*64+32}")
        if mat == 2: a("s_waitcnt lgkmcnt(2)")
    a(f"s_mov_b32 {s(sPEND)}, 1")
    a("K_RECS:")
    a("s_setprio 0")
    vDS = vX; vRC = vX + 4; vRC2 = vX + 12; vLB = vX + 20; vLB2 = vX + 24; vLO = vX + 28; vRK8 = vX + 36; vAD = vX + 44; vI = vX + 52; vRB = vX + 56; vDA = vX + 57; vRB0 = vX + 58; vDA0 = vX + 59; vLA0 = vX + 60; vLAb = vX + 61; vEM = vX + 62
    sM2 = 16
    for d in range(4): a(f"v_and_b32 {v(vWC+4+d)}, {s(sMHI)}, {v(vWC+d)}")
    for d in range(4): a(f"v_lshlrev_b32 {v(vWC+d)}, 16, {v(vWC+d)}")
    for d in range(8): a(f"v_mul_f32 {v(vWC+d)}, {hx(fbits(-LOG2E*(1-1.0e-3))) if RAWE else s(sNL2E)}, {v(vWC+d)}")
    a(f"v_lshrrev_b32 {v(vt)}, 4, {v(vLane)}")
    a(f"v_and_b32 {v(vI)}, 15, {v(vLane)}")
    a(f"v_lshlrev_b32 {v(vRB0)}, 13, {v(vt)}")
    a(f"v_lshlrev_b32 {v(vI)}, 1, {v(vI)}")
    a(f"v_add_u32 {v(vLA0)}, {v(vRB0)}, {v(vI)}")
    a(f"v_add_u32 {v(vLA0)}, {LOC0}, {v(vLA0)}")
    a(f"v_lshl_add_u32 {v(vRB0)}, {v(vI)}, 2, {v(vRB0)}")
    a(f"v_add_u32 {v(vI+1)}, 1, {v(vI)}")
    a(f"v_add_u32 {v(vI+2)}, 32, {v(vI)}")
    a(f"v_add_u32 {v(vI+3)}, 33, {v(vI)}")
    a(f"v_lshlrev_b32 {v(vDA0)}, 2, {v(vt)}")
    a(f"v_add_u32 {v(vDA0)}, {L_DESC}, {v(vDA0)}")
    a(f"v_mov_b32 {v(vt+1)}, 4")
    a(f"v_mov_b32 {v(vt+2)}, {STRIDE}")
    a(f"s_mov_b64 {s(sOVF,2)}, 0")
    a(f"v_mov_b32 {v(vEM)}, 0")
    def report():
        l = a.uid("RP")
        a(f"s_mov_b32 {s(sPEND)}, 0")
        signal(M_GCNT, vt)
        a("s_waitcnt lgkmcnt(0)")
        a(f"v_readfirstlane_b32 {s(sT0)}, {v(vt)}")
        a(f"s_cmp_lg_u32 {s(sT0)}, 12")
        a(f"s_cbranch_scc1 {l}")
        a(f"ds_read_b32 {v(vt)}, {v(vMISC)} offset:{M_TAG}")
        a(f"ds_read_b32 {v(vEM+1)}, {v(vMISC)} offset:{M_BAD}")
        a(f"s_lshl_b32 {s(sT0)}, s2, 7")
        a(f"v_mov_b32 {v(vt+3)}, {s(sT0)}")
        a("s_mov_b64 exec, 1")
        a("s_waitcnt lgkmcnt(0)")
        a(f"v_lshl_or_b32 {v(vt)}, {v(vEM+1)}, 1, {v(vt)}")
        a(f"buffer_store_dword {v(vt)}, {v(vt+3)}, {s(rFLG,4)}, 0 offen sc1")
        a("s_mov_b64 exec, -1")
        stamp(a, 9, vACC, -1)
        a(f"{l}:")
    if True:
        a(f"s_cmp_eq_u32 {s(sPEND)}, 0")
        a("s_cbranch_scc1 K_NOREP0")
        a("s_waitcnt vmcnt(0)")
        spin(M_HS3, 4, vt+3)
        report()
        a("K_NOREP0:")
    spin(M_DRDY, 1, vt+3)
    a("K_BATCH:")
    signal(M_BQ, vt)
    a("s_waitcnt lgkmcnt(0)")
    a(f"v_readfirstlane_b32 {s(sK)}, {v(vt)}")
    a(f"s_cmp_ge_u32 {s(sK)}, 16")
    a("s_cbranch_scc1 K_BDONE")
    a(f"s_lshl_b32 {s(sT0)}, {s(sK)}, 6")
    a(f"v_add_u32 {v(vDA)}, {s(sT0)}, {v(vDA0)}")
    a(f"ds_read2_b32 {v(vDS,2)}, {v(vDA)} offset0:0 offset1:4")
    a(f"ds_read2_b32 {v(vDS+2,2)}, {v(vDA)} offset0:8 offset1:12")
    a(f"s_mul_i32 {s(sT0)}, {s(sK)}, {16*CHB}")
    a(f"v_add_u32 {v(vRB)}, {s(sT0)}, {v(vRB0)}")
    a(f"v_add_u32 {v(vLAb)}, {s(sT0)}, {v(vLA0)}")
    a(f"v_mov_b32 {v(vt+3)}, 64")
    a("s_waitcnt lgkmcnt(0)")
    SD = "src0_sel:DWORD src1_sel:WORD_1"
    for it in range(4):
        a(f"v_mad_u32_u16 {v(vAD+it)}, {v(vDS+it)}, {v(vt+1)}, {v(vRB)}")
        a(f"v_mad_u32_u16 {v(vAD+4+it)}, {v(vDS+it)}, {v(vOne)}, {v(vLAb)}")
        a(f"v_cmp_lt_u32_sdwa {s(sM2+4*it,2)}, {v(vI+2)}, {v(vDS+it)} {SD}")
    for it in range(4):
        l = a.uid("S2")
        a(f"s_cmp_eq_u64 {s(sM2+4*it,2)}, 0")
        a(f"s_cbranch_scc1 {l}")
        a(f"s_mov_b32 {s(sT0)}, {it*4*CHB}")
        a(f"buffer_load_dwordx2 {v(vRC2+2*it,2)}, {v(vAD+it)}, {s(rREC,4)}, {s(sT0)} offen offset:128{RNT}")
        a(f"buffer_load_ushort {v(vLB2+it)}, {v(vAD+4+it)}, {s(rREC,4)}, {s(sT0)} offen offset:32{RNT}")
        a(f"{l}:")
    for it in range(4):
        a(f"s_mov_b32 {s(sT0)}, {it*4*CHB}")
        a(f"buffer_load_dwordx2 {v(vRC+2*it,2)}, {v(vAD+it)}, {s(rREC,4)}, {s(sT0)} offen{RNT}")
        a(f"buffer_load_ushort {v(vLB+it)}, {v(vAD+4+it)}, {s(rREC,4)}, {s(sT0)} offen{RNT}")
    for it in range(4):
        a(f"v_cmp_lt_u32_sdwa {s(sMSK+4*it,2)}, {v(vI)}, {v(vDS+it)} {SD}")
        a(f"v_cmp_lt_u32_sdwa {s(sMSK+4*it+2,2)}, {v(vI+1)}, {v(vDS+it)} {SD}")
        a(f"v_cmp_lt_u32_sdwa {s(sM2+4*it+2,2)}, {v(vI+3)}, {v(vDS+it)} {SD}")
        a(f"v_cmp_lt_u32_sdwa vcc, {v(vt+3)}, {v(vDS+it)} {SD}")
        a(f"s_or_b64 {s(sOVF,2)}, {s(sOVF,2)}, vcc")
    a("s_waitcnt vmcnt(0)")
    def proc(rc, lb, msk, js):
        a(f"s_mov_b32 {s(sT0)}, {L_CNT}")
        for j in js:
            a(f"v_bfe_u32 {v(vLO+j)}, {v(lb+j//2)}, {8*(j&1)}, 8")
            a(f"v_bfe_u32 {v(vAD+j)}, {v(rc+j)}, 15, 1")
            a(f"v_lshl_or_b32 {v(vLO+j)}, {v(vAD+j)}, 8, {v(vLO+j)}")
            a(f"v_lshl_add_u32 {v(vAD+j)}, {v(vLO+j)}, 2, {s(sT0)}")
        for j in js:
            a(f"s_mov_b64 exec, {s(msk+2*j,2)}")
            a(f"ds_add_rtn_u32 {v(vRK8+j)}, {v(vAD+j)}, {v(vOne)}")
        a("s_mov_b64 exec, -1")
        for j in js:
            a(f"v_and_b32 {v(rc+j)}, {opt('fakesrc', '0xffff7fff')}, {v(rc+j)}")
        for n, j in enumerate(js):
            a(f"s_waitcnt lgkmcnt({len(js)-1-n})")
            a(f"v_mad_u32_u24 {v(vAD+j)}, {v(vLO+j)}, {v(vt+2)}, {v(vRK8+j)}")
            a(f"v_cmp_gt_u32 vcc, {STRIDE}, {v(vRK8+j)}")
            a(f"v_lshlrev_b32 {v(vAD+j)}, 2, {v(vAD+j)}")
            a(f"s_andn2_b64 {s(sT2,2)}, {s(msk+2*j,2)}, vcc")
            a(f"s_and_b64 {s(msk+2*j,2)}, {s(msk+2*j,2)}, vcc")
            a(f"s_or_b64 {s(sOVF,2)}, {s(sOVF,2)}, {s(sT2,2)}")
        for j in js:
            a(f"s_mov_b64 exec, {s(msk+2*j,2)}")
            a(f"ds_write_b32 {v(vAD+j)}, {v(rc+j)} offset:{L_LIST}")
            a(f"v_max_f32 {v(vEM)}, |{v(rc+j)}|, {v(vEM)}")
        a("s_mov_b64 exec, -1")
    proc(vRC, vLB, sMSK, list(range(8)))
    for it in range(4):
        l = a.uid("P2")
        a(f"s_cmp_eq_u64 {s(sM2+4*it,2)}, 0")
        a(f"s_cbranch_scc1 {l}")
        proc(vRC2, vLB2, sM2, [2*it, 2*it+1])
        a(f"{l}:")
    a("s_branch K_BATCH")
    a("K_BDONE:")
    a(f"v_max3_f32 {v(vt)}, |{v(vWC)}|, |{v(vWC+1)}|, |{v(vWC+2)}|")
    a(f"v_max3_f32 {v(vt)}, {v(vt)}, |{v(vWC+3)}|, |{v(vWC+4)}|")
    a(f"v_max3_f32 {v(vt)}, {v(vt)}, |{v(vWC+5)}|, |{v(vWC+6)}|")
    a(f"v_max_f32 {v(vt)}, |{v(vWC+7)}|, {v(vt)}")
    a("s_nop 1")
    a(f"v_max_f32_dpp {v(vt)}, {v(vt)}, {v(vt)} quad_perm:[1,0,3,2] row_mask:0xf bank_mask:0xf")
    a("s_nop 1")
    a(f"v_max_f32_dpp {v(vt)}, {v(vt)}, {v(vt)} quad_perm:[2,3,0,1] row_mask:0xf bank_mask:0xf")
    a(f"v_mul_f32 {v(vt)}, {v(vt)}, {v(vEM)}")
    a(f"v_cmp_lt_f32 vcc, {hx(fbits(LIM_E))}, {v(vt)}")
    a(f"s_or_b64 vcc, vcc, {s(sOVF,2)}")
    if opt("forceslow"): a("s_mov_b64 vcc, -1")
    a("s_cbranch_vccz K_NOSLOW")
    a(f"ds_write_b32 {v(vMISC)}, {v(vOne)} offset:{M_SLOW}")
    a("s_waitcnt lgkmcnt(0)")
    a("K_NOSLOW:")
    stamp(a, 10, vACC, 2)
    stamp(a, 11, vACC, 8)
    a("s_barrier")
    stamp(a, 12, vACC)
    vDG = vX; vBN = vX + 1; vR2 = vX + 2; vBC = vX + 3; vBE = vX + 4; vPD = vX + 8
    a(f"s_cmp_lg_u32 {s(sWAVE)}, 15")
    a("s_cbranch_scc1 K_NOPI")
    a(f"ds_read_b32 {v(vt)}, {v(vMISC)} offset:{M_TAG}")
    a(f"v_lshlrev_b32 {v(vt+1)}, 7, {v(vLane)}")
    for i in range(4): a(f"s_mov_b64 {s(sP+2*i,2)}, -1")
    tagpoll_issue(vt+1, vPD, 1, rFLG, 8192, sP)
    a("s_waitcnt lgkmcnt(0)")
    a(f"v_readfirstlane_b32 {s(sTAG)}, {v(vt)}")
    a("K_NOPI:")
    a(f"s_movk_i32 {s(sT0)}, {NLOC}")
    a(f"v_cmp_gt_u32 {s(sVAL,2)}, {s(sT0)}, v0")
    a(f"v_lshlrev_b32 {v(vt)}, 2, v0")
    a(f"v_add_u32 {v(vt)}, {L_CNT}, {v(vt)}")
    a(f"s_mov_b64 exec, {s(sVAL,2)}")
    a(f"ds_read_b32 {v(vDG)}, {v(vt)}")
    a("s_waitcnt lgkmcnt(0)")
    a(f"v_min_u32 {v(vDG)}, {STRIDE}, {v(vDG)}")
    a(f"v_sub_u32 {v(vBN)}, 63, {v(vDG)}")
    a(f"v_lshlrev_b32 {v(vBN)}, 2, {v(vBN)}")
    a(f"v_add_u32 {v(vt)}, {L_BINS}, {v(vBN)}")
    a(f"ds_add_rtn_u32 {v(vR2)}, {v(vt)}, {v(vOne)}")
    a("s_mov_b64 exec, -1")
    a("s_waitcnt lgkmcnt(0)")
    a("s_barrier")
    a(f"s_cmp_lg_u32 {s(sWAVE)}, 15")
    a("s_cbranch_scc1 K_NOPOLLB")
    tagpoll(vt+1, vPD, 1, rFLG, 8192, sP, issued=True, vtmp=vt+2)
    a(f"v_or3_b32 {v(vt+2)}, {v(vPD)}, {v(vPD+1)}, {v(vPD+2)}")
    a(f"v_or_b32 {v(vt+2)}, {v(vt+2)}, {v(vPD+3)}")
    a(f"v_and_b32 {v(vt+2)}, 2, {v(vt+2)}")
    a(f"v_cmp_ne_u32 vcc, 0, {v(vt+2)}")
    a("s_cbranch_vccz K_NOPOLLB")
    a(f"ds_write_b32 {v(vMISC)}, {v(vOne)} offset:{M_SLOW}")
    a("s_waitcnt lgkmcnt(0)")
    a("K_NOPOLLB:")
    a(f"s_cmp_ge_u32 {s(sWAVE)}, {(NLOC+63)//64}")
    a("s_cbranch_scc1 K_NOPERM")
    a(f"v_lshlrev_b32 {v(vt)}, 2, {v(vLane)}")
    a(f"v_add_u32 {v(vt)}, {L_BINS}, {v(vt)}")
    a(f"ds_read_b32 {v(vBC)}, {v(vt)}")
    a("s_waitcnt lgkmcnt(0)")
    a(f"v_mov_b32 {v(vBE)}, {v(vBC)}")
    scan64(a, vBE)
    a(f"v_sub_u32 {v(vBE)}, {v(vBE)}, {v(vBC)}")
    a(f"ds_bpermute_b32 {v(vt)}, {v(vBN)}, {v(vBE)}")
    a(f"v_lshl_or_b32 {v(vDG)}, {v(vDG)}, 16, v0")
    a("s_waitcnt lgkmcnt(0)")
    a(f"v_add_lshl_u32 {v(vt)}, {v(vt)}, {v(vR2)}, 2")
    a(f"v_add_u32 {v(vt)}, {L_PERM}, {v(vt)}")
    a(f"s_mov_b64 exec, {s(sVAL,2)}")
    a(f"ds_write_b32 {v(vt)}, {v(vDG)}")
    a("s_mov_b64 exec, -1")
    a("s_waitcnt lgkmcnt(0)")
    a("K_NOPERM:")
    stamp(a, 14, vACC)
    a("s_barrier")
    stamp(a, 15, vACC)
    stamp(a, 15, vACC, 0, True)
    NB = int(opt("nbuf", 3))
    R2 = Regs(m0, 126)
    vDEN = R2.alloc(8); vNUM = R2.alloc(8); vEA = R2.alloc(8)
    vBUF = [R2.alloc(16, 4) for _ in range(NB)]
    vLa = R2.alloc(4); vLb = R2.alloc(4); vUa = R2.alloc(4); vUb = R2.alloc(4)
    vE = [R2.alloc(2) for _ in range(NB)]
    vREC = R2.alloc(2); vADR = vt
    vU = R2.alloc(4, 4); vXS = R2.alloc(4, 4)
    vINFO = vt + 2; vDEG = vt + 3; vLA = R2.alloc(); vOFF = R2.alloc()
    vPB = 0; vAUB = vLane; vOB = 1
    R.hi = max(R.hi, R2.hi)
    sSGN = sBASE; s128 = sVAL; sKG = sVAL + 1
    a(f"s_brev_b32 {s(sSGN)}, 1")
    a(f"s_movk_i32 {s(s128)}, 128")
    a(f"s_mul_i32 {s(sT0)}, {s(sBK)}, {NPB*256}")
    a(f"v_add_u32 {v(vOB)}, {s(sT0)}, {v(vJ16)}")
    a(f"v_lshrrev_b32 {v(vPB)}, 2, {v(vLane)}")
    a(f"v_lshlrev_b32 {v(vPB)}, 2, {v(vPB)}")
    a(f"v_add_u32 {v(vPB)}, {L_PERM}, {v(vPB)}")
    a(f"v_add_u32 {v(vAUB)}, {L_AU}, {v(vJ16)}")
    sSLOW = sOVF
    a(f"ds_read_b32 {v(vINFO)}, {v(vMISC)} offset:{M_SLOW}")
    a("s_waitcnt lgkmcnt(0)")
    a(f"v_readfirstlane_b32 {s(sSLOW)}, {v(vINFO)}")
    a(f"s_cmp_lg_u32 {s(sSLOW)}, 0")
    a("s_cbranch_scc1 K_SLOW")
    if PRIO: a("s_setprio 3" if (not opt("prio1")) else "s_setprio 2")

    def G(nb, rec=None):
        B = vBUF[nb]
        rec = vREC if rec is None else rec
        a(f"v_mad_u32_u16 {v(vADR)}, {v(rec)}, {s(s128)}, {v(vJ16)}")
        a(f"v_mad_u32_u16 {v(vADR+1)}, {v(rec+1)}, {s(s128)}, {v(vJ16)}")
        if not RAWE:
            a(f"v_and_b32 {v(vE[nb])}, {s(sMHI)}, {v(rec)}")
            a(f"v_and_b32 {v(vE[nb]+1)}, {s(sMHI)}, {v(rec+1)}")
        a(f"buffer_load_dwordx4 {v(B,4)}, {v(vADR)}, {s(rT,4)}, 0 offen")
        a(f"buffer_load_dwordx4 {v(B+4,4)}, {v(vADR)}, {s(rT,4)}, 0 offen offset:64")
        a(f"buffer_load_dwordx4 {v(B+8,4)}, {v(vADR+1)}, {s(rT,4)}, 0 offen")
        a(f"buffer_load_dwordx4 {v(B+12,4)}, {v(vADR+1)}, {s(rT,4)}, 0 offen offset:64")

    def front(B, L, e, hi):
        sel = "op_sel:[1,0,0] op_sel_hi:[1,1,1]" if hi else "op_sel_hi:[0,1,1]"
        prs = [L, L+2, B, B+2]
        a(f"v_lshlrev_b64 {v(L,2)}, 16, {v(B,2)}")
        a(f"v_lshlrev_b64 {v(L+2,2)}, 16, {v(B+2,2)}")
        for i in (2, 3, 0, 1):
            a(pk("fma", prs[i], v(e,2), v(vWC+2*i,2), v(prs[i],2), sel))
        for i in (2, 3, 0, 1):
            a(f"v_exp_f32 {v(prs[i])}, {v(prs[i])}")
            a(f"v_exp_f32 {v(prs[i]+1)}, {v(prs[i]+1)}")
        return prs
    def front2(prs):
        for i in (2, 3, 0, 1):
            a(pk("fma", prs[i], v(vEA+2*i,2), v(prs[i],2), "1.0", "op_sel_hi:[1,1,0]"))

    def Cpair(nb):
        if opt("novalu"): return
        B = vBUF[nb]
        Ba, Va, Bb, Vb = B, B+4, B+8, B+12
        pa = front(Ba, vLa, vE[nb], False)
        pb = front(Bb, vLb, vE[nb], True)
        a(f"v_lshlrev_b64 {v(vUa,2)}, 16, {v(Va,2)}")
        a(f"v_lshlrev_b64 {v(vUa+2,2)}, 16, {v(Va+2,2)}")
        a(f"v_lshlrev_b64 {v(vUb,2)}, 16, {v(Vb,2)}")
        a(f"v_lshlrev_b64 {v(vUb+2,2)}, 16, {v(Vb+2,2)}")
        front2(pa)
        front2(pb)
        qa = [vUa, vUa+2, Va, Va+2]; qb = [vUb, vUb+2, Vb, Vb+2]
        for i in range(4): a(pk("mul", qa[i], v(qa[i],2), v(pb[i],2)))
        for i in range(4): a(pk("fma", qa[i], v(qb[i],2), v(pa[i],2), v(qa[i],2)))
        for i in range(4): a(pk("mul", qb[i], v(pa[i],2), v(pb[i],2)))
        for i in range(4): a(pk("add", pa[i], v(pa[i],2), v(pb[i],2)))
        for i in range(4):
            a(f"v_rcp_f32 {v(qb[i])}, {v(qb[i])}")
            a(f"v_rcp_f32 {v(qb[i]+1)}, {v(qb[i]+1)}")
        for i in range(4): a(pk("fma", vNUM+2*i, v(qa[i],2), v(qb[i],2), v(vNUM+2*i,2)))
        for i in range(4): a(pk("fma", vDEN+2*i, v(pa[i],2), v(qb[i],2), v(vDEN+2*i,2)))

    def Csingle(nb, hi):
        if opt("novalu"): return
        B = vBUF[nb] + (8 if hi else 0)
        V = B + 4
        p = front(B, vLa, vE[nb], hi)
        a(f"v_lshlrev_b64 {v(vUa,2)}, 16, {v(V,2)}")
        front2(p)
        a(f"v_lshlrev_b64 {v(vUa+2,2)}, 16, {v(V+2,2)}")
        for i in (2, 3, 0, 1):
            a(f"v_rcp_f32 {v(p[i])}, {v(p[i])}")
            a(f"v_rcp_f32 {v(p[i]+1)}, {v(p[i]+1)}")
        q = [vUa, vUa+2, V, V+2]
        for i in (2, 3, 0, 1): a(pk("add", vDEN+2*i, v(vDEN+2*i,2), v(p[i],2)))
        for i in (2, 3, 0, 1): a(pk("fma", vNUM+2*i, v(q[i],2), v(p[i],2), v(vNUM+2*i,2)))

    DEP = NB - 1 if not RAWE else NB - 2
    a("K_GROUP:")
    signal(M_Q, vINFO)
    a("s_waitcnt lgkmcnt(0)")
    a(f"v_readfirstlane_b32 {s(sT0)}, {v(vINFO)}")
    a(f"s_cmp_ge_u32 {s(sT0)}, {NGRP}")
    a("s_cbranch_scc1 K_DONE")
    a(f"s_lshl_b32 {s(sT0)}, {s(sT0)}, 6")
    a(f"v_add_u32 {v(vINFO)}, {s(sT0)}, {v(vPB)}")
    a(f"ds_read_b32 {v(vINFO)}, {v(vINFO)}")
    a("s_waitcnt lgkmcnt(0)")
    a(f"v_lshrrev_b32 {v(vDEG)}, 16, {v(vINFO)}")
    a(f"v_and_b32 {v(vINFO)}, 0xffff, {v(vINFO)}")
    a(f"v_mul_u32_u24 {v(vLA)}, {STRIDE*4}, {v(vINFO)}")
    for j in range(DEP):
        a(f"ds_read2_b32 {v(vE[j] if RAWE else vLa+2*j,2)}, {v(vLA)} offset0:{2*j} offset1:{2*j+1}")
    a(f"ds_read2_b32 {v(vE[DEP] if RAWE else vREC,2)}, {v(vLA)} offset0:{2*DEP} offset1:{2*DEP+1}")
    a(f"v_mul_u32_u24 {v(vADR)}, {AUS}, {v(vINFO)}")
    a(f"v_add_u32 {v(vADR)}, {v(vADR)}, {v(vAUB)}")
    a(f"ds_read_b128 {v(vEA+4,4)}, {v(vADR)}")
    a(f"ds_read_b128 {v(vU,4)}, {v(vADR)} offset:64")
    a(f"v_readlane_b32 {s(sMAX)}, {v(vDEG)}, 0")
    a(f"v_readlane_b32 {s(sMIN)}, {v(vDEG)}, 63")
    a(f"v_lshl_add_u32 {v(vOFF)}, {v(vINFO)}, 8, {v(vOB)}")
    a(f"v_sub_u32 {v(vINFO)}, {NPB-1}, {v(vINFO)}")
    a(f"v_and_or_b32 {v(vOFF)}, {v(vINFO)}, {s(sSGN)}, {v(vOFF)}")
    a(f"buffer_load_dwordx4 {v(vXS,4)}, {v(vOFF)}, {s(rX,4)}, {s(sSL64)} offen")
    for j in range(DEP):
        a(f"s_waitcnt lgkmcnt({DEP - j + 2})")
        G(j, vE[j] if RAWE else vLa + 2*j)
    a("s_waitcnt lgkmcnt(1)")
    a(f"v_lshlrev_b64 {v(vEA,2)}, 16, {v(vEA+4,2)}")
    a(f"v_lshlrev_b64 {v(vEA+2,2)}, 16, {v(vEA+6,2)}")
    a(f"v_mov_b32 {v(vDEN)}, {hx(fbits(1e-6))}")
    a(f"v_mov_b32 {v(vDEN+1)}, {v(vDEN)}")
    for d in range(2, 8, 2): a(f"v_mov_b64 {v(vDEN+d,2)}, {v(vDEN,2)}")
    for d in range(0, 8, 2): a(f"v_mov_b64 {v(vNUM+d,2)}, 0")
    a(f"s_mov_b32 {s(sK)}, 0")
    a(f"s_sub_u32 {s(sKG)}, {s(sMAX)}, {2*DEP}")
    sKP = 24
    if (not opt("prio1")): a(f"s_sub_u32 {s(sKP)}, {s(sMAX)}, {opt('p2a', 6)}")
    a(f"s_cmp_eq_u32 {s(sMAX)}, 0")
    a("s_cbranch_scc1 K_EPI0")
    a("K_LOOP:")
    for cur in range(NB):
        if (not opt("prio1")):
            a(f"s_cmp_ge_i32 {s(sK)}, {s(sKP)}")
            a(f"s_cbranch_scc1 K_PRI{cur}")
            a(f"K_PRB{cur}:")
        a(f"s_cmp_lt_i32 {s(sK)}, {s(sKG)}")
        a(f"s_cbranch_scc0 K_NOG{cur}")
        a("s_waitcnt lgkmcnt(0)")
        G((cur + DEP) % NB, vE[(cur + DEP) % NB] if RAWE else None)
        a(f"ds_read2_b32 {v(vE[(cur + DEP + 1) % NB] if RAWE else vREC,2)}, {v(vLA)} offset0:{2*(DEP+1+cur)} offset1:{2*(DEP+1+cur)+1}")
        if cur == NB - 1: a(f"v_add_u32 {v(vLA)}, {8*NB}, {v(vLA)}")
        a(f"s_waitcnt vmcnt({4*DEP})")
        a(f"K_GOT{cur}:")
        a(f"s_add_u32 {s(sT0)}, {s(sK)}, 2")
        a(f"s_cmp_le_u32 {s(sT0)}, {s(sMIN)}")
        a(f"s_cbranch_scc0 K_TAIL{cur}")
        Cpair(cur)
        a(f"K_NEXT{cur}:")
        a(f"s_add_u32 {s(sK)}, {s(sK)}, 2")
        a(f"s_cmp_ge_u32 {s(sK)}, {s(sMAX)}")
        a("s_cbranch_scc1 K_EPI" if cur < NB - 1 else "s_cbranch_scc0 K_LOOP")
    a("K_EPI:")
    a("s_mov_b64 exec, -1")
    a("s_waitcnt lgkmcnt(0)")
    for d in range(8): a(f"v_rcp_f32 {v(vDEN+d)}, {v(vDEN+d)}")
    Xu = vLa
    assert vLb == vLa + 4
    Up = [vUa, vUa+2, vU, vU+2]
    for d in range(4):
        a(f"v_lshlrev_b32 {v(vUa+d)}, 16, {v(vU+d)}")
        a(f"v_and_b32 {v(vU+d)}, {s(sMHI)}, {v(vU+d)}")
        a(f"v_lshlrev_b32 {v(Xu+d)}, 16, {v(vXS+d)}")
        a(f"v_and_b32 {v(Xu+4+d)}, {s(sMHI)}, {v(vXS+d)}")
    for i in range(4): a(pk("fma", Up[i], v(vNUM+2*i,2), v(vDEN+2*i,2), v(Up[i],2)))
    for i in range(4):
        a(f"v_max_f32 {v(Up[i])}, 0, {v(Up[i])}")
        a(f"v_max_f32 {v(Up[i]+1)}, 0, {v(Up[i]+1)}")
    for i in range(4): a(pk("add", Up[i], v(Up[i],2), v(Xu+2*i,2)))
    for d in range(4): a(f"v_cvt_pk_bf16_f32 {v(vNUM+d)}, {v(vUa+d)}, {v(vU+d)}")
    a(f"buffer_store_dwordx4 {v(vNUM,4)}, {v(vOFF)}, {s(rA,4)}, {s(sSL64)} offen{OSC}")
    if PRIO: a("s_setprio 2" if (not opt("prio1")) else "s_setprio 0")
    a(f"s_cmp_eq_u32 {s(sSLOW)}, 0")
    a("s_cbranch_scc1 K_GROUP")
    a("s_branch K_SNEXT")
    a("K_EPI0:")
    a("s_waitcnt vmcnt(0)")
    a("s_branch K_EPI")
    for cur in range(NB):
        if (not opt("prio1")):
            a(f"K_PRI{cur}:")
            a(f"ds_read_b32 {v(vLb)}, {v(vMISC)} offset:{M_Q}")
            a(f"s_sub_u32 {s(sT1)}, {s(sMAX)}, {s(sK)}")
            a("s_waitcnt lgkmcnt(0)")
            a(f"v_readfirstlane_b32 {s(sT0)}, {v(vLb)}")
            a(f"s_cmp_lt_u32 {s(sT0)}, {NGRP}")
            a(f"s_cbranch_scc1 K_PRB{cur}")
            a("s_setprio 1")
            a(f"s_cmp_gt_u32 {s(sT1)}, {opt('p2b', 2)}")
            a(f"s_cbranch_scc1 K_PRB{cur}")
            a("s_setprio 0")
            a(f"s_branch K_PRB{cur}")
        a(f"K_NOG{cur}:")
        if DEP >= 2:
            a(f"s_add_u32 {s(sT0)}, {s(sK)}, 2")
            a(f"s_cmp_lt_u32 {s(sT0)}, {s(sMAX)}")
            a(f"s_cbranch_scc0 K_NOGZ{cur}")
            a("s_waitcnt vmcnt(4)")
            a(f"s_branch K_GOT{cur}")
            a(f"K_NOGZ{cur}:")
        a("s_waitcnt vmcnt(0)")
        a(f"s_branch K_GOT{cur}")
        a(f"K_TAIL{cur}:")
        a(f"v_cmpx_lt_u32 vcc, {s(sK)}, {v(vDEG)}")
        Csingle(cur, False)
        a(f"s_add_u32 {s(sT0)}, {s(sK)}, 1")
        a(f"s_cmp_ge_u32 {s(sT0)}, {s(sMAX)}")
        a("s_cbranch_scc1 K_EPI")
        a(f"v_cmpx_lt_u32 vcc, {s(sT0)}, {v(vDEG)}")
        Csingle(cur, True)
        a(f"s_branch K_NEXT{cur}")
    sG, sSEG, sLEN, sBS, sI, sN, sR, sL = 16, 17, 18, 19, 20, 21, 22, 23
    vSR, vSLc, vSI, vSA = vBUF[1], vBUF[1] + 1, vBUF[1] + 2, vBUF[1] + 3
    vMY = vLA
    B = vBUF[0]
    a("K_SLOW:")
    a(f"s_mov_b32 {s(sG)}, {s(sWAVE)}")
    a(f"v_mbcnt_lo_u32_b32 {v(vSI)}, -1, 0")
    a(f"v_mbcnt_hi_u32_b32 {v(vSI)}, -1, {v(vSI)}")
    a("K_SGRP:")
    a(f"s_lshl_b32 {s(sT0)}, {s(sG)}, 4")
    a(f"v_lshrrev_b32 {v(vMY)}, 2, {v(vSI)}")
    a(f"v_add_u32 {v(vMY)}, {s(sT0)}, {v(vMY)}")
    a(f"v_mul_u32_u24 {v(vADR)}, {AUS}, {v(vMY)}")
    a(f"v_add_u32 {v(vADR)}, {v(vADR)}, {v(vAUB)}")
    a(f"ds_read_b128 {v(vEA+4,4)}, {v(vADR)}")
    a(f"ds_read_b128 {v(vU,4)}, {v(vADR)} offset:64")
    a(f"ds_read_b32 {v(vSA)}, {v(vMISC)} offset:{M_RAW}")
    a(f"v_lshl_add_u32 {v(vOFF)}, {v(vMY)}, 8, {v(vOB)}")
    a(f"v_sub_u32 {v(vINFO)}, {NPB-1}, {v(vMY)}")
    a(f"v_and_or_b32 {v(vOFF)}, {v(vINFO)}, {s(sSGN)}, {v(vOFF)}")
    a(f"buffer_load_dwordx4 {v(vXS,4)}, {v(vOFF)}, {s(rX,4)}, {s(sSL64)} offen")
    for d in range(8):
        a(f"v_mov_b32 {v(vDEN+d)}, {hx(fbits(1e-6))}")
        a(f"v_mov_b32 {v(vNUM+d)}, 0")
    a("s_waitcnt lgkmcnt(0)")
    a(f"v_readfirstlane_b32 {s(sT0)}, {v(vSA)}")
    a(f"v_lshlrev_b64 {v(vEA,2)}, 16, {v(vEA+4,2)}")
    a(f"v_lshlrev_b64 {v(vEA+2,2)}, 16, {v(vEA+6,2)}")
    a(f"s_lshr_b32 {s(sT1)}, {s(sG)}, 1")
    a(f"s_bitcmp1_b32 {s(sT0)}, {s(sT1)}")
    a("s_cbranch_scc1 K_SRAW")
    for d in range(8): a(f"v_log_f32 {v(vEA+d)}, {v(vEA+d)}")
    a("K_SRAW:")
    a(f"s_mov_b32 {s(sSEG)}, 0")
    a("K_SSEG:")
    a(f"s_lshl_b32 {s(sT0)}, {s(sSEG)}, 2")
    a(f"s_add_u32 {s(sT0)}, {s(sT0)}, {L_DESC}")
    a(f"v_mov_b32 {v(vSA)}, {s(sT0)}")
    a(f"ds_read_b32 {v(vSA)}, {v(vSA)}")
    a("s_waitcnt lgkmcnt(0)")
    a(f"v_readfirstlane_b32 {s(sBS)}, {v(vSA)}")
    a(f"s_lshr_b32 {s(sLEN)}, {s(sBS)}, 16")
    a(f"s_and_b32 {s(sBS)}, {s(sBS)}, 0xffff")
    a("K_SBLK:")
    a(f"s_cmp_eq_u32 {s(sLEN)}, 0")
    a("s_cbranch_scc1 K_SSEGN")
    a(f"s_lshl_b32 {s(sT0)}, {s(sSEG)}, 13")
    a(f"v_add_u32 {v(vSA)}, {s(sBS)}, {v(vSI)}")
    a(f"v_lshlrev_b32 {v(vADR)}, 2, {v(vSA)}")
    a(f"v_add_u32 {v(vSA)}, {LOC0}, {v(vSA)}")
    a(f"buffer_load_dword {v(vSR)}, {v(vADR)}, {s(rREC,4)}, {s(sT0)} offen")
    a(f"buffer_load_ubyte {v(vSLc)}, {v(vSA)}, {s(rREC,4)}, {s(sT0)} offen")
    a(f"s_min_u32 {s(sN)}, {s(sLEN)}, 64")
    a(f"s_sub_u32 {s(sLEN)}, {s(sLEN)}, {s(sN)}")
    a(f"s_add_u32 {s(sBS)}, {s(sBS)}, 64")
    a(f"s_mov_b32 {s(sI)}, 0")
    a("s_waitcnt vmcnt(0)")
    a(f"v_bfe_u32 {v(vSA)}, {v(vSR)}, 15, 1")
    a(f"v_lshl_or_b32 {v(vSLc)}, {v(vSA)}, 8, {v(vSLc)}")
    a("s_nop 0")
    a("K_SREC:")
    a(f"v_readlane_b32 {s(sL)}, {v(vSLc)}, {s(sI)}")
    a(f"s_lshr_b32 {s(sT0)}, {s(sL)}, 4")
    a(f"s_cmp_lg_u32 {s(sT0)}, {s(sG)}")
    a("s_cbranch_scc1 K_SRECN")
    a(f"v_readlane_b32 {s(sR)}, {v(vSR)}, {s(sI)}")
    a(f"s_and_b32 {s(sT0)}, {s(sR)}, 0x7fff")
    a(f"s_lshl_b32 {s(sT0)}, {s(sT0)}, 7")
    a(f"s_and_b32 {s(sR)}, {s(sR)}, {s(sMHI) if not RAWE else '0xffff7fff'}")
    a(f"v_add_u32 {v(vADR)}, {s(sT0)}, {v(vJ16)}")
    a(f"v_mov_b32 {v(vE[0])}, {s(sR)}")
    a(f"v_cmpx_eq_u32 vcc, {s(sL)}, {v(vMY)}")
    a(f"buffer_load_dwordx4 {v(B,4)}, {v(vADR)}, {s(rT,4)}, 0 offen")
    a(f"buffer_load_dwordx4 {v(B+4,4)}, {v(vADR)}, {s(rT,4)}, 0 offen offset:64")
    a("s_waitcnt vmcnt(0)")
    prs = [vLa, vLa+2, B, B+2]; q = [vUa, vUa+2, B+4, B+6]
    a(f"v_lshlrev_b64 {v(vLa,2)}, 16, {v(B,2)}")
    a(f"v_lshlrev_b64 {v(vLa+2,2)}, 16, {v(B+2,2)}")
    a(f"v_lshlrev_b64 {v(vUa,2)}, 16, {v(B+4,2)}")
    a(f"v_lshlrev_b64 {v(vUa+2,2)}, 16, {v(B+6,2)}")
    for i in range(4): a(pk("add", prs[i], v(prs[i],2), v(vEA+2*i,2)))
    for i in range(4): a(pk("fma", prs[i], v(vE[0],2), v(vWC+2*i,2), v(prs[i],2), "op_sel_hi:[0,1,1]"))
    for i in range(4):
        a(f"v_exp_f32 {v(prs[i])}, {v(prs[i])}")
        a(f"v_exp_f32 {v(prs[i]+1)}, {v(prs[i]+1)}")
    for i in range(4): a(pk("add", prs[i], v(prs[i],2), "1.0", None, "op_sel_hi:[1,0]"))
    for i in range(4):
        a(f"v_rcp_f32 {v(prs[i])}, {v(prs[i])}")
        a(f"v_rcp_f32 {v(prs[i]+1)}, {v(prs[i]+1)}")
    for i in range(4): a(pk("add", vDEN+2*i, v(vDEN+2*i,2), v(prs[i],2)))
    for i in range(4): a(pk("fma", vNUM+2*i, v(q[i],2), v(prs[i],2), v(vNUM+2*i,2)))
    a("s_mov_b64 exec, -1")
    a("K_SRECN:")
    a(f"s_add_u32 {s(sI)}, {s(sI)}, 1")
    a(f"s_cmp_lt_u32 {s(sI)}, {s(sN)}")
    a("s_cbranch_scc1 K_SREC")
    a("s_branch K_SBLK")
    a("K_SSEGN:")
    a(f"s_add_u32 {s(sSEG)}, {s(sSEG)}, 1")
    a(f"s_cmp_lt_u32 {s(sSEG)}, 256")
    a("s_cbranch_scc1 K_SSEG")
    a("s_branch K_EPI0")
    a("K_SNEXT:")
    a(f"s_add_u32 {s(sG)}, {s(sG)}, 16")
    a(f"s_cmp_lt_u32 {s(sG)}, {NGRP}")
    a("s_cbranch_scc1 K_SGRP")
    a("K_DONE:")
    stamp(a, 16, vLa, None)
    stamp(a, 16, vLa, None, True)
    a("K_END:")
    a("s_endpgm")
    return R.hi

def main():
    a = Asm()
    hdr = open("standalone__edge_featured_mpnn_gatedgcn__graph.s.ref").read().split("\n")
    for l in hdr:
        if l.startswith("; Override"): break
        a.raw(l)
    if ASLIST:
        a.raw(f"; @launch kernel={KNAME} grid=({NWG},1,1) block=(1024,1,1) lds={L_END}")
    else:
        a.raw(f"; @launch grid=({NWG},1,1) block=(1024,1,1) lds={L_END}")
    a.raw('.amdgcn_target "amdgcn-amd-amdhsa--gfx950"')
    a.raw(".text")
    nv = gen(a)
    a.raw('.section .rodata,"a"')
    a.raw(".p2align 6")
    a.raw(f".amdhsa_kernel {KNAME}")
    a.raw(f"  .amdhsa_next_free_vgpr {nv}")
    a.raw(f"  .amdhsa_next_free_sgpr 102")
    a.raw(f"  .amdhsa_accum_offset {(nv+3)//4*4}")
    a.raw(f"  .amdhsa_group_segment_fixed_size 0")
    a.raw(f"  .amdhsa_kernarg_size 96")
    a.raw(f"  .amdhsa_user_sgpr_count 2")
    a.raw(f"  .amdhsa_user_sgpr_kernarg_segment_ptr 1")
    a.raw(f"  .amdhsa_system_sgpr_workgroup_id_x 1")
    a.raw(f".end_amdhsa_kernel")
    out = [x for x in sys.argv[1:] if not x.startswith("--")]
    open(out[0] if out else "out.s", "w").write(a.text())
    print("vgprs", nv, "lds", L_END, file=sys.stderr)

main()
```

```python
import sys, math
from asmlib import *

def opt(name, default=None):
    for x in sys.argv[1:]:
        if x == "--" + name: return True
        if x.startswith("--" + name + "="): return x.split("=", 1)[1]
    return default

KNAME = "standalone__edge_featured_mpnn_gatedgcn__graph_kernel"
N, E, D = 25000, 400000, 128
NWG = 256
CH = 1568
CHB = 8192
CAPR = 1632
LOC0 = CAPR * 4
TS = 25024 * 128
WS_T, WS_REC, WS_DESC, WS_STAMP, WS_FLAG = 0, 0x00D00000, 0x01100000, 0x01200000, 0x01300000
LOG2E = 1.4426950408889634
STRIDE = 41
NLOC = 400
NGRP = NLOC // 16
AUS = 144
NPB = 391
MAGIC = 42909
STAMPS = opt("stamps", False)
OSC = {"plain": "", "sc1": " sc1", "nt": " nt"}[opt("osc", "sc1")]
PRIO = not opt("noprio")
ASLIST = opt("aslist", False)
WSBASE = int(opt("wsbase", 0)) << 20
XNT = " nt" if opt("xnt") else " sc1" if opt("xsc1") else ""
RNT = " nt" if opt("rnt") else ""
UCH = opt('Uch', False)
DOT = not opt('nodot')
PEEL = not opt('nopeel')
SLP = int(opt("sleep", 2))
RAWE = not opt("exacte")

L_LIST = 0
L_STAGE = 0
L_AU = NLOC * STRIDE * 4
L_WL = L_AU + 416 * AUS
L_Z = L_WL + 32768
L_CNT = L_Z
L_BINS = L_CNT + 416 * 4
L_CNTA = L_BINS + 256
L_MISC = L_CNTA + 256
M_Q, M_HS1, M_HS2, M_HS3, M_WRDY, M_XL, M_GCNT, M_DRDY, M_BQ, M_TAG, M_SLOW, M_BAD, M_RAW, M_BRDY = range(0, 56, 4)
LIM_A, LIM_B, LIM_E, LIM_V = 19.0, 19.0, 24.5, 2.0**60
L_ZEND = L_MISC + 64
L_PERM = L_ZEND
L_DESC = L_PERM + NLOC * 4
L_END = L_DESC + 1024
assert L_AU % 16 == 0 and L_WL % 16 == 0 and L_END <= 163840, L_END

sWG, sWAVE, sSL, sBK = 2, 3, 4, 5
sT0, sT1, sT2, sT3 = 6, 7, 8, 9
sVAL, sOVF = 10, 12
sK, sMAX = 14, 15
pX, pE, pSRC, pDST, pWA, pWB, pWC, pWU, pWV, pOUT, pDBG, pWS = 16, 18, 20, 22, 24, 26, 28, 30, 32, 34, 36, 38
rX, rW, rT, rREC, rDESC, rA, rB, rC = 40, 44, 48, 52, 56, 60, 64, 68
sMHI, sM7F0, sM7FF, sTINY, sPERM, sNL2E, sMIN, sBASE = 72, 73, 74, 75, 76, 77, 78, 79
sMSK = 80
sVAL2 = 80
sST, rST = 96, 98
sSL64, sSPIN, sTILE, sXS = 0, 1, 100, 101
sTAG = 32
sPEND = 33
rFLG, rDBG = rB, rC

def srd(a, r, p, nbytes, add=None):
    if add is None:
        a(f"s_mov_b32 {s(r)}, {s(p)}")
        a(f"s_and_b32 {s(r+1)}, {s(p+1)}, 0xffff")
    else:
        a(f"s_add_u32 {s(r)}, {s(p)}, {add}")
        a(f"s_addc_u32 {s(r+1)}, {s(p+1)}, 0")
        a(f"s_and_b32 {s(r+1)}, {s(r+1)}, 0xffff")
    a(f"s_mov_b32 {s(r+2)}, {hx(nbytes)}")
    a(f"s_mov_b32 {s(r+3)}, 0x20000")

def stamp(a, idx, vt, wave=0, clk=False):
    if not STAMPS: return
    l = a.uid("ST")
    if wave is not None and wave >= 0:
        a(f"s_cmp_lg_u32 {s(sWAVE)}, {wave}")
        a(f"s_cbranch_scc1 {l}")
    a(f"s_memrealtime {s(sST,2)}" if not clk else f"s_memtime {s(sST,2)}")
    a(f"s_waitcnt lgkmcnt(0)")
    a(f"s_mov_b64 {s(rST,2)}, exec")
    a(f"s_mov_b64 exec, 1")
    a(f"v_mov_b32 {v(vt)}, {s(sST)}")
    a(f"v_mov_b32 {v(vt+1)}, {s(sST+1)}")
    a(f"s_lshl_b32 {s(sST)}, {s(sWG)}, 8")
    if wave is None:
        a(f"s_lshl_b32 {s(sST+1)}, {s(sWAVE)}, 3")
        a(f"s_add_u32 {s(sST)}, {s(sST)}, {s(sST+1)}")
    a(f"s_add_u32 {s(sST)}, {s(sST)}, {WS_STAMP + idx*8 + (0x10000 if clk else 0)}")
    a(f"v_mov_b32 {v(vt+2)}, {s(sST)}")
    a(f"global_store_dwordx2 {v(vt+2)}, {v(vt,2)}, {s(pWS,2)}")
    a(f"s_mov_b64 exec, {s(rST,2)}")
    a(f"{l}:")

def scan64(a, r):
    for sh in (1, 2, 4, 8):
        a("s_nop 1")
        a(f"v_add_u32_dpp {v(r)}, {v(r)}, {v(r)} row_shr:{sh} row_mask:0xf bank_mask:0xf")
    a("s_nop 1")
    a(f"v_add_u32_dpp {v(r)}, {v(r)}, {v(r)} row_bcast:15 row_mask:0xa bank_mask:0xf")
    a("s_nop 1")
    a(f"v_add_u32_dpp {v(r)}, {v(r)}, {v(r)} row_bcast:31 row_mask:0xc bank_mask:0xf")

def tr_reads(a, mat, vTR, vWF):
    for t in range(8):
        for q in range(2):
            a(f"ds_read_b64_tr_b16 {v(vWF+4*t+2*q,2)}, {v(vTR)} offset:{mat*8192 + t*1024 + q*256}")

def mfma_chain(a, vWF, vX, vACC):
    for t in range(8):
        c = "0" if t == 0 else v(vACC, 16)
        a(f"v_mfma_f32_32x32x16_bf16 {v(vACC,16)}, {v(vWF+4*t,4)}, {v(vX+4*t,4)}, {c}")

def pack_chain(a, vIN, vOUT, vTMP, vBIG):
    G = range(4)
    m = lambda g: vTMP + g
    t = lambda g: vTMP + 4 + g
    sd = "dst_sel:DWORD dst_unused:UNUSED_PAD src0_sel:DWORD"
    for g in G: a(f"v_cvt_pk_bf16_f32 {v(vOUT+2*g)}, {v(vIN+4*g)}, {v(vIN+4*g+1)}")
    for g in G: a(f"v_med3_f32 {v(m(g))}, |{v(vIN+4*g+1)}|, {s(sTINY)}, {v(vBIG)}")
    for g in G: a(f"v_med3_f32 {v(t(g))}, |{v(vIN+4*g+2)}|, {s(sTINY)}, {v(vBIG)}")
    for g in G: a(f"v_add_u32 {v(m(g))}, 0x8000, {v(m(g))}")
    for g in G: a(f"v_add_u32 {v(t(g))}, 0x8000, {v(t(g))}")
    for g in G: a(f"v_sub_u32_sdwa {v(m(g))}, {v(m(g))}, {v(vOUT+2*g)} {sd} src1_sel:WORD_0")
    for g in G: a(f"v_bfi_b32 {v(vOUT+2*g)}, {s(sM7F0)}, {v(m(g))}, {v(vOUT+2*g)}")
    for g in G: a(f"v_med3_f32 {v(m(g))}, |{v(vIN+4*g+3)}|, {s(sTINY)}, {v(vBIG)}")
    for g in G: a(f"v_sub_u32_sdwa {v(t(g))}, {v(t(g))}, {v(vOUT+2*g)} {sd} src1_sel:WORD_1")
    for g in G: a(f"v_add_u32 {v(m(g))}, 0x8000, {v(m(g))}")
    for g in G: a(f"v_bfi_b32 {v(t(g))}, {s(sM7FF)}, {v(t(g))}, {v(vIN+4*g+2)}")
    for g in G: a(f"v_sub_u32_sdwa {v(m(g))}, {v(m(g))}, {v(t(g))} {sd} src1_sel:WORD_1")
    for g in G: a(f"v_perm_b32 {v(t(g))}, {v(vIN+4*g+3)}, {v(t(g))}, {s(sPERM)}")
    for g in G: a(f"v_bfi_b32 {v(vOUT+2*g+1)}, {s(sM7F0)}, {v(m(g))}, {v(t(g))}")

def pk(op, d, a0, b0, c0=None, sel=None):
    ops = f"{v(d,2)}, {a0}, {b0}" + (f", {c0}" if c0 else "")
    return f"v_pk_{op}_f32 {ops}" + (f" {sel}" if sel else "")

def gen(a):
    R = Regs(1, 128)
    vt = R.alloc(4)
    vLane = R.alloc(); vOne = R.alloc(); vJ16 = R.alloc(); vMISC = R.alloc()
    vWC = R.alloc(8)
    m0 = R.mark()
    vAUa = R.alloc(); vTR = R.alloc(); vBIG = R.alloc(); vXA = R.alloc(); vXV = R.alloc(); vXB = R.alloc(); vFA = R.alloc(4)
    vO = R.alloc(16, 4); vTM = vO + 8
    vX = R.alloc(32, 4); vWF = R.alloc(32, 4); vACC = R.alloc(16, 4)

    def signal(off, ret=None):
        a("s_mov_b64 exec, 1")
        if ret is None: a(f"ds_add_u32 {v(vMISC)}, {v(vOne)} offset:{off}")
        else: a(f"ds_add_rtn_u32 {v(ret)}, {v(vMISC)}, {v(vOne)} offset:{off}")
        a("s_mov_b64 exec, -1")
    def spin(off, target, vtmp):
        l = a.uid("SP"); d = a.uid("SPD")
        a(f"s_mov_b32 {s(sSPIN)}, 0x400000")
        a(f"{l}:")
        a(f"ds_read_b32 {v(vtmp)}, {v(vMISC)} offset:{off}")
        a("s_waitcnt lgkmcnt(0)")
        a(f"v_readfirstlane_b32 {s(sT0)}, {v(vtmp)}")
        a(f"s_cmp_ge_u32 {s(sT0)}, {target}")
        a(f"s_cbranch_scc1 {d}")
        a(f"s_sleep {opt('lsleep', 1)}")
        a(f"s_sub_u32 {s(sSPIN)}, {s(sSPIN)}, 1")
        a(f"s_cbranch_scc0 {l}")
        a(f"{d}:")
    def x_setup():
        a(f"v_lshrrev_b32 {v(vXV)}, 3, {v(vLane)}")
        a(f"v_lshrrev_b32 {v(vXA)}, 4, {v(vLane)}")
        a(f"v_and_b32 {v(vXB)}, 7, {v(vLane)}")
        a(f"v_xor_b32 {v(vXB)}, {v(vXB)}, {v(vXA)}")
        a(f"v_lshlrev_b32 {v(vXB)}, 4, {v(vXB)}")
        a(f"s_lshl_b32 {s(sT0)}, {s(sTILE)}, 5")
        a(f"v_add_u32 {v(vXV)}, {s(sT0)}, {v(vXV)}")
        a(f"s_mul_i32 {s(sT0)}, {s(sBK)}, {NPB*256}")
        a(f"v_lshl_add_u32 {v(vXA)}, {v(vXV)}, 8, {s(sT0)}")
        a(f"v_sub_u32 {v(vXV)}, {NPB-1}, {v(vXV)}")
    def x_round(rnd, vA):
        a(f"s_mov_b32 m0, {s(sXS)}")
        a(f"s_brev_b32 {s(sT1)}, 1")
        for i in range(4):
            a(f"v_xor_b32 {v(vA)}, {(i&1)*64}, {v(vXB)}")
            a(f"v_add_u32 {v(vA+1)}, {i*2048 + rnd*128}, {v(vXA)}")
            a(f"v_add_u32 {v(vA)}, {v(vA)}, {v(vA+1)}")
            a(f"v_subrev_u32 {v(vA+1)}, {8*i}, {v(vXV)}")
            a(f"v_and_or_b32 {v(vA)}, {v(vA+1)}, {s(sT1)}, {v(vA)}")
            a(f"buffer_load_dwordx4 {v(vA)}, {s(rX,4)}, 0 offen{XNT} lds")
            if i < 3: a(f"s_add_u32 m0, m0, 1024")
    def tagpoll_issue(vA, vD, n, rr, step, sP):
        for i in range(4):
            l = a.uid("PA")
            a(f"s_mov_b64 exec, {s(sP+2*i,2)}")
            a(f"s_cbranch_execz {l}")
            a(f"s_mov_b32 {s(sT0)}, {i*step}")
            a(f"buffer_load_dword{'x2' if n == 2 else ''} {v(vD+n*i,n)}, {v(vA)}, {s(rr,4)}, {s(sT0)} offen sc1")
            a(f"{l}:")
        a("s_mov_b64 exec, -1")
    def tagpoll(vA, vD, n, rr, step, sP, issued=False, vtmp=None):
        l = a.uid("TP"); c = a.uid("TPC"); d = a.uid("TPD")
        a(f"s_mov_b32 {s(sSPIN)}, 0x100000")
        if issued: a(f"s_branch {c}")
        a(f"{l}:")
        tagpoll_issue(vA, vD, n, rr, step, sP)
        a(f"{c}:")
        a("s_waitcnt vmcnt(0)")
        for i in range(4):
            if vtmp is None:
                a(f"v_cmp_ne_u32 {s(sP+2*i,2)}, {s(sTAG)}, {v(vD+n*i+n-1)}")
            else:
                a(f"v_and_b32 {v(vtmp)}, -3, {v(vD+n*i+n-1)}")
                a(f"v_cmp_ne_u32 {s(sP+2*i,2)}, {s(sTAG)}, {v(vtmp)}")
        a(f"s_or_b64 {s(sT2,2)}, {s(sP,2)}, {s(sP+2,2)}")
        a(f"s_or_b64 vcc, {s(sP+4,2)}, {s(sP+6,2)}")
        a(f"s_or_b64 vcc, vcc, {s(sT2,2)}")
        a(f"s_cbranch_vccz {d}")
        a(f"s_sleep {SLP}")
        a(f"s_sub_u32 {s(sSPIN)}, {s(sSPIN)}, 1")
        a(f"s_cbranch_scc0 {l}")
        a(f"{d}:")

    a.raw(f".globl {KNAME}")
    a.raw(".p2align 8")
    a.raw(f".type {KNAME},@function")
    a.raw(f"{KNAME}:")
    a(f"s_cmp_ge_u32 s2, {NWG}")
    a(f"s_cbranch_scc1 K_END")
    a("s_load_dwordx16 s[16:31], s[0:1], 0")
    a("s_load_dwordx8 s[32:39], s[0:1], 64")
    a(f"v_lshrrev_b32 v1, 6, v0")
    a(f"s_and_b32 {s(sSL)}, s2, 3")
    a(f"v_readfirstlane_b32 {s(sWAVE)}, v1")
    a(f"s_lshr_b32 {s(sBK)}, s2, 2")
    a(f"v_and_b32 {v(vLane)}, 63, v0")
    if not opt("nocpf"):
        a(f"s_cmp_lg_u32 {s(sWAVE)}, 15")
        a("s_cbranch_scc1 K_NOCPF")
        a(f"s_getpc_b64 {s(sT2,2)}")
        a("K_PC:")
        a(f"s_mov_b32 {s(sT0)}, K_END-K_PC")
        a(f"v_lshlrev_b32 v127, 7, {v(vLane)}")
        a(f"global_load_dword v126, v127, {s(sT2,2)}")
        a(f"v_add_u32 v127, 0x2000, v127")
        a(f"v_cmp_gt_u32 vcc, {s(sT0)}, v127")
        a("s_mov_b64 exec, vcc")
        a(f"global_load_dword v126, v127, {s(sT2,2)}")
        a("s_mov_b64 exec, -1")
        a("K_NOCPF:")
        R.hi = 128
    a(f"v_mov_b32 {v(vOne)}, 1")
    a(f"v_mov_b32 {v(vMISC)}, {L_MISC}")
    nz = (L_ZEND - L_Z) // 4
    a(f"v_lshlrev_b32 {v(vt)}, 2, v0")
    a(f"v_add_u32 {v(vt)}, {L_Z}, {v(vt)}")
    a(f"v_mov_b32 {v(vt+1)}, 0")
    a(f"v_cmp_gt_u32 vcc, {nz}, v0")
    a("s_mov_b64 exec, vcc")
    a(f"ds_write_b32 {v(vt)}, {v(vt+1)}")
    a("s_mov_b64 exec, -1")
    a(f"v_and_b32 {v(vJ16)}, 3, v0")
    a(f"v_lshlrev_b32 {v(vJ16)}, 4, {v(vJ16)}")
    a(f"s_sub_u32 {s(sTILE)}, {s(sWAVE)}, 4")
    a(f"s_cselect_b32 {s(sTILE)}, 12, {s(sTILE)}")
    a(f"s_mul_i32 {s(sXS)}, {s(sTILE)}, {32*AUS}")
    a(f"s_add_u32 {s(sXS)}, {s(sXS)}, {L_AU}")
    x_setup()
    a("s_waitcnt lgkmcnt(0)")
    if WSBASE:
        a(f"s_add_u32 {s(pWS)}, {s(pWS)}, {WSBASE}")
        a(f"s_addc_u32 {s(pWS+1)}, {s(pWS+1)}, 0")
    a(f"s_lshl_b32 {s(sSL64)}, {s(sSL)}, 6")
    stamp(a, 0, vACC)
    srd(a, rX, pX, N*256)
    a(f"s_cmp_ge_u32 {s(sWAVE)}, 4")
    a("s_cbranch_scc1 K_G0")
    vD8 = vX; vS8 = vX + 8; vE4 = vX + 16; vRK = vX + 20; vKY = vWF; vRP = vWF + 8; vCN = vWF + 24; vEX = vWF + 26
    a("s_setprio 3")
    srd(a, rA, pDST, E*4); srd(a, rB, pSRC, E*4); srd(a, rC, pE, E*2)
    a(f"s_mul_i32 {s(sT0)}, s2, {CH}")
    a(f"v_lshl_add_u32 {v(vt)}, v0, 2, {s(sT0)}")
    a(f"v_add_u32 {v(vt+1)}, {CH//2}, {v(vt)}")
    a(f"s_mov_b32 {s(sT1)}, {E}")
    a(f"v_cmp_gt_u32 vcc, {CH//8}, v0")
    a(f"v_cmp_gt_u32 {s(sVAL,2)}, {s(sT1)}, {v(vt)}")
    a(f"v_cmp_gt_u32 {s(sVAL2,2)}, {s(sT1)}, {v(vt+1)}")
    a(f"v_lshlrev_b32 {v(vt+2)}, 2, {v(vt)}")
    a(f"v_lshlrev_b32 {v(vt+3)}, 1, {v(vt)}")
    a(f"s_and_b64 {s(sVAL,2)}, {s(sVAL,2)}, vcc")
    a(f"s_and_b64 {s(sVAL2,2)}, {s(sVAL2,2)}, vcc")
    a("s_mov_b64 exec, vcc")
    a(f"buffer_load_dwordx4 {v(vD8,4)}, {v(vt+2)}, {s(rA,4)}, 0 offen")
    a(f"buffer_load_dwordx4 {v(vD8+4,4)}, {v(vt+2)}, {s(rA,4)}, 0 offen offset:{CH*2}")
    a(f"buffer_load_dwordx4 {v(vS8,4)}, {v(vt+2)}, {s(rB,4)}, 0 offen")
    a(f"buffer_load_dwordx4 {v(vS8+4,4)}, {v(vt+2)}, {s(rB,4)}, 0 offen offset:{CH*2}")
    a(f"buffer_load_dwordx2 {v(vE4,2)}, {v(vt+3)}, {s(rC,4)}, 0 offen")
    a(f"buffer_load_dwordx2 {v(vE4+2,2)}, {v(vt+3)}, {s(rC,4)}, 0 offen offset:{CH}")
    a("s_mov_b64 exec, -1")
    a(f"s_or_b32 {s(sT0)}, s2, {s(sWAVE)}")
    a("s_cbranch_scc1 K_NOTAG")
    a(f"s_memrealtime {s(sT2,2)}")
    a("s_waitcnt lgkmcnt(0)")
    a(f"s_lshl_b32 {s(sT2)}, {s(sT2)}, 2")
    a(f"s_or_b32 {s(sT2)}, {s(sT2)}, 1")
    a(f"v_mov_b32 {v(vt)}, {s(sT2)}")
    a(f"v_mov_b32 {v(vt+1)}, 0")
    a("s_mov_b64 exec, 1")
    a(f"global_store_dword {v(vt+1)}, {v(vt)}, {s(pDBG,2)} sc1")
    a("s_mov_b64 exec, -1")
    a("K_NOTAG:")
    a("s_branch K_C0")
    a("K_G0:")
    if opt("xpre"): x_round(0, vACC)
    a("K_C0:")
    a("s_barrier")
    if not opt("xpre"):
        a(f"s_cmp_lt_u32 {s(sWAVE)}, 4")
        a("s_cbranch_scc1 K_C2")
        x_round(0, vACC)
        a("s_branch K_C1")
        a("K_C2:")
        a(f"s_cmp_eq_u32 {s(sWAVE)}, 1")
        a(f"s_cselect_b32 {s(rW)}, {s(pWV)}, {s(pWB)}")
        a(f"s_cselect_b32 {s(rW+1)}, {s(pWV+1)}, {s(pWB+1)}")
        a(f"s_cmp_eq_u32 {s(sWAVE)}, 2")
        a(f"s_cselect_b32 {s(rW)}, {s(pWA)}, {s(rW)}")
        a(f"s_cselect_b32 {s(rW+1)}, {s(pWA+1)}, {s(rW+1)}")
        a(f"s_cmp_eq_u32 {s(sWAVE)}, 3")
        a(f"s_cselect_b32 {s(rW)}, {s(pWU)}, {s(rW)}")
        a(f"s_cselect_b32 {s(rW+1)}, {s(pWU+1)}, {s(rW+1)}")
        a(f"s_and_b32 {s(rW+1)}, {s(rW+1)}, 0xffff")
        a(f"s_mov_b32 {s(rW+2)}, {128*256}")
        a(f"s_mov_b32 {s(rW+3)}, 0x20000")
        a(f"v_lshrrev_b32 {v(vt)}, 2, {v(vLane)}")
        a(f"v_lshl_add_u32 {v(vt)}, {v(vt)}, 8, {v(vJ16)}")
        a(f"s_lshl_b32 {s(sT0)}, {s(sWAVE)}, 13")
        a(f"s_add_u32 m0, {s(sT0)}, {L_WL}")
        a(f"s_mov_b32 {s(sT1)}, {s(sSL64)}")
        for i in range(8):
            a(f"buffer_load_dwordx4 {v(vt)}, {s(rW,4)}, {s(sT1)} offen lds")
            if i < 7:
                a(f"s_add_u32 m0, m0, 1024")
                a(f"s_add_u32 {s(sT1)}, {s(sT1)}, 4096")
        a("K_C1:")
    srd(a, rC, pWC, 256)
    a(f"buffer_load_dwordx4 {v(vWC,4)}, {v(vJ16)}, {s(rC,4)}, {s(sSL64)} offen")
    a(f"s_mov_b32 {s(sMHI)}, 0xffff0000")
    a(f"s_mov_b32 {s(sM7F0)}, 0x7fff0000")
    a(f"s_mov_b32 {s(sM7FF)}, 0x7fffffff")
    a(f"s_mov_b32 {s(sTINY)}, 0x00800000")
    a(f"s_mov_b32 {s(sPERM)}, 0x07060302")
    a(f"s_mov_b32 {s(sNL2E)}, {hx(fbits(-LOG2E))}")
    a(f"s_mov_b32 {s(sPEND)}, 0")
    a(f"s_mul_i32 {s(sT0)}, {s(sSL)}, {TS}")
    srd(a, rT, pWS, N*128, s(sT0))
    srd(a, rREC, pWS, NWG*CHB, WS_REC)
    srd(a, rDESC, pWS, 131072, WS_DESC)
    srd(a, rA, pOUT, N*256)
    srd(a, rDBG, pDBG, 256)
    srd(a, rFLG, pWS, 32768, WS_FLAG)
    a(f"s_cmp_ge_u32 {s(sWAVE)}, 4")
    a("s_cbranch_scc1 K_GEMM")
    a("s_waitcnt vmcnt(9)")
    stamp(a, 1, vACC, 1)
    a(f"s_mov_b32 {s(sT0)}, {L_CNTA}")
    a(f"s_mov_b32 {s(sT1)}, {-NPB & 0xffffffff}")
    for i in range(8):
        a(f"v_mul_u32_u24 {v(vt)}, {MAGIC}, {v(vD8+i)}")
        a(f"v_lshrrev_b32 {v(vt)}, 24, {v(vt)}")
        a(f"v_mad_i32_i24 {v(vD8+i)}, {v(vt)}, {s(sT1)}, {v(vD8+i)}")
        a(f"v_and_b32 {v(vKY+i)}, 62, {v(vt)}")
        a(f"v_and_b32 {v(vt)}, 1, {v(vt)}")
        a(f"v_lshlrev_b32 {v(vKY+i)}, 1, {v(vKY+i)}")
        a(f"v_lshl_or_b32 {v(vKY+i)}, {v(vt)}, 7, {v(vKY+i)}")
        a(f"v_add_u32 {v(vRP+i)}, {s(sT0)}, {v(vKY+i)}")
        if i % 4 == 3:
            a(f"s_mov_b64 exec, {s(sVAL if i == 3 else sVAL2,2)}")
            for j in range(i - 3, i + 1):
                a(f"ds_add_rtn_u32 {v(vRK+j)}, {v(vRP+j)}, {v(vOne)}")
            a("s_mov_b64 exec, -1")
    a("s_waitcnt lgkmcnt(0)")
    signal(M_HS1)
    for i in range(8):
        e = vE4 + i // 2
        if i % 2 == 0: a(f"v_lshl_or_b32 {v(vRP+i)}, {v(e)}, 16, {v(vS8+i)}")
        else:          a(f"v_and_or_b32 {v(vRP+i)}, {v(e)}, {s(sMHI)}, {v(vS8+i)}")
        a(f"v_and_b32 {v(vt)}, 0x100, {v(vD8+i)}")
        a(f"v_lshl_or_b32 {v(vRP+i)}, {v(vt)}, 7, {v(vRP+i)}")
        a(f"v_mov_b32 {v(vRP+8+i)}, {v(vD8+i)}")
    a(f"v_lshlrev_b32 {v(vt)}, 2, {v(vLane)}")
    a(f"v_add_u32 {v(vt+1)}, {L_CNTA}, {v(vt)}")
    spin(M_HS1, 4, vt+2)
    a(f"ds_read_b32 {v(vCN)}, {v(vt+1)}")
    a("s_waitcnt lgkmcnt(0)")
    a(f"v_add_u32 {v(vEX+1)}, 1, {v(vCN)}")
    a(f"v_and_b32 {v(vEX+1)}, -2, {v(vEX+1)}")
    a(f"v_mov_b32 {v(vEX)}, {v(vEX+1)}")
    scan64(a, vEX)
    a(f"v_sub_u32 {v(vEX)}, {v(vEX)}, {v(vEX+1)}")
    for i in range(8):
        a(f"ds_bpermute_b32 {v(vD8+i)}, {v(vKY+i)}, {v(vEX)}")
    a(f"v_lshl_or_b32 {v(vCN)}, {v(vCN)}, 16, {v(vEX)}")
    for i in range(8):
        a(f"s_waitcnt lgkmcnt({7-i})")
        a(f"v_add_u32 {v(vD8+i)}, {v(vD8+i)}, {v(vRK+i)}")
        a(f"v_lshlrev_b32 {v(vRK+i)}, 2, {v(vD8+i)}")
    for i in range(8):
        if i % 4 == 0: a(f"s_mov_b64 exec, {s(sVAL if i == 0 else sVAL2,2)}")
        a(f"ds_write_b32 {v(vRK+i)}, {v(vRP+i)} offset:{L_STAGE}")
        a(f"ds_write_b8 {v(vD8+i)}, {v(vRP+8+i)} offset:{L_STAGE + LOC0}")
    a("s_mov_b64 exec, -1")
    a("s_waitcnt lgkmcnt(0)")
    signal(M_HS2)
    a("s_waitcnt vmcnt(1)" if not STAMPS else "s_waitcnt vmcnt(0)")
    signal(M_WRDY)
    a(f"v_lshlrev_b32 {v(vt+1)}, 4, v0")
    spin(M_HS2, 4, vt+3)
    for i in range(2):
        a(f"ds_read_b128 {v(vX+4*i,4)}, {v(vt+1)} offset:{L_STAGE + i*4096}")
    a(f"s_lshl_b32 {s(sT0)}, s2, 13")
    a(f"s_add_u32 {s(sT1)}, {s(sT0)}, 4096")
    a("s_waitcnt lgkmcnt(1)")
    a(f"buffer_store_dwordx4 {v(vX,4)}, {v(vt+1)}, {s(rREC,4)}, {s(sT0)} offen sc1")
    a("s_waitcnt lgkmcnt(0)")
    a(f"buffer_store_dwordx4 {v(vX+4,4)}, {v(vt+1)}, {s(rREC,4)}, {s(sT1)} offen sc1")
    a(f"s_cmp_lg_u32 {s(sWAVE)}, 0")
    a("s_cbranch_scc1 K_NOLAST")
    x_round(0, vACC)
    a("K_NOLAST:")
    stamp(a, 2, vACC, 1)
    a(f"v_mov_b32 {v(vt+2)}, 0")
    a(f"s_mov_b32 {s(sSPIN)}, 0x100000")
    a("K_GOL:")
    a(f"buffer_load_dword {v(vCN+1)}, {v(vt+2)}, {s(rDBG,4)}, 0 offen sc1")
    a("s_waitcnt vmcnt(0)")
    a(f"v_readfirstlane_b32 {s(sTAG)}, {v(vCN+1)}")
    a(f"s_cmp_lg_u32 {s(sTAG)}, 0")
    a("s_cbranch_scc1 K_GOD")
    a(f"s_sub_u32 {s(sSPIN)}, {s(sSPIN)}, 1")
    a("s_cbranch_scc0 K_GOL")
    a("K_GOD:")
    a(f"ds_write_b32 {v(vMISC)}, {v(vCN+1)} offset:{M_TAG}")
    signal(M_HS3, vt+3)
    a(f"v_lshlrev_b32 {v(vt+1)}, 3, {v(vLane)}")
    a(f"s_lshl_b32 {s(sT1)}, s2, 9")
    a("s_waitcnt lgkmcnt(0)")
    a(f"v_readfirstlane_b32 {s(sT0)}, {v(vt+3)}")
    a(f"s_cmp_lg_u32 {s(sT0)}, 3")
    a("s_cbranch_scc1 K_NOFLAGA")
    a(f"buffer_store_dwordx2 {v(vCN,2)}, {v(vt+1)}, {s(rDESC,4)}, {s(sT1)} offen sc1")
    stamp(a, 3, vACC, -1)
    a("K_NOFLAGA:")
    a(f"s_cmp_eq_u32 {s(sWAVE)}, 0")
    a("s_cbranch_scc1 K_GEMM")
    a(f"s_cmp_lg_u32 {s(sWAVE)}, 3")
    a("s_cbranch_scc1 K_RECS")
    spin(M_XL, int(opt("pollat", 12)), vt+1)
    stamp(a, 4, vACC, 3)
    a(f"s_lshr_b32 {s(sT0)}, {s(sBK)}, 1")
    a(f"s_and_b32 {s(sT1)}, {s(sBK)}, 1")
    a(f"s_lshl_b32 {s(sT1)}, {s(sT1)}, 5")
    a(f"s_or_b32 {s(sT0)}, {s(sT0)}, {s(sT1)}")
    a(f"s_lshl_b32 {s(sT0)}, {s(sT0)}, 3")
    a(f"v_lshlrev_b32 {v(vt+1)}, 9, {v(vLane)}")
    a(f"v_add_u32 {v(vt+1)}, {s(sT0)}, {v(vt+1)}")
    sP = 16
    for i in range(4): a(f"s_mov_b64 {s(sP+2*i,2)}, -1")
    tagpoll(vt+1, vX, 2, rDESC, 32768, sP)
    a(f"v_add_u32 {v(vt+1)}, {L_DESC}, {v(vt)}")
    for i in range(4):
        a(f"ds_write_b32 {v(vt+1)}, {v(vX+2*i)} offset:{i*256}")
    a("s_waitcnt lgkmcnt(0)")
    signal(M_DRDY)
    stamp(a, 5, vACC, 3)
    a("s_branch K_RECS")
    a("K_GEMM:")
    a(f"v_and_b32 {v(vt)}, 31, {v(vLane)}")
    a(f"v_lshrrev_b32 {v(vt+2)}, 5, {v(vLane)}")
    a(f"v_lshl_add_u32 {v(vt+1)}, {v(vt)}, 7, {s(sXS)}")
    a(f"v_bfe_u32 {v(vt+3)}, {v(vLane)}, 1, 3")
    a(f"v_xor_b32 {v(vt+3)}, {v(vt+3)}, {v(vt+2)}")
    a(f"v_lshlrev_b32 {v(vt+3)}, 4, {v(vt+3)}")
    for t in range(4):
        a(f"v_xor_b32 {v(vFA+t)}, {t*32}, {v(vt+3)}")
        a(f"v_add_u32 {v(vFA+t)}, {v(vFA+t)}, {v(vt+1)}")
    a(f"v_mul_u32_u24 {v(vAUa)}, {AUS}, {v(vt)}")
    a(f"v_lshl_add_u32 {v(vAUa)}, {v(vt+2)}, 4, {v(vAUa)}")
    a(f"v_add_u32 {v(vAUa)}, {s(sXS)}, {v(vAUa)}")
    a(f"v_lshlrev_b32 {v(vTR)}, 3, {v(vt+2)}")
    a(f"v_bfe_u32 {v(vt)}, {v(vLane)}, 2, 2")
    a(f"v_add_u32 {v(vTR)}, {v(vTR)}, {v(vt)}")
    a(f"v_lshlrev_b32 {v(vTR)}, 6, {v(vTR)}")
    a(f"v_bfe_u32 {v(vt)}, {v(vLane)}, 4, 1")
    a(f"v_lshl_add_u32 {v(vTR)}, {v(vt)}, 5, {v(vTR)}")
    a(f"v_and_b32 {v(vt)}, 1, {v(vLane)}")
    a(f"v_lshl_add_u32 {v(vTR)}, {v(vt)}, 4, {v(vTR)}")
    a(f"v_and_b32 {v(vt)}, 2, {v(vLane)}")
    a(f"v_lshl_add_u32 {v(vTR)}, {v(vt)}, 2, {v(vTR)}")
    a(f"v_add_u32 {v(vTR)}, {L_WL}, {v(vTR)}")
    a(f"v_mov_b32 {v(vBIG)}, 0x7f7f7fff")
    a("s_waitcnt vmcnt(0)")
    for t in range(4):
        a(f"ds_read_b128 {v(vX+4*t,4)}, {v(vFA+t)}")
    if opt("xgate"): spin(M_HS3, 4, vt)
    else: a("s_waitcnt lgkmcnt(0)")
    x_round(1, vACC)
    def tr_half(hf):
        for mat in range(2):
            for t in range(4):
                for q in range(2):
                    a(f"ds_read_b64_tr_b16 {v(vWF+16*mat+4*t+2*q,2)}, {v(vTR)} offset:{mat*8192 + (4*hf+t)*1024 + q*256}")
    def mfma_half(hf):
        for t in range(4):
            for mat, acc in ((0, vACC), (1, vO)):
                c = "0" if (hf == 0 and t == 0) else v(acc, 16)
                a(f"v_mfma_f32_32x32x16_bf16 {v(acc,16)}, {v(vWF+16*mat+4*t,4)}, {v(vX+16*hf+4*t,4)}, {c}")
    spin(M_WRDY, 4, vt)
    tr_half(0)
    a("s_waitcnt lgkmcnt(0)")
    mfma_half(0)
    tr_half(1)
    a("s_waitcnt vmcnt(0)")
    signal(M_XL)
    stamp(a, 6, vt, 4)
    stamp(a, 7, vt, 15)
    a("s_setprio 3")
    for t in range(4):
        a(f"ds_read_b128 {v(vX+16+4*t,4)}, {v(vFA+t)}")
    a("s_waitcnt lgkmcnt(0)")
    mfma_half(1)
    tr_reads(a, 2, vTR, vWF)
    def packT(A):
        for g in range(4): a(f"v_add_u32 {v(A+4*g)}, 0x8000, {v(A+4*g)}")
        for g in range(4):
            a(f"v_perm_b32 {v(A+2*g)}, {v(A+4*g+1)}, {v(A+4*g)}, {s(sPERM)}")
            a(f"v_perm_b32 {v(A+2*g+1)}, {v(A+4*g+3)}, {v(A+4*g+2)}, {s(sPERM)}")
    def scale():
        for r in range(16): a(f"v_mul_f32 {v(vACC+r)}, {s(sNL2E)}, {v(vACC+r)}")
    def rcheck(ab, lim, word, skip=None, vACC=vACC):
        l = a.uid("RC")
        m = (lambda r: f"|{v(r)}|") if ab else v
        a(f"v_max3_f32 {v(vt)}, {m(vACC)}, {m(vACC+1)}, {m(vACC+2)}")
        a(f"v_max3_f32 {v(vt+1)}, {m(vACC+3)}, {m(vACC+4)}, {m(vACC+5)}")
        for r in range(6, 14, 4):
            a(f"v_max3_f32 {v(vt)}, {v(vt)}, {m(vACC+r)}, {m(vACC+r+1)}")
            a(f"v_max3_f32 {v(vt+1)}, {v(vt+1)}, {m(vACC+r+2)}, {m(vACC+r+3)}")
        a(f"v_max3_f32 {v(vt)}, {v(vt)}, {m(vACC+14)}, {m(vACC+15)}")
        a(f"v_max_f32 {v(vt)}, {v(vt)}, {v(vt+1)}")
        a(f"v_cmp_lt_f32 vcc, {hx(fbits(lim))}, {v(vt)}")
        a(f"s_cbranch_vccz {l}")
        a(f"ds_write_b32 {v(vMISC)}, {v(vOne)} offset:{word}")
        if skip:
            a(f"s_lshl_b32 {s(sT0)}, 1, {s(sTILE)}")
            a(f"v_mov_b32 {v(vt)}, {s(sT0)}")
            a(f"ds_or_b32 {v(vMISC)}, {v(vt)} offset:{M_RAW}")
        if True:
            a(f"v_bfrev_b32 {v(vt)}, 1")
            a(f"v_or_b32 {v(vt)}, {v(vt)}, {v(vBIG)}")
            for r in range(16): a(f"v_med3_f32 {v(vACC+r)}, {v(vACC+r)}, {v(vt)}, {v(vBIG)}")
        a("s_waitcnt lgkmcnt(0)")
        if skip: a(f"s_branch {skip}")
        a(f"{l}:")
    scale()
    rcheck(True, LIM_B, M_BAD)
    packT(vACC)
    a(f"ds_write_b128 {v(vAUa)}, {v(vACC,4)}")
    a(f"ds_write_b128 {v(vAUa)}, {v(vACC+4,4)} offset:32")
    rcheck(True, LIM_V, M_BAD, None, vO)
    packT(vO)
    a(f"ds_write_b128 {v(vAUa)}, {v(vO,4)} offset:64")
    a(f"ds_write_b128 {v(vAUa)}, {v(vO+4,4)} offset:96")
    a(f"v_lshrrev_b32 {v(vt)}, 3, {v(vLane)}")
    a(f"v_and_b32 {v(vt+1)}, 7, {v(vLane)}")
    a(f"v_lshlrev_b32 {v(vt+1)}, 4, {v(vt+1)}")
    a(f"v_mul_u32_u24 {v(vt+2)}, {AUS}, {v(vt)}")
    a(f"v_add3_u32 {v(vt+2)}, {v(vt+2)}, {v(vt+1)}, {s(sXS)}")
    a(f"v_lshrrev_b32 {v(vt)}, 1, {v(vXA)}")
    a(f"v_add_u32 {v(vt)}, {v(vt)}, {v(vt+1)}")
    a(f"s_brev_b32 {s(sT1)}, 1")
    a("s_waitcnt lgkmcnt(0)")
    for i in range(4):
        a(f"ds_read_b128 {v(vO+4*i,4)}, {v(vt+2)} offset:{i*8*AUS}")
    for i in range(4):
        a(f"v_subrev_u32 {v(vt+3)}, {8*i}, {v(vXV)}")
        a(f"v_and_or_b32 {v(vt+1)}, {v(vt+3)}, {s(sT1)}, {v(vt)}")
        a(f"s_waitcnt lgkmcnt({3-i})")
        a(f"buffer_store_dwordx4 {v(vO+4*i,4)}, {v(vt+1)}, {s(rT,4)}, 0 offen offset:{i*1024} sc1")
    stamp(a, 8, vt, 15)
    stamp(a, 13, vt, int(opt("stw", 0)))
    a("s_setprio 0")
    for mat in (2, 3):
        mfma_chain(a, vWF, vX, vACC if mat == 2 else vO)
        if mat == 2:
            tr_reads(a, 3, vTR, vWF)
            scale()
            rcheck(True, LIM_A, M_SLOW, "K_RAWA")
            for r in range(16): a(f"v_exp_f32 {v(vACC+r)}, {v(vACC+r)}")
            a("K_RAWA:")
        else:
            a("s_nop 11")
        A = vACC if mat == 2 else vO
        if mat == 2: packT(vACC)
        else:
            if UCH:
                pack_chain(a, vO, vWF, vWF + 8, vBIG)
                A = vWF
            else:
                for d in range(8): a(f"v_cvt_pk_bf16_f32 {v(vO+d)}, {v(vO+2*d)}, {v(vO+2*d+1)}")
        a(f"ds_write_b128 {v(vAUa)}, {v(A,4)} offset:{(mat-2)*64}")
        a(f"ds_write_b128 {v(vAUa)}, {v(A+4,4)} offset:{(mat-2)*64+32}")
        if mat == 2: a("s_waitcnt lgkmcnt(2)")
    a(f"s_mov_b32 {s(sPEND)}, 1")
    a("K_RECS:")
    a("s_setprio 0")
    vDS = vX; vRC = vX + 4; vRC2 = vX + 12; vLB = vX + 20; vLB2 = vX + 24; vLO = vX + 28; vRK8 = vX + 36; vAD = vX + 44; vI = vX + 52; vRB = vX + 56; vDA = vX + 57; vRB0 = vX + 58; vDA0 = vX + 59; vLA0 = vX + 60; vLAb = vX + 61; vEM = vX + 62
    sM2 = 16
    for d in range(4): a(f"v_and_b32 {v(vWC+4+d)}, {s(sMHI)}, {v(vWC+d)}")
    for d in range(4): a(f"v_lshlrev_b32 {v(vWC+d)}, 16, {v(vWC+d)}")
    for d in range(8): a(f"v_mul_f32 {v(vWC+d)}, {hx(fbits(-LOG2E*(1-1.0e-3))) if RAWE else s(sNL2E)}, {v(vWC+d)}")
    a(f"v_lshrrev_b32 {v(vt)}, 4, {v(vLane)}")
    a(f"v_and_b32 {v(vI)}, 15, {v(vLane)}")
    a(f"v_lshlrev_b32 {v(vRB0)}, 13, {v(vt)}")
    a(f"v_lshlrev_b32 {v(vI)}, 1, {v(vI)}")
    a(f"v_add_u32 {v(vLA0)}, {v(vRB0)}, {v(vI)}")
    a(f"v_add_u32 {v(vLA0)}, {LOC0}, {v(vLA0)}")
    a(f"v_lshl_add_u32 {v(vRB0)}, {v(vI)}, 2, {v(vRB0)}")
    a(f"v_add_u32 {v(vI+1)}, 1, {v(vI)}")
    a(f"v_add_u32 {v(vI+2)}, 32, {v(vI)}")
    a(f"v_add_u32 {v(vI+3)}, 33, {v(vI)}")
    a(f"v_lshlrev_b32 {v(vDA0)}, 2, {v(vt)}")
    a(f"v_add_u32 {v(vDA0)}, {L_DESC}, {v(vDA0)}")
    a(f"v_mov_b32 {v(vt+1)}, 4")
    a(f"v_mov_b32 {v(vt+2)}, {STRIDE}")
    a(f"s_mov_b64 {s(sOVF,2)}, 0")
    a(f"v_mov_b32 {v(vEM)}, 0")
    def report():
        l = a.uid("RP")
        a(f"s_mov_b32 {s(sPEND)}, 0")
        signal(M_GCNT, vt)
        a("s_waitcnt lgkmcnt(0)")
        a(f"v_readfirstlane_b32 {s(sT0)}, {v(vt)}")
        a(f"s_cmp_lg_u32 {s(sT0)}, 12")
        a(f"s_cbranch_scc1 {l}")
        a(f"ds_read_b32 {v(vt)}, {v(vMISC)} offset:{M_TAG}")
        a(f"ds_read_b32 {v(vEM+1)}, {v(vMISC)} offset:{M_BAD}")
        a(f"s_lshl_b32 {s(sT0)}, s2, 7")
        a(f"v_mov_b32 {v(vt+3)}, {s(sT0)}")
        a("s_mov_b64 exec, 1")
        a("s_waitcnt lgkmcnt(0)")
        a(f"v_lshl_or_b32 {v(vt)}, {v(vEM+1)}, 1, {v(vt)}")
        a(f"buffer_store_dword {v(vt)}, {v(vt+3)}, {s(rFLG,4)}, 0 offen sc1")
        a("s_mov_b64 exec, -1")
        stamp(a, 9, vACC, -1)
        a(f"{l}:")
    if True:
        a(f"s_cmp_eq_u32 {s(sPEND)}, 0")
        a("s_cbranch_scc1 K_NOREP0")
        a("s_waitcnt vmcnt(0)")
        spin(M_HS3, 4, vt+3)
        report()
        a("K_NOREP0:")
    spin(M_DRDY, 1, vt+3)
    a("K_BATCH:")
    signal(M_BQ, vt)
    a("s_waitcnt lgkmcnt(0)")
    a(f"v_readfirstlane_b32 {s(sK)}, {v(vt)}")
    a(f"s_cmp_ge_u32 {s(sK)}, 16")
    a("s_cbranch_scc1 K_BDONE")
    a(f"s_lshl_b32 {s(sT0)}, {s(sK)}, 6")
    a(f"v_add_u32 {v(vDA)}, {s(sT0)}, {v(vDA0)}")
    a(f"ds_read2_b32 {v(vDS,2)}, {v(vDA)} offset0:0 offset1:4")
    a(f"ds_read2_b32 {v(vDS+2,2)}, {v(vDA)} offset0:8 offset1:12")
    a(f"s_mul_i32 {s(sT0)}, {s(sK)}, {16*CHB}")
    a(f"v_add_u32 {v(vRB)}, {s(sT0)}, {v(vRB0)}")
    a(f"v_add_u32 {v(vLAb)}, {s(sT0)}, {v(vLA0)}")
    a(f"v_mov_b32 {v(vt+3)}, 64")
    a("s_waitcnt lgkmcnt(0)")
    SD = "src0_sel:DWORD src1_sel:WORD_1"
    for it in range(4):
        a(f"v_mad_u32_u16 {v(vAD+it)}, {v(vDS+it)}, {v(vt+1)}, {v(vRB)}")
        a(f"v_mad_u32_u16 {v(vAD+4+it)}, {v(vDS+it)}, {v(vOne)}, {v(vLAb)}")
        a(f"v_cmp_lt_u32_sdwa {s(sM2+4*it,2)}, {v(vI+2)}, {v(vDS+it)} {SD}")
    for it in range(4):
        l = a.uid("S2")
        a(f"s_cmp_eq_u64 {s(sM2+4*it,2)}, 0")
        a(f"s_cbranch_scc1 {l}")
        a(f"s_mov_b32 {s(sT0)}, {it*4*CHB}")
        a(f"buffer_load_dwordx2 {v(vRC2+2*it,2)}, {v(vAD+it)}, {s(rREC,4)}, {s(sT0)} offen offset:128{RNT}")
        a(f"buffer_load_ushort {v(vLB2+it)}, {v(vAD+4+it)}, {s(rREC,4)}, {s(sT0)} offen offset:32{RNT}")
        a(f"{l}:")
    for it in range(4):
        a(f"s_mov_b32 {s(sT0)}, {it*4*CHB}")
        a(f"buffer_load_dwordx2 {v(vRC+2*it,2)}, {v(vAD+it)}, {s(rREC,4)}, {s(sT0)} offen{RNT}")
        a(f"buffer_load_ushort {v(vLB+it)}, {v(vAD+4+it)}, {s(rREC,4)}, {s(sT0)} offen{RNT}")
    for it in range(4):
        a(f"v_cmp_lt_u32_sdwa {s(sMSK+4*it,2)}, {v(vI)}, {v(vDS+it)} {SD}")
        a(f"v_cmp_lt_u32_sdwa {s(sMSK+4*it+2,2)}, {v(vI+1)}, {v(vDS+it)} {SD}")
        a(f"v_cmp_lt_u32_sdwa {s(sM2+4*it+2,2)}, {v(vI+3)}, {v(vDS+it)} {SD}")
        a(f"v_cmp_lt_u32_sdwa vcc, {v(vt+3)}, {v(vDS+it)} {SD}")
        a(f"s_or_b64 {s(sOVF,2)}, {s(sOVF,2)}, vcc")
    a("s_waitcnt vmcnt(0)")
    def proc(rc, lb, msk, js):
        a(f"s_mov_b32 {s(sT0)}, {L_CNT}")
        for j in js:
            a(f"v_bfe_u32 {v(vLO+j)}, {v(lb+j//2)}, {8*(j&1)}, 8")
            a(f"v_bfe_u32 {v(vAD+j)}, {v(rc+j)}, 15, 1")
            a(f"v_lshl_or_b32 {v(vLO+j)}, {v(vAD+j)}, 8, {v(vLO+j)}")
            a(f"v_lshl_add_u32 {v(vAD+j)}, {v(vLO+j)}, 2, {s(sT0)}")
        for j in js:
            a(f"s_mov_b64 exec, {s(msk+2*j,2)}")
            a(f"ds_add_rtn_u32 {v(vRK8+j)}, {v(vAD+j)}, {v(vOne)}")
        a("s_mov_b64 exec, -1")
        for j in js:
            a(f"v_and_b32 {v(rc+j)}, {opt('fakesrc', '0xffff7fff')}, {v(rc+j)}")
        for n, j in enumerate(js):
            a(f"s_waitcnt lgkmcnt({len(js)-1-n})")
            a(f"v_mad_u32_u24 {v(vAD+j)}, {v(vLO+j)}, {v(vt+2)}, {v(vRK8+j)}")
            a(f"v_cmp_gt_u32 vcc, {STRIDE}, {v(vRK8+j)}")
            a(f"v_lshlrev_b32 {v(vAD+j)}, 2, {v(vAD+j)}")
            a(f"s_andn2_b64 {s(sT2,2)}, {s(msk+2*j,2)}, vcc")
            a(f"s_and_b64 {s(msk+2*j,2)}, {s(msk+2*j,2)}, vcc")
            a(f"s_or_b64 {s(sOVF,2)}, {s(sOVF,2)}, {s(sT2,2)}")
        for j in js:
            a(f"s_mov_b64 exec, {s(msk+2*j,2)}")
            a(f"ds_write_b32 {v(vAD+j)}, {v(rc+j)} offset:{L_LIST}")
            a(f"v_max_f32 {v(vEM)}, |{v(rc+j)}|, {v(vEM)}")
        a("s_mov_b64 exec, -1")
    proc(vRC, vLB, sMSK, list(range(8)))
    for it in range(4):
        l = a.uid("P2")
        a(f"s_cmp_eq_u64 {s(sM2+4*it,2)}, 0")
        a(f"s_cbranch_scc1 {l}")
        proc(vRC2, vLB2, sM2, [2*it, 2*it+1])
        a(f"{l}:")
    a("s_branch K_BATCH")
    a("K_BDONE:")
    a(f"v_max3_f32 {v(vt)}, |{v(vWC)}|, |{v(vWC+1)}|, |{v(vWC+2)}|")
    a(f"v_max3_f32 {v(vt)}, {v(vt)}, |{v(vWC+3)}|, |{v(vWC+4)}|")
    a(f"v_max3_f32 {v(vt)}, {v(vt)}, |{v(vWC+5)}|, |{v(vWC+6)}|")
    a(f"v_max_f32 {v(vt)}, |{v(vWC+7)}|, {v(vt)}")
    a("s_nop 1")
    a(f"v_max_f32_dpp {v(vt)}, {v(vt)}, {v(vt)} quad_perm:[1,0,3,2] row_mask:0xf bank_mask:0xf")
    a("s_nop 1")
    a(f"v_max_f32_dpp {v(vt)}, {v(vt)}, {v(vt)} quad_perm:[2,3,0,1] row_mask:0xf bank_mask:0xf")
    a(f"v_mul_f32 {v(vt)}, {v(vt)}, {v(vEM)}")
    a(f"v_cmp_lt_f32 vcc, {hx(fbits(LIM_E))}, {v(vt)}")
    a(f"s_or_b64 vcc, vcc, {s(sOVF,2)}")
    if opt("forceslow"): a("s_mov_b64 vcc, -1")
    a("s_cbranch_vccz K_NOSLOW")
    a(f"ds_write_b32 {v(vMISC)}, {v(vOne)} offset:{M_SLOW}")
    a("s_waitcnt lgkmcnt(0)")
    a("K_NOSLOW:")
    stamp(a, 10, vACC, 2)
    stamp(a, 11, vACC, 8)
    a("s_barrier")
    stamp(a, 12, vACC)
    vDG = vX; vBN = vX + 1; vR2 = vX + 2; vBC = vX + 3; vBE = vX + 4; vPD = vX + 8
    a(f"s_cmp_lg_u32 {s(sWAVE)}, 15")
    a("s_cbranch_scc1 K_NOPI")
    a(f"ds_read_b32 {v(vt)}, {v(vMISC)} offset:{M_TAG}")
    a(f"v_lshlrev_b32 {v(vt+1)}, 7, {v(vLane)}")
    for i in range(4): a(f"s_mov_b64 {s(sP+2*i,2)}, -1")
    tagpoll_issue(vt+1, vPD, 1, rFLG, 8192, sP)
    a("s_waitcnt lgkmcnt(0)")
    a(f"v_readfirstlane_b32 {s(sTAG)}, {v(vt)}")
    a("K_NOPI:")
    a(f"s_movk_i32 {s(sT0)}, {NLOC}")
    a(f"v_cmp_gt_u32 {s(sVAL,2)}, {s(sT0)}, v0")
    a(f"v_lshlrev_b32 {v(vt)}, 2, v0")
    a(f"v_add_u32 {v(vt)}, {L_CNT}, {v(vt)}")
    a(f"s_mov_b64 exec, {s(sVAL,2)}")
    a(f"ds_read_b32 {v(vDG)}, {v(vt)}")
    a("s_waitcnt lgkmcnt(0)")
    a(f"v_min_u32 {v(vDG)}, {STRIDE}, {v(vDG)}")
    a(f"v_sub_u32 {v(vBN)}, 63, {v(vDG)}")
    a(f"v_lshlrev_b32 {v(vBN)}, 2, {v(vBN)}")
    a(f"v_add_u32 {v(vt)}, {L_BINS}, {v(vBN)}")
    a(f"ds_add_rtn_u32 {v(vR2)}, {v(vt)}, {v(vOne)}")
    a("s_mov_b64 exec, -1")
    a("s_waitcnt lgkmcnt(0)")
    a("s_barrier")
    a(f"s_cmp_lg_u32 {s(sWAVE)}, 15")
    a("s_cbranch_scc1 K_NOPOLLB")
    tagpoll(vt+1, vPD, 1, rFLG, 8192, sP, issued=True, vtmp=vt+2)
    a(f"v_or3_b32 {v(vt+2)}, {v(vPD)}, {v(vPD+1)}, {v(vPD+2)}")
    a(f"v_or_b32 {v(vt+2)}, {v(vt+2)}, {v(vPD+3)}")
    a(f"v_and_b32 {v(vt+2)}, 2, {v(vt+2)}")
    a(f"v_cmp_ne_u32 vcc, 0, {v(vt+2)}")
    a("s_cbranch_vccz K_NOPOLLB")
    a(f"ds_write_b32 {v(vMISC)}, {v(vOne)} offset:{M_SLOW}")
    a("s_waitcnt lgkmcnt(0)")
    a("K_NOPOLLB:")
    a(f"s_cmp_ge_u32 {s(sWAVE)}, {(NLOC+63)//64}")
    a("s_cbranch_scc1 K_NOPERM")
    a(f"v_lshlrev_b32 {v(vt)}, 2, {v(vLane)}")
    a(f"v_add_u32 {v(vt)}, {L_BINS}, {v(vt)}")
    a(f"ds_read_b32 {v(vBC)}, {v(vt)}")
    a("s_waitcnt lgkmcnt(0)")
    a(f"v_mov_b32 {v(vBE)}, {v(vBC)}")
    scan64(a, vBE)
    a(f"v_sub_u32 {v(vBE)}, {v(vBE)}, {v(vBC)}")
    a(f"ds_bpermute_b32 {v(vt)}, {v(vBN)}, {v(vBE)}")
    a(f"v_lshl_or_b32 {v(vDG)}, {v(vDG)}, 16, v0")
    a("s_waitcnt lgkmcnt(0)")
    a(f"v_add_lshl_u32 {v(vt)}, {v(vt)}, {v(vR2)}, 2")
    a(f"v_add_u32 {v(vt)}, {L_PERM}, {v(vt)}")
    a(f"s_mov_b64 exec, {s(sVAL,2)}")
    a(f"ds_write_b32 {v(vt)}, {v(vDG)}")
    a("s_mov_b64 exec, -1")
    a("s_waitcnt lgkmcnt(0)")
    a("K_NOPERM:")
    stamp(a, 14, vACC)
    a("s_barrier")
    stamp(a, 15, vACC)
    stamp(a, 15, vACC, 0, True)
    NB = int(opt("nbuf", 3))
    R2 = Regs(m0, 126)
    vDEN = R2.alloc(8); vNUM = R2.alloc(8); vEA = R2.alloc(8)
    vBUF = [R2.alloc(16, 4) for _ in range(NB)]
    vLa = R2.alloc(4); vLb = R2.alloc(4); vUa = R2.alloc(4); vUb = R2.alloc(4)
    vE = [R2.alloc(2) for _ in range(NB)]
    vREC = R2.alloc(2); vADR = vt
    vU = R2.alloc(4, 4); vXS = R2.alloc(4, 4)
    vINFO = vt + 2; vDEG = vt + 3; vLA = R2.alloc(); vOFF = R2.alloc()
    vPB = 0; vAUB = vLane; vOB = 1
    R.hi = max(R.hi, R2.hi)
    sSGN = sBASE; s128 = sVAL; sKG = sVAL + 1
    a(f"s_brev_b32 {s(sSGN)}, 1")
    a(f"s_movk_i32 {s(s128)}, 128")
    a(f"s_mul_i32 {s(sT0)}, {s(sBK)}, {NPB*256}")
    a(f"v_add_u32 {v(vOB)}, {s(sT0)}, {v(vJ16)}")
    a(f"v_lshrrev_b32 {v(vPB)}, 2, {v(vLane)}")
    a(f"v_lshlrev_b32 {v(vPB)}, 2, {v(vPB)}")
    a(f"v_add_u32 {v(vPB)}, {L_PERM}, {v(vPB)}")
    a(f"v_add_u32 {v(vAUB)}, {L_AU}, {v(vJ16)}")
    sSLOW = sOVF
    sD0, sD1, sEPS = 26, 27, 28
    a(f"s_mov_b32 {s(sD0)}, 0x3f80")
    a(f"s_mov_b32 {s(sD1)}, 0x3f800000")
    a(f"s_mov_b32 {s(sEPS)}, {hx(fbits(1e-6))}")
    a(f"s_mov_b32 {s(sEPS+1)}, {hx(fbits(1e-6))}")
    a(f"ds_read_b32 {v(vINFO)}, {v(vMISC)} offset:{M_SLOW}")
    a("s_waitcnt lgkmcnt(0)")
    a(f"v_readfirstlane_b32 {s(sSLOW)}, {v(vINFO)}")
    a(f"s_cmp_lg_u32 {s(sSLOW)}, 0")
    a("s_cbranch_scc1 K_SLOW")
    if PRIO: a("s_setprio 3" if (not opt("prio1")) else "s_setprio 2")

    def G(nb, rec=None):
        B = vBUF[nb]
        rec = vREC if rec is None else rec
        a(f"v_mad_u32_u16 {v(vADR)}, {v(rec)}, {s(s128)}, {v(vJ16)}")
        a(f"v_mad_u32_u16 {v(vADR+1)}, {v(rec+1)}, {s(s128)}, {v(vJ16)}")
        if not RAWE:
            a(f"v_and_b32 {v(vE[nb])}, {s(sMHI)}, {v(rec)}")
            a(f"v_and_b32 {v(vE[nb]+1)}, {s(sMHI)}, {v(rec+1)}")
        a(f"buffer_load_dwordx4 {v(B,4)}, {v(vADR)}, {s(rT,4)}, 0 offen")
        a(f"buffer_load_dwordx4 {v(B+4,4)}, {v(vADR)}, {s(rT,4)}, 0 offen offset:64")
        a(f"buffer_load_dwordx4 {v(B+8,4)}, {v(vADR+1)}, {s(rT,4)}, 0 offen")
        a(f"buffer_load_dwordx4 {v(B+12,4)}, {v(vADR+1)}, {s(rT,4)}, 0 offen offset:64")

    def front(B, L, e, hi):
        sel = "op_sel:[1,0,0] op_sel_hi:[1,1,1]" if hi else "op_sel_hi:[0,1,1]"
        prs = [L, L+2, B, B+2]
        a(f"v_lshlrev_b64 {v(L,2)}, 16, {v(B,2)}")
        a(f"v_lshlrev_b64 {v(L+2,2)}, 16, {v(B+2,2)}")
        for i in (2, 3, 0, 1):
            a(pk("fma", prs[i], v(e,2), v(vWC+2*i,2), v(prs[i],2), sel))
        for i in (2, 3, 0, 1):
            a(f"v_exp_f32 {v(prs[i])}, {v(prs[i])}")
            a(f"v_exp_f32 {v(prs[i]+1)}, {v(prs[i]+1)}")
        return prs
    def front2(prs):
        for i in (2, 3, 0, 1):
            a(pk("fma", prs[i], v(vEA+2*i,2), v(prs[i],2), "1.0", "op_sel_hi:[1,1,0]"))

    def Cpair(nb, first=False):
        if opt("novalu"): return
        B = vBUF[nb]
        Ba, Va, Bb, Vb = B, B+4, B+8, B+12
        pa = front(Ba, vLa, vE[nb], False)
        pb = front(Bb, vLb, vE[nb], True)
        a(f"v_lshlrev_b64 {v(vUa,2)}, 16, {v(Va,2)}")
        a(f"v_lshlrev_b64 {v(vUa+2,2)}, 16, {v(Va+2,2)}")
        a(f"v_lshlrev_b64 {v(vUb,2)}, 16, {v(Vb,2)}")
        a(f"v_lshlrev_b64 {v(vUb+2,2)}, 16, {v(Vb+2,2)}")
        front2(pa)
        front2(pb)
        qa = [vUa, vUa+2, Va, Va+2]; qb = [vUb, vUb+2, Vb, Vb+2]
        for i in range(4): a(pk("mul", qa[i], v(qa[i],2), v(pb[i],2)))
        for i in range(4): a(pk("fma", qa[i], v(qb[i],2), v(pa[i],2), v(qa[i],2)))
        for i in range(4): a(pk("mul", qb[i], v(pa[i],2), v(pb[i],2)))
        for i in range(4): a(pk("add", pa[i], v(pa[i],2), v(pb[i],2)))
        for i in range(4):
            a(f"v_rcp_f32 {v(qb[i])}, {v(qb[i])}")
            a(f"v_rcp_f32 {v(qb[i]+1)}, {v(qb[i]+1)}")
        if first:
            for i in range(4): a(pk("mul", vNUM+2*i, v(qa[i],2), v(qb[i],2)))
            for i in range(4): a(pk("fma", vDEN+2*i, v(pa[i],2), v(qb[i],2), s(sEPS,2)))
            return
        for i in range(4): a(pk("fma", vNUM+2*i, v(qa[i],2), v(qb[i],2), v(vNUM+2*i,2)))
        for i in range(4): a(pk("fma", vDEN+2*i, v(pa[i],2), v(qb[i],2), v(vDEN+2*i,2)))

    def Csingle(nb, hi):
        if opt("novalu"): return
        B = vBUF[nb] + (8 if hi else 0)
        V = B + 4
        p = front(B, vLa, vE[nb], hi)
        a(f"v_lshlrev_b64 {v(vUa,2)}, 16, {v(V,2)}")
        front2(p)
        a(f"v_lshlrev_b64 {v(vUa+2,2)}, 16, {v(V+2,2)}")
        for i in (2, 3, 0, 1):
            a(f"v_rcp_f32 {v(p[i])}, {v(p[i])}")
            a(f"v_rcp_f32 {v(p[i]+1)}, {v(p[i]+1)}")
        q = [vUa, vUa+2, V, V+2]
        for i in (2, 3, 0, 1): a(pk("add", vDEN+2*i, v(vDEN+2*i,2), v(p[i],2)))
        for i in (2, 3, 0, 1): a(pk("fma", vNUM+2*i, v(q[i],2), v(p[i],2), v(vNUM+2*i,2)))

    DEP = NB - 1 if not RAWE else NB - 2
    a("K_GROUP:")
    signal(M_Q, vINFO)
    a("s_waitcnt lgkmcnt(0)")
    a(f"v_readfirstlane_b32 {s(sT0)}, {v(vINFO)}")
    a(f"s_cmp_ge_u32 {s(sT0)}, {NGRP}")
    a("s_cbranch_scc1 K_DONE")
    a(f"s_lshl_b32 {s(sT0)}, {s(sT0)}, 6")
    a(f"v_add_u32 {v(vINFO)}, {s(sT0)}, {v(vPB)}")
    a(f"ds_read_b32 {v(vINFO)}, {v(vINFO)}")
    a("s_waitcnt lgkmcnt(0)")
    a(f"v_lshrrev_b32 {v(vDEG)}, 16, {v(vINFO)}")
    a(f"v_and_b32 {v(vINFO)}, 0xffff, {v(vINFO)}")
    a(f"v_mul_u32_u24 {v(vLA)}, {STRIDE*4}, {v(vINFO)}")
    for j in range(DEP):
        a(f"ds_read2_b32 {v(vE[j] if RAWE else vLa+2*j,2)}, {v(vLA)} offset0:{2*j} offset1:{2*j+1}")
    a(f"ds_read2_b32 {v(vE[DEP] if RAWE else vREC,2)}, {v(vLA)} offset0:{2*DEP} offset1:{2*DEP+1}")
    a(f"v_mul_u32_u24 {v(vADR)}, {AUS}, {v(vINFO)}")
    a(f"v_add_u32 {v(vADR)}, {v(vADR)}, {v(vAUB)}")
    a(f"ds_read_b128 {v(vEA+4,4)}, {v(vADR)}")
    a(f"ds_read_b128 {v(vU,4)}, {v(vADR)} offset:64")
    a(f"v_readlane_b32 {s(sMAX)}, {v(vDEG)}, 0")
    a(f"v_readlane_b32 {s(sMIN)}, {v(vDEG)}, 63")
    a(f"v_lshl_add_u32 {v(vOFF)}, {v(vINFO)}, 8, {v(vOB)}")
    a(f"v_sub_u32 {v(vINFO)}, {NPB-1}, {v(vINFO)}")
    a(f"v_and_or_b32 {v(vOFF)}, {v(vINFO)}, {s(sSGN)}, {v(vOFF)}")
    a(f"buffer_load_dwordx4 {v(vXS,4)}, {v(vOFF)}, {s(rX,4)}, {s(sSL64)} offen")
    for j in range(DEP):
        a(f"s_waitcnt lgkmcnt({DEP - j + 2})")
        G(j, vE[j] if RAWE else vLa + 2*j)
    a("s_waitcnt lgkmcnt(1)")
    a(f"v_lshlrev_b64 {v(vEA,2)}, 16, {v(vEA+4,2)}")
    a(f"v_lshlrev_b64 {v(vEA+2,2)}, 16, {v(vEA+6,2)}")
    a(f"s_mov_b32 {s(sK)}, 0")
    a(f"s_sub_u32 {s(sKG)}, {s(sMAX)}, {2*DEP}")
    sKP = 24
    if (not opt("prio1")): a(f"s_sub_u32 {s(sKP)}, {s(sMAX)}, {opt('p2a', 6)}")
    if PEEL:
        assert DEP == 1
        a(f"s_cmp_lt_u32 {s(sMIN)}, 4")
        a("s_cbranch_scc1 K_INIT")
        a("s_waitcnt lgkmcnt(0)")
        G(1, vE[1])
        a(f"ds_read2_b32 {v(vE[2],2)}, {v(vLA)} offset0:4 offset1:5")
        a("s_waitcnt vmcnt(4)")
        Cpair(0, True)
        a("s_branch K_NEXT0")
        a("K_INIT:")
    a(f"v_mov_b32 {v(vDEN)}, {hx(fbits(1e-6))}")
    a(f"v_mov_b32 {v(vDEN+1)}, {v(vDEN)}")
    for d in range(2, 8, 2): a(f"v_mov_b64 {v(vDEN+d,2)}, {v(vDEN,2)}")
    for d in range(0, 8, 2): a(f"v_mov_b64 {v(vNUM+d,2)}, 0")
    a(f"s_cmp_eq_u32 {s(sMAX)}, 0")
    a("s_cbranch_scc1 K_EPI0")
    a("K_LOOP:")
    for cur in range(NB):
        if (not opt("prio1")):
            a(f"s_cmp_ge_i32 {s(sK)}, {s(sKP)}")
            a(f"s_cbranch_scc1 K_PRI{cur}")
            a(f"K_PRB{cur}:")
        a(f"s_cmp_lt_i32 {s(sK)}, {s(sKG)}")
        a(f"s_cbranch_scc0 K_NOG{cur}")
        a("s_waitcnt lgkmcnt(0)")
        G((cur + DEP) % NB, vE[(cur + DEP) % NB] if RAWE else None)
        a(f"ds_read2_b32 {v(vE[(cur + DEP + 1) % NB] if RAWE else vREC,2)}, {v(vLA)} offset0:{2*(DEP+1+cur)} offset1:{2*(DEP+1+cur)+1}")
        if cur == NB - 1: a(f"v_add_u32 {v(vLA)}, {8*NB}, {v(vLA)}")
        a(f"s_waitcnt vmcnt({4*DEP})")
        a(f"K_GOT{cur}:")
        a(f"s_add_u32 {s(sT0)}, {s(sK)}, 2")
        a(f"s_cmp_le_u32 {s(sT0)}, {s(sMIN)}")
        a(f"s_cbranch_scc0 K_TAIL{cur}")
        Cpair(cur)
        a(f"K_NEXT{cur}:")
        a(f"s_add_u32 {s(sK)}, {s(sK)}, 2")
        a(f"s_cmp_ge_u32 {s(sK)}, {s(sMAX)}")
        a("s_cbranch_scc1 K_EPI" if cur < NB - 1 else "s_cbranch_scc0 K_LOOP")
    a("K_EPI:")
    a("s_mov_b64 exec, -1")
    a("s_waitcnt lgkmcnt(0)")
    for d in range(8): a(f"v_rcp_f32 {v(vDEN+d)}, {v(vDEN+d)}")
    Xu = vLa
    assert vLb == vLa + 4
    Up = [vUa, vUa+2, vU, vU+2]
    if UCH:
        a(f"v_lshlrev_b64 {v(vUa,2)}, 16, {v(vU,2)}")
        a(f"v_lshlrev_b64 {v(vUa+2,2)}, 16, {v(vU+2,2)}")
    for d in range(4):
        if not UCH:
            a(f"v_lshlrev_b32 {v(vUa+d)}, 16, {v(vU+d)}")
            a(f"v_and_b32 {v(vU+d)}, {s(sMHI)}, {v(vU+d)}")
        if not DOT:
            a(f"v_lshlrev_b32 {v(Xu+d)}, 16, {v(vXS+d)}")
            a(f"v_and_b32 {v(Xu+4+d)}, {s(sMHI)}, {v(vXS+d)}")
    if UCH and DOT: a("s_nop 0")
    for i in range(4): a(pk("fma", Up[i], v(vNUM+2*i,2), v(vDEN+2*i,2), v(Up[i],2)))
    for i in range(4):
        a(f"v_max_f32 {v(Up[i])}, 0, {v(Up[i])}")
        a(f"v_max_f32 {v(Up[i]+1)}, 0, {v(Up[i]+1)}")
    if DOT:
        for d in range(4):
            a(f"v_dot2_f32_bf16 {v(vUa+d)}, {v(vXS+d)}, {s(sD0)}, {v(vUa+d)}")
            a(f"v_dot2_f32_bf16 {v(vU+d)}, {v(vXS+d)}, {s(sD1)}, {v(vU+d)}")
        a("s_nop 2")
    else:
        for i in range(4): a(pk("add", Up[i], v(Up[i],2), v(Xu+2*i,2)))
    for d in range(4): a(f"v_cvt_pk_bf16_f32 {v(vNUM+d)}, {v(vUa+d)}, {v(vU+d)}")
    a(f"buffer_store_dwordx4 {v(vNUM,4)}, {v(vOFF)}, {s(rA,4)}, {s(sSL64)} offen{OSC}")
    if PRIO: a("s_setprio 2" if (not opt("prio1")) else "s_setprio 0")
    a(f"s_cmp_eq_u32 {s(sSLOW)}, 0")
    a("s_cbranch_scc1 K_GROUP")
    a("s_branch K_SNEXT")
    a("K_EPI0:")
    a("s_waitcnt vmcnt(0)")
    a("s_branch K_EPI")
    for cur in range(NB):
        if (not opt("prio1")):
            a(f"K_PRI{cur}:")
            a(f"ds_read_b32 {v(vLb)}, {v(vMISC)} offset:{M_Q}")
            a(f"s_sub_u32 {s(sT1)}, {s(sMAX)}, {s(sK)}")
            a("s_waitcnt lgkmcnt(0)")
            a(f"v_readfirstlane_b32 {s(sT0)}, {v(vLb)}")
            a(f"s_cmp_lt_u32 {s(sT0)}, {NGRP}")
            a(f"s_cbranch_scc1 K_PRB{cur}")
            a("s_setprio 1")
            a(f"s_cmp_gt_u32 {s(sT1)}, {opt('p2b', 2)}")
            a(f"s_cbranch_scc1 K_PRB{cur}")
            a("s_setprio 0")
            a(f"s_branch K_PRB{cur}")
        a(f"K_NOG{cur}:")
        if DEP >= 2:
            a(f"s_add_u32 {s(sT0)}, {s(sK)}, 2")
            a(f"s_cmp_lt_u32 {s(sT0)}, {s(sMAX)}")
            a(f"s_cbranch_scc0 K_NOGZ{cur}")
            a("s_waitcnt vmcnt(4)")
            a(f"s_branch K_GOT{cur}")
            a(f"K_NOGZ{cur}:")
        a("s_waitcnt vmcnt(0)")
        a(f"s_branch K_GOT{cur}")
        a(f"K_TAIL{cur}:")
        a(f"v_cmpx_lt_u32 vcc, {s(sK)}, {v(vDEG)}")
        Csingle(cur, False)
        a(f"s_add_u32 {s(sT0)}, {s(sK)}, 1")
        a(f"s_cmp_ge_u32 {s(sT0)}, {s(sMAX)}")
        a("s_cbranch_scc1 K_EPI")
        a(f"v_cmpx_lt_u32 vcc, {s(sT0)}, {v(vDEG)}")
        Csingle(cur, True)
        a(f"s_branch K_NEXT{cur}")
    sG, sSEG, sLEN, sBS, sI, sN, sR, sL = 16, 17, 18, 19, 20, 21, 22, 23
    vSR, vSLc, vSI, vSA = vBUF[1], vBUF[1] + 1, vBUF[1] + 2, vBUF[1] + 3
    vMY = vLA
    B = vBUF[0]
    a("K_SLOW:")
    a(f"s_mov_b32 {s(sG)}, {s(sWAVE)}")
    a(f"v_mbcnt_lo_u32_b32 {v(vSI)}, -1, 0")
    a(f"v_mbcnt_hi_u32_b32 {v(vSI)}, -1, {v(vSI)}")
    a("K_SGRP:")
    a(f"s_lshl_b32 {s(sT0)}, {s(sG)}, 4")
    a(f"v_lshrrev_b32 {v(vMY)}, 2, {v(vSI)}")
    a(f"v_add_u32 {v(vMY)}, {s(sT0)}, {v(vMY)}")
    a(f"v_mul_u32_u24 {v(vADR)}, {AUS}, {v(vMY)}")
    a(f"v_add_u32 {v(vADR)}, {v(vADR)}, {v(vAUB)}")
    a(f"ds_read_b128 {v(vEA+4,4)}, {v(vADR)}")
    a(f"ds_read_b128 {v(vU,4)}, {v(vADR)} offset:64")
    a(f"ds_read_b32 {v(vSA)}, {v(vMISC)} offset:{M_RAW}")
    a(f"v_lshl_add_u32 {v(vOFF)}, {v(vMY)}, 8, {v(vOB)}")
    a(f"v_sub_u32 {v(vINFO)}, {NPB-1}, {v(vMY)}")
    a(f"v_and_or_b32 {v(vOFF)}, {v(vINFO)}, {s(sSGN)}, {v(vOFF)}")
    a(f"buffer_load_dwordx4 {v(vXS,4)}, {v(vOFF)}, {s(rX,4)}, {s(sSL64)} offen")
    for d in range(8):
        a(f"v_mov_b32 {v(vDEN+d)}, {hx(fbits(1e-6))}")
        a(f"v_mov_b32 {v(vNUM+d)}, 0")
    a("s_waitcnt lgkmcnt(0)")
    a(f"v_readfirstlane_b32 {s(sT0)}, {v(vSA)}")
    a(f"v_lshlrev_b64 {v(vEA,2)}, 16, {v(vEA+4,2)}")
    a(f"v_lshlrev_b64 {v(vEA+2,2)}, 16, {v(vEA+6,2)}")
    a(f"s_lshr_b32 {s(sT1)}, {s(sG)}, 1")
    a(f"s_bitcmp1_b32 {s(sT0)}, {s(sT1)}")
    a("s_cbranch_scc1 K_SRAW")
    for d in range(8): a(f"v_log_f32 {v(vEA+d)}, {v(vEA+d)}")
    a("K_SRAW:")
    a(f"s_mov_b32 {s(sSEG)}, 0")
    a("K_SSEG:")
    a(f"s_lshl_b32 {s(sT0)}, {s(sSEG)}, 2")
    a(f"s_add_u32 {s(sT0)}, {s(sT0)}, {L_DESC}")
    a(f"v_mov_b32 {v(vSA)}, {s(sT0)}")
    a(f"ds_read_b32 {v(vSA)}, {v(vSA)}")
    a("s_waitcnt lgkmcnt(0)")
    a(f"v_readfirstlane_b32 {s(sBS)}, {v(vSA)}")
    a(f"s_lshr_b32 {s(sLEN)}, {s(sBS)}, 16")
    a(f"s_and_b32 {s(sBS)}, {s(sBS)}, 0xffff")
    a("K_SBLK:")
    a(f"s_cmp_eq_u32 {s(sLEN)}, 0")
    a("s_cbranch_scc1 K_SSEGN")
    a(f"s_lshl_b32 {s(sT0)}, {s(sSEG)}, 13")
    a(f"v_add_u32 {v(vSA)}, {s(sBS)}, {v(vSI)}")
    a(f"v_lshlrev_b32 {v(vADR)}, 2, {v(vSA)}")
    a(f"v_add_u32 {v(vSA)}, {LOC0}, {v(vSA)}")
    a(f"buffer_load_dword {v(vSR)}, {v(vADR)}, {s(rREC,4)}, {s(sT0)} offen")
    a(f"buffer_load_ubyte {v(vSLc)}, {v(vSA)}, {s(rREC,4)}, {s(sT0)} offen")
    a(f"s_min_u32 {s(sN)}, {s(sLEN)}, 64")
    a(f"s_sub_u32 {s(sLEN)}, {s(sLEN)}, {s(sN)}")
    a(f"s_add_u32 {s(sBS)}, {s(sBS)}, 64")
    a(f"s_mov_b32 {s(sI)}, 0")
    a("s_waitcnt vmcnt(0)")
    a(f"v_bfe_u32 {v(vSA)}, {v(vSR)}, 15, 1")
    a(f"v_lshl_or_b32 {v(vSLc)}, {v(vSA)}, 8, {v(vSLc)}")
    a("s_nop 0")
    a("K_SREC:")
    a(f"v_readlane_b32 {s(sL)}, {v(vSLc)}, {s(sI)}")
    a(f"s_lshr_b32 {s(sT0)}, {s(sL)}, 4")
    a(f"s_cmp_lg_u32 {s(sT0)}, {s(sG)}")
    a("s_cbranch_scc1 K_SRECN")
    a(f"v_readlane_b32 {s(sR)}, {v(vSR)}, {s(sI)}")
    a(f"s_and_b32 {s(sT0)}, {s(sR)}, 0x7fff")
    a(f"s_lshl_b32 {s(sT0)}, {s(sT0)}, 7")
    a(f"s_and_b32 {s(sR)}, {s(sR)}, {s(sMHI) if not RAWE else '0xffff7fff'}")
    a(f"v_add_u32 {v(vADR)}, {s(sT0)}, {v(vJ16)}")
    a(f"v_mov_b32 {v(vE[0])}, {s(sR)}")
    a(f"v_cmpx_eq_u32 vcc, {s(sL)}, {v(vMY)}")
    a(f"buffer_load_dwordx4 {v(B,4)}, {v(vADR)}, {s(rT,4)}, 0 offen")
    a(f"buffer_load_dwordx4 {v(B+4,4)}, {v(vADR)}, {s(rT,4)}, 0 offen offset:64")
    a("s_waitcnt vmcnt(0)")
    prs = [vLa, vLa+2, B, B+2]; q = [vUa, vUa+2, B+4, B+6]
    a(f"v_lshlrev_b64 {v(vLa,2)}, 16, {v(B,2)}")
    a(f"v_lshlrev_b64 {v(vLa+2,2)}, 16, {v(B+2,2)}")
    a(f"v_lshlrev_b64 {v(vUa,2)}, 16, {v(B+4,2)}")
    a(f"v_lshlrev_b64 {v(vUa+2,2)}, 16, {v(B+6,2)}")
    for i in range(4): a(pk("add", prs[i], v(prs[i],2), v(vEA+2*i,2)))
    for i in range(4): a(pk("fma", prs[i], v(vE[0],2), v(vWC+2*i,2), v(prs[i],2), "op_sel_hi:[0,1,1]"))
    for i in range(4):
        a(f"v_exp_f32 {v(prs[i])}, {v(prs[i])}")
        a(f"v_exp_f32 {v(prs[i]+1)}, {v(prs[i]+1)}")
    for i in range(4): a(pk("add", prs[i], v(prs[i],2), "1.0", None, "op_sel_hi:[1,0]"))
    for i in range(4):
        a(f"v_rcp_f32 {v(prs[i])}, {v(prs[i])}")
        a(f"v_rcp_f32 {v(prs[i]+1)}, {v(prs[i]+1)}")
    for i in range(4): a(pk("add", vDEN+2*i, v(vDEN+2*i,2), v(prs[i],2)))
    for i in range(4): a(pk("fma", vNUM+2*i, v(q[i],2), v(prs[i],2), v(vNUM+2*i,2)))
    a("s_mov_b64 exec, -1")
    a("K_SRECN:")
    a(f"s_add_u32 {s(sI)}, {s(sI)}, 1")
    a(f"s_cmp_lt_u32 {s(sI)}, {s(sN)}")
    a("s_cbranch_scc1 K_SREC")
    a("s_branch K_SBLK")
    a("K_SSEGN:")
    a(f"s_add_u32 {s(sSEG)}, {s(sSEG)}, 1")
    a(f"s_cmp_lt_u32 {s(sSEG)}, 256")
    a("s_cbranch_scc1 K_SSEG")
    a("s_branch K_EPI0")
    a("K_SNEXT:")
    a(f"s_add_u32 {s(sG)}, {s(sG)}, 16")
    a(f"s_cmp_lt_u32 {s(sG)}, {NGRP}")
    a("s_cbranch_scc1 K_SGRP")
    a("K_DONE:")
    stamp(a, 16, vLa, None)
    stamp(a, 16, vLa, None, True)
    a("K_END:")
    a("s_endpgm")
    return R.hi

def main():
    a = Asm()
    hdr = open("standalone__edge_featured_mpnn_gatedgcn__graph.s.ref").read().split("\n")
    for l in hdr:
        if l.startswith("; Override"): break
        a.raw(l)
    if ASLIST:
        a.raw(f"; @launch kernel={KNAME} grid=({NWG},1,1) block=(1024,1,1) lds={L_END}")
    else:
        a.raw(f"; @launch grid=({NWG},1,1) block=(1024,1,1) lds={L_END}")
    a.raw('.amdgcn_target "amdgcn-amd-amdhsa--gfx950"')
    a.raw(".text")
    nv = gen(a)
    a.raw('.section .rodata,"a"')
    a.raw(".p2align 6")
    a.raw(f".amdhsa_kernel {KNAME}")
    a.raw(f"  .amdhsa_next_free_vgpr {nv}")
    a.raw(f"  .amdhsa_next_free_sgpr 102")
    a.raw(f"  .amdhsa_accum_offset {(nv+3)//4*4}")
    a.raw(f"  .amdhsa_group_segment_fixed_size 0")
    a.raw(f"  .amdhsa_kernarg_size 96")
    a.raw(f"  .amdhsa_user_sgpr_count 2")
    a.raw(f"  .amdhsa_user_sgpr_kernarg_segment_ptr 1")
    a.raw(f"  .amdhsa_system_sgpr_workgroup_id_x 1")
    a.raw(f".end_amdhsa_kernel")
    out = [x for x in sys.argv[1:] if not x.startswith("--")]
    open(out[0] if out else "out.s", "w").write(a.text())
    print("vgprs", nv, "lds", L_END, file=sys.stderr)

main()
```
